```python
import torch

def _softmax(x, axis=-1):
    return torch.softmax(x, dim=axis)
def _gelu(x):
    return torch.nn.functional.gelu(x, approximate="tanh")
def _silu(x):
    return torch.nn.functional.silu(x)
def _sigmoid(x):
    return torch.sigmoid(x)
def _layernorm(x, axis=-1, eps=1e-5):
    m = x.mean(dim=axis, keepdim=True)
    v = x.var(dim=axis, keepdim=True, unbiased=False)
    return (x - m) / torch.sqrt(v + eps)
def _scatter_add(tgt, idx, src, axis=0):
    return tgt.clone().index_add_(axis, idx, src)
def _segment_sum(src, seg, n):
    out = torch.zeros((n,) + src.shape[1:], dtype=src.dtype)
    return out.index_add_(0, seg, src)
def _pad(x, pw):
    flat = tuple(v for pair in reversed(pw) for v in pair)
    return torch.nn.functional.pad(x, flat)

kernel_name = 'gated_mix__sliding_local_dilated__moe_arch_mod__prompt'

def setup_inputs():

    _w = (lambda a: (lambda t: t.to(torch.bfloat16) if t.is_floating_point() else t)(torch.as_tensor(a)))
    def _A_setup():
        B, S, D = 1, 2048, 640
        return {
            "x": _w((lambda *s: torch.randn(*s, dtype=torch.bfloat16) * 0.05)(B, S, D)),
            "wqkv": _w((lambda *s: torch.randn(*s, dtype=torch.bfloat16) * 0.8)(D, 3 * D)),
            "wo": _w((lambda *s: torch.randn(*s, dtype=torch.bfloat16) * 0.05)(D, D)),
        }
    _A_in = _A_setup()

    def _B_setup():
        B, S, D, F, C = 1, 2048, 640, 1728, 1
        return {
            "x": _w((lambda *s: torch.randn(*s, dtype=torch.bfloat16) * 0.05)(B, S, D)),
            "w_r": _w((lambda *s: torch.randn(*s, dtype=torch.bfloat16) * 1.6)(D)),
            "w_gate": _w((lambda *s: torch.randn(*s, dtype=torch.bfloat16) * 0.4)(D, F)),
            "w_up": _w((lambda *s: torch.randn(*s, dtype=torch.bfloat16) * 0.4)(D, F)),
            "w_down": _w((lambda *s: torch.randn(*s, dtype=torch.bfloat16) * 0.4)(F, D)),
        }
    _B_in = _B_setup()

    return {
        "A_x": _A_in["x"],
        "A_wqkv": _A_in["wqkv"],
        "A_wo": _A_in["wo"],
        "B_x": _B_in["x"],
        "B_w_r": _B_in["w_r"],
        "B_w_gate": _B_in["w_gate"],
        "B_w_up": _B_in["w_up"],
        "B_w_down": _B_in["w_down"],
        "gate_w": _w((lambda *s: torch.randn(*s, dtype=torch.bfloat16) * 0.05)(640) * 16.0),
    }

def reference(A_x, A_wqkv, A_wo, B_x, B_w_r, B_w_gate, B_w_up, B_w_down, gate_w):
    def _A_ref(x, wqkv, wo):
        B, S, D = x.shape
        H = 32; Dh = D // H
        W, dil = 8, 2
        qkv = (lambda x, *d: x.permute(*d))((x @ wqkv).reshape(B, S, 3, H, Dh), 2, 0, 3, 1, 4)
        q, k, v = qkv[0], qkv[1], qkv[2]
        scale = Dh ** -0.5
        pos = torch.arange(S)
        off = torch.arange(W) * dil
        idx = pos[:, None] - off[None, :]
        mask = idx >= 0
        idx_c = torch.where(mask, idx, 0).reshape(-1)
        kg = k[:, :, idx_c, :].reshape(B, H, S, W, Dh)
        vg = v[:, :, idx_c, :].reshape(B, H, S, W, Dh)
        logits = torch.einsum("bhsd,bhswd->bhsw", q, kg) * scale
        logits = torch.where(mask[None, None, :, :], logits, -1e9)
        attn = _softmax(logits, axis=-1)
        o = torch.einsum("bhsw,bhswd->bhsd", attn, vg)
        return (lambda x, *d: x.permute(*d))(o, 0, 2, 1, 3).reshape(B, S, D) @ wo

    def _B_ref(x, w_r, w_gate, w_up, w_down):
        B, S, D = x.shape
        C = 1
        r = x @ w_r
        idx = torch.argsort(-r, axis=-1)[:, :C]
        idx_e = (lambda x, n, axis: torch.repeat_interleave(x, n, dim=axis))(idx.reshape(B, C, 1), D, axis=2)
        x_sel = (lambda x, i, axis: torch.take_along_dim(x, i, dim=axis))(x, idx_e, axis=1)
        g = _silu(x_sel @ w_gate)
        u = x_sel @ w_up
        y = (g * u) @ w_down
        r_sel = _sigmoid((lambda x, i, axis: torch.take_along_dim(x, i, dim=axis))(r, idx, axis=1))
        y = y * r_sel.reshape(B, C, 1)
        b_off = (torch.arange(B) * S).reshape(B, 1)
        flat_idx = (idx + b_off).reshape(B * C)
        zero = (x * 0.0).reshape(B * S, D)
        upd = _scatter_add(zero, flat_idx, y.reshape(B * C, D), axis=0)
        return x + upd.reshape(B, S, D)

    x = A_x
    g = _sigmoid((x * gate_w).sum(-1, keepdims=True))
    a = _A_ref(x, A_wqkv, A_wo)
    b = _B_ref(x, B_w_r, B_w_gate, B_w_up, B_w_down)
    return g * a + (1 - g) * b
```

```python
import re

def regs_of(tok):
    tok = tok.strip()
    neg = tok.lstrip('-')
    m = re.fullmatch(r'(?:abs\()?([vs])(\d+)\)?', neg)
    if m: return [(m.group(1), int(m.group(2)))]
    m = re.fullmatch(r'([vs])\[(\d+):(\d+)\]', neg)
    if m: return [(m.group(1), i) for i in range(int(m.group(2)), int(m.group(3))+1)]
    if neg == 'vcc': return [('s', 'vcc')]
    if neg == 'exec': return [('s', 'exec')]
    if neg == 'm0': return [('s', 'm0')]
    return []

TRANS = ('v_exp_', 'v_log_', 'v_rcp_', 'v_rsq_', 'v_sqrt_', 'v_sin_', 'v_cos_')

class Ins:
    def __init__(s, text):
        s.text = text
        t = text.split(';')[0].strip()
        s.op = t.split()[0] if t else ''
        rest = t[len(s.op):].strip()
        parts = [p.strip() for p in rest.split(',')] if rest else []
        s.mods = ''
        if parts:
            last = parts[-1].split()
            parts[-1] = last[0] if last else ''
            s.mods = ' '.join(last[1:])
        s.parts = parts
        op = s.op
        s.mfma = op.startswith('v_mfma')
        s.valu = op.startswith('v_') and not s.mfma
        s.trans = op.startswith(TRANS)
        s.dot = op.startswith('v_dot')
        s.ds = op.startswith('ds_')
        s.vmem = op.startswith(('buffer_', 'global_'))
        s.salu = op.startswith('s_')
        s.perm = op.startswith('v_permlane')
        s.dpp = '_dpp' in op or 'quad_perm' in s.mods or 'row_' in s.mods
        s.rdlane = op.startswith(('v_readlane', 'v_readfirstlane'))
        R = [regs_of(p) for p in parts]
        flat = lambda l: [x for y in l for x in y]
        s.w, s.r = [], []
        s.srcC = []
        if s.mfma:
            s.w = R[0]; s.r = flat(R[1:]); s.srcC = R[3]; s.srcAB = R[1] + R[2]
        elif s.valu:
            s.w = list(R[0]); s.r = flat(R[1:])
            if s.perm or op.startswith('v_swap'): s.w = flat(R); s.r = flat(R)
            if op.startswith(('v_fmac', 'v_dot2c', 'v_writelane')) or s.dpp: s.r += R[0]
            if op.startswith(('v_add_co', 'v_sub_co', 'v_addc_co')): s.w += R[1]
            if op.startswith('v_cmpx'): s.w += [('s', 'exec')]
        elif s.ds:
            if op.startswith(('ds_read', 'ds_bpermute', 'ds_permute', 'ds_swizzle')) or '_rtn' in op:
                s.w = R[0]; s.r = flat(R[1:])
            else: s.r = flat(R)
        elif s.vmem:
            lds = ' lds' in (' ' + s.mods)
            if 'load' in op and not lds: s.w = R[0]; s.r = flat(R[1:])
            else: s.r = flat(R)
            if lds: s.r += [('s', 'm0')]
            s.lds = lds
            s.widestore = ('store' in op and ('x3' in op or 'x4' in op))
            s.sdata = R[0] if 'store' in op and op.startswith('buffer_') else (R[1] if 'store' in op else [])
        elif s.salu:
            if op.startswith(('s_cmp', 's_cbranch', 's_branch', 's_waitcnt', 's_barrier', 's_nop', 's_sleep', 's_setprio', 's_endpgm', 's_bitcmp', 's_setpc')):
                s.r = flat(R)
            else:
                s.w = R[0] if R else []; s.r = flat(R[1:])
                if 'saveexec' in op: s.w = s.w + [('s', 'exec')]
        s.states = 1
        if op == 's_nop': s.states = int(parts[0], 0) + 1

def need(p, c):
    W = set(p.w); n = 0
    def ov(a, b): return bool(set(a) & set(b))
    vW = [x for x in p.w if x[0] == 'v']; sW = [x for x in p.w if x[0] == 's']
    if p.mfma:
        passes = 8 if '32x32' in p.op else 4
        big = {4: 8, 8: 12}[passes]; part = {4: 6, 8: 10}[passes]; war = {4: 3, 8: 7}[passes]
        if c.mfma:
            if ov(vW, c.srcAB): n = max(n, big)
            if ov(vW, c.srcC) and c.srcC != p.w: n = max(n, part)
            if ov(vW, c.w) and not (c.srcC == p.w and c.w == p.w): n = max(n, part if not ov(vW, c.srcC) else 0)
        elif c.valu or c.ds or c.vmem:
            if ov(vW, c.r) or ov(vW, c.w): n = max(n, big)
        if c.valu and ov([x for x in p.srcC if x[0]=='v'], c.w): n = max(n, war)
    if p.valu:
        if c.mfma and ov(vW, c.r): n = max(n, 2)
        if c.mfma and ('s','exec') in W: n = max(n, 4)
        if c.perm and ov(vW, c.r): n = max(n, 2)
        if c.dpp and ov(vW, c.r): n = max(n, 2)
        if c.rdlane and ov(vW, c.r): n = max(n, 1)
        if p.trans and c.valu and not c.trans and ov(vW, c.r): n = max(n, 1)
        if p.trans and (c.ds or c.vmem or c.trans) and ov(vW, c.r): n = max(n, 1)
        if p.dot and (c.valu or c.ds or c.vmem) and (ov(vW, c.r) or ov(vW, c.w)):
            same = c.op == p.op
            if not (same and (c.op.startswith('v_dot2c') or (len(c.parts) > 3 and regs_of(c.parts[3]) == p.w)) and not ov(vW, regs_of(c.parts[1]) + regs_of(c.parts[2]))): n = max(n, 3)
        if sW:
            if c.vmem and ov(sW, c.r): n = max(n, 5)
            if c.valu and ov(sW, c.r): n = max(n, 4 if c.op.startswith(('v_readlane','v_writelane')) else 2)
            if c.salu and ov(sW, c.r): n = max(n, 1)
            if ('s','exec') in W:
                if c.dpp: n = max(n, 5)
                if c.rdlane or c.perm: n = max(n, 4)
    if p.salu and ('s','m0') in W and ((c.vmem and c.lds) or c.op.startswith('v_writelane') or c.op.startswith('v_readlane')): n = max(n, 1)
    if p.vmem and p.widestore and (c.valu or c.mfma or c.ds or c.vmem) and ov(p.sdata, c.w): n = max(n, 2)
    return n

class Asm:
    def __init__(s):
        s.L = []
    def __call__(s, x):
        for ln in x.split('\n'):
            if ln.strip(): s.L.append(ln.strip())
    def lab(s, x): s.L.append(x + ':')
    def finish(s):
        out = []; hist = []
        npad = 0
        for ln in s.L:
            if ln.endswith(':') or ln.startswith(('.', ';')):
                out.append(ln); continue
            c = Ins(ln)
            d = 0; req = 0
            for p in reversed(hist):
                if d >= 12: break
                r = need(p, c) - d
                if r > req: req = r
                d += p.states
            if req > 0:
                nop = Ins(f's_nop {req-1}')
                out.append('    ' + nop.text); hist.append(nop); npad += 1
            out.append('    ' + ln); hist.append(c)
            if c.op in ('s_branch', 's_endpgm', 's_setpc_b64'): hist = []
            hist = hist[-16:]
        s.npad = npad
        return '\n'.join(out)
```

```python
import sys, struct, math
sys.path.insert(0, "work")
from asmlib import Asm

KN = "gated_mix__sliding_local_dilated__moe_arch_mod__prompt"
def f32(x): return "0x%08x" % struct.unpack("<I", struct.pack("<f", x))[0]

WS_O = 0
WS_G = 3 << 20
WS_Y = WS_G + 8192
WS_S = 4 << 20
WS_T = 16 << 20
WS_SIZE = 20 << 20
SLOT = 38912
WOFF = 14336
L_WO = 81920
L_S = 38912
L_P = 0
L_OR = 38912
L_EP = 14336
LDS_BYTES = 163840
POISON = -1
SPIN = 30000

rX, rW, rWO, rWS, rDBG, rOUT = 28, 32, 36, 40, 44, 48
sW, sX, sJ, sP, sM0, sJB, sCG, sTB, sI0, sCnt, sSlot, sT = 52, 53, 54, 55, 56, 57, 58, 59, 60, 61, 62, 63
def S(n, k=1): return f"s{n}" if k == 1 else f"s[{n}:{n+k-1}]"
def V(n, k=1): return f"v{n}" if k == 1 else f"v[{n}:{n+k-1}]"
def R(n): return S(n, 4)

class Gen:
    def __init__(g, stamps=False, look=8, rot=2, mbx=0, l2from=None, codepf=True, **kw):
        g.a = Asm(); g.stamps = stamps; g.look = look; g.rot = rot; g.mbx = mbx; g.l2from = l2from; g.codepf = codepf
        g.opt = kw
        g.nlab = 0
    def lab(g, base): g.nlab += 1; return f"L_{base}_{g.nlab}"
    def stamp(g, k):
        if g.stamps:
            r = 86 + 2*k if k < 8 else 4 + 2*(k-8)
            g.a(f"s_memtime {S(r,2)}")
    def dump_stamps(g, nst):
        if not g.stamps: return
        a = g.a
        a("s_memrealtime s[62:63]")
        a("s_waitcnt lgkmcnt(0)")
        a("v_mov_b32 v1, v253")
        for k in range(nst):
            r = 86 + 2*k if k < 8 else 4 + 2*(k-8)
            a(f"v_writelane_b32 v1, s{r}, {k}")
        a("v_writelane_b32 v1, s3, 30")
        a("v_writelane_b32 v1, s62, 31")
        a(f"s_lshl_b32 s62, s2, 3"); a(f"s_add_u32 s62, s62, s{sW}"); a("s_lshl_b32 s62, s62, 8"); a(f"s_add_u32 s62, s62, {WS_T}")
        a("v_lshlrev_b32 v2, 2, v0")
        a(f"buffer_store_dword v1, v2, {R(rWS)}, s62 offen")

    def srd_consts(g, r, size):
        g.a(f"s_mov_b32 s{r+2}, {size}"); g.a(f"s_mov_b32 s{r+3}, 0x20000")

    def prologue(g):
        a = g.a
        a("s_cmp_ge_u32 s2, 256")
        a("s_cbranch_scc1 L_end")
        a("s_load_dwordx16 s[4:19], s[0:1], 0")
        a("s_load_dwordx8 s[20:27], s[0:1], 64")
        if g.stamps:
            a("s_memrealtime s[100:101]")
            g.stamp(0)
        a("v_lshrrev_b32 v1, 6, v0")
        a("v_and_b32 v0, 63, v0")
        a(f"v_readfirstlane_b32 s{sW}, v1")
        a(f"s_and_b32 s{sX}, s2, 7")
        a(f"s_lshr_b32 s{sJ}, s2, 3")
        g.srd_consts(rX, 2048*1280); g.srd_consts(rW, 640*3840); g.srd_consts(rWO, 640*1280)
        g.srd_consts(rWS, WS_SIZE); g.srd_consts(rDBG, 256); g.srd_consts(rOUT, 2048*1280)
        a(f"s_bfe_u32 s{sP}, s2, 0x10001")
        a(f"s_cmp_ge_u32 s{sJ}, 25")
        a("s_cbranch_scc1 L_aux")
        a(f"s_mul_i32 s{sM0}, s{sJ}, 52"); a(f"s_lshr_b32 s{sM0}, s{sM0}, 8")
        a(f"s_mul_i32 s{sJB}, s{sM0}, 5"); a(f"s_sub_u32 s{sJB}, s{sJ}, s{sJB}")
        a(f"s_and_b32 s{sCG}, s2, 1"); a(f"s_mul_i32 s{sCG}, s{sCG}, 5"); a(f"s_add_u32 s{sCG}, s{sCG}, s{sM0}")
        a(f"s_lshr_b32 s{sTB}, s{sX}, 1"); a(f"s_mul_i32 s{sTB}, s{sTB}, 5"); a(f"s_add_u32 s{sTB}, s{sTB}, s{sJB}")
        a(f"s_lshr_b32 s{sI0}, s{sX}, 2"); a(f"s_lshl_b32 s{sI0}, s{sI0}, 9")
        a(f"s_mul_i32 s{sCnt}, s{sJB}, 104"); a(f"s_add_u32 s{sI0}, s{sI0}, s{sCnt}"); a(f"s_sub_u32 s{sI0}, s{sI0}, 8")
        a(f"s_cmp_lt_u32 s{sW}, 4")
        a("s_cbranch_scc1 L_cwave")

    def ptrs(g):
        a = g.a
        a("s_waitcnt lgkmcnt(0)")
        a(f"s_mov_b64 {S(rX,2)}, s[4:5]"); a(f"s_mov_b64 {S(rW,2)}, s[6:7]")
        if g.stamps: a("s_mov_b32 s3, s100")
    def ptrs2(g):
        a = g.a
        a(f"s_mov_b64 {S(rWO,2)}, s[8:9]"); a(f"s_mov_b64 {S(rWS,2)}, s[26:27]")
        a(f"s_mov_b64 {S(rDBG,2)}, s[24:25]"); a(f"s_mov_b64 {S(rOUT,2)}, s[22:23]")

    def lwave(g):
        a = g.a
        vX, vW, vWO = 240, 244, 245
        sLW, sXo, sWo, sMb, sTmp = 64, 65, 66, 67, 68
        a(f"s_sub_u32 s{sLW}, s{sW}, 4")
        a("v_lshrrev_b32 v1, 3, v0")
        a("v_and_b32 v2, 7, v0")
        a("v_lshrrev_b32 v3, 1, v1")
        a(f"s_and_b32 s{sTmp}, s{sLW}, 1"); a(f"s_lshl_b32 s{sTmp}, s{sTmp}, 2")
        a(f"v_or_b32 v4, s{sTmp}, v3"); a("v_xor_b32 v4, v4, v2")
        a(f"s_lshl_b32 s{sTmp}, s{sLW}, 3"); a(f"s_add_u32 s{sTmp}, s{sTmp}, s{sI0}")
        a(f"s_mul_i32 s{sTmp}, s{sTmp}, 2560"); a(f"s_mul_i32 s{sXo}, s{sP}, 1280"); a(f"s_add_u32 s{sTmp}, s{sTmp}, s{sXo}")
        a("v_mul_u32_u24 v5, 2560, v1")
        a(f"v_lshl_add_u32 v5, v4, 4, v5")
        a(f"v_add_u32 v{vX}, s{sTmp}, v5")
        for m in range(1, 4): a(f"v_add_u32 v{vX+m}, {32*2560*m}, v{vX}")
        a("v_lshlrev_b32 v3, 1, v3"); a("v_xor_b32 v4, v3, v2")
        a("v_lshlrev_b32 v4, 4, v4")
        a(f"s_lshl_b32 s{sTmp}, s{sCG}, 7")
        a(f"v_add_u32 v4, s{sTmp}, v4")
        a("v_and_b32 v5, 4, v1"); a("v_add_u32 v5, v5, v1")
        a(f"s_and_b32 s{sTmp}, s{sLW}, 1"); a(f"s_lshl_b32 s{sTmp}, s{sTmp}, 4")
        a(f"s_and_b32 s{sXo}, s{sLW}, 2"); a(f"s_lshl_b32 s{sXo}, s{sXo}, 1"); a(f"s_add_u32 s{sTmp}, s{sTmp}, s{sXo}")
        a(f"v_add_u32 v5, s{sTmp}, v5")
        a("v_mul_u32_u24 v5, 3840, v5")
        a(f"v_add_u32 v{vW}, v5, v4")
        a(f"s_lshl_b32 s{sTmp}, s{sLW}, 3")
        a(f"v_add_u32 v5, s{sTmp}, v1")
        a("v_mul_u32_u24 v5, 1280, v5")
        a(f"v_add_u32 v{vWO}, v5, v4")
        a(f"s_lshl_b32 s{sMb}, s{sLW}, 10")
        a(f"s_mov_b32 s{sXo}, 0"); a(f"s_mov_b32 s{sWo}, 0")
        g.ptrs()
        order = [('x',0),('w',0),('w',1),('x',1),('w',2),('w',3),('x',2),('w',4),('w',5),('x',3)]
        def issue(j):
            kind, m = order[j]
            if kind == 'x':
                skip = None
                if m == 3:
                    skip = g.lab("skipx")
                    a(f"s_cmp_ge_u32 s{sLW}, 2"); a(f"s_cbranch_scc1 {skip}")
                a(f"s_add_u32 m0, s{sMb}, {m*4096}")
                a(f"buffer_load_dwordx4 v{vX+m}, {R(rX)}, s{sXo} offen lds")
                if skip: a.lab(skip)
            else:
                ks, sec = divmod(m, 3)
                a(f"s_add_u32 m0, s{sMb}, {WOFF + m*4096}")
                a(f"s_add_u32 s{sTmp}, s{sWo}, {ks*122880 + sec*1280}")
                a(f"buffer_load_dwordx4 v{vW}, {R(rW)}, s{sTmp} offen lds")
        def advance():
            a(f"s_add_u32 s{sXo}, s{sXo}, 128"); a(f"s_add_u32 s{sWo}, s{sWo}, 245760")
            a(f"s_cmp_lt_u32 s{sMb}, 4096")
            a(f"s_cselect_b32 s{sTmp}, {3*SLOT}, 0"); a(f"s_sub_u32 s{sTmp}, s{sTmp}, {SLOT}")
            a(f"s_add_u32 s{sMb}, s{sMb}, s{sTmp}")
        look = g.look
        a(f"s_mov_b32 s{sCnt}, 0")
        a.lab("L_ll")
        for j in range(look): issue(j)
        a(f"s_cmp_eq_u32 s{sCnt}, 0"); a("s_cbranch_scc1 L_ll_nobar")
        a(f"s_waitcnt vmcnt({look})")
        a("s_barrier")
        a.lab("L_ll_nobar")
        for j in range(look, 10): issue(j)
        advance()
        a(f"s_add_u32 s{sCnt}, s{sCnt}, 1"); a(f"s_cmp_lt_u32 s{sCnt}, 10"); a("s_cbranch_scc1 L_ll")
        g.ptrs2()
        g.stamp(1)
        a(f"s_and_b32 s{sTmp}, s{sTB}, 0xfc"); a(f"s_add_u32 s{sTmp}, s{sTmp}, {56*4}")
        a(f"v_mov_b32 v6, s{sTmp}")
        a(f"buffer_load_dword v7, v6, {R(rDBG)}, 0 offen sc1")
        a(f"s_lshl_b32 s{sMb}, s{sLW}, 10"); a(f"s_add_u32 s{sMb}, s{sMb}, {L_WO}")
        a(f"s_mov_b32 s{sWo}, 0")
        def wo(n):
            lp = g.lab("wo")
            a(f"s_mov_b32 s{sCnt}, 0")
            a.lab(lp)
            a(f"s_mov_b32 m0, s{sMb}")
            a(f"s_add_u32 s{sMb}, s{sMb}, 4096")
            a(f"buffer_load_dwordx4 v{vWO}, {R(rWO)}, s{sWo} offen lds")
            a(f"s_add_u32 s{sWo}, s{sWo}, 40960")
            a(f"s_add_u32 s{sCnt}, s{sCnt}, 1"); a(f"s_cmp_lt_u32 s{sCnt}, {n}"); a(f"s_cbranch_scc1 {lp}")
        n1 = g.opt.get("wo1", 6)
        wo(n1)
        a(f"s_waitcnt vmcnt({n1+1})")
        a("s_barrier")
        wo(20 - n1)
        g.stamp(2)
        a(f"s_and_b32 s{sXo}, s{sTB}, 3"); a(f"s_lshl_b32 s{sXo}, s{sXo}, 3")
        a(f"s_mov_b32 s{sCnt}, 0")
        a("s_waitcnt vmcnt(20)")
        a.lab("L_clr")
        a(f"v_readfirstlane_b32 s{sTmp}, v7")
        a(f"s_lshr_b32 s{sTmp}, s{sTmp}, s{sXo}"); a(f"s_and_b32 s{sTmp}, s{sTmp}, 255")
        a(f"s_cmp_ge_u32 s{sTmp}, 10"); a("s_cbranch_scc1 L_clr_ok")
        a(f"buffer_load_dword v7, v6, {R(rDBG)}, 0 offen sc1")
        a(f"s_add_u32 s{sCnt}, s{sCnt}, 1"); a(f"s_cmp_lt_u32 s{sCnt}, {SPIN}")
        a("s_waitcnt vmcnt(0)")
        a("s_cbranch_scc1 L_clr")
        a.lab("L_clr_ok")
        a("s_branch L_alpha")

    AQ, AK, AV = 4, 32, 60
    XA = (88, 128); WB = (116, 156)
    QX, QY = 168, 196
    XR = 224
    BI, BI0 = 240, 244
    vXA0, vXA1, vWB, vXR0, vXR1 = 248, 249, 250, 251, 252
    mXlo, mXhi, mYlo, mYhi, mX, mY, mLO, mHI = 64, 66, 68, 70, 72, 74, 76, 78
    sXg, sYp, sXd, sYd, sPX, sPY = 80, 81, 82, 83, 84, 85

    def cwave(g):
        a = g.a
        a.lab("L_cwave")
        sM, sAL, sAR, sU = 64, 65, 66, 67
        a("v_and_b32 v1, 15, v0")
        a("v_lshrrev_b32 v2, 4, v0")
        a(f"s_add_u32 s{sM}, s{sW}, 5"); a(f"s_sub_u32 s{sM}, s{sM}, s{sM0}")
        a(f"s_cmp_ge_u32 s{sM}, 5"); a(f"s_cselect_b32 s{sT}, 5, 0"); a(f"s_sub_u32 s{sM}, s{sM}, s{sT}")
        a(f"s_cmp_gt_u32 s{sW}, s{sM0}"); a(f"s_subb_u32 s{sAL}, s{sW}, 0")
        a(f"s_cmp_lt_u32 s{sW}, s{sM0}"); a(f"s_addc_u32 s{sAR}, s{sW}, 0")
        a(f"s_add_u32 s{sU}, s{sAL}, 1"); a(f"s_and_b32 s{sU}, s{sU}, 2")
        a(f"s_cmp_eq_u32 s{sM}, 4"); a(f"s_cselect_b32 s{sU}, 0, s{sU}")
        a(f"s_cmp_eq_u32 s{sM}, 0"); a(f"s_cselect_b32 s{sU}, 1, s{sU}")
        a(f"s_and_b32 s{g.sYp}, s{sM}, 3")
        a(f"s_cmp_eq_u32 s{sU}, 0")
        a(f"s_cselect_b32 s{g.sPX}, s{sAL}, s{sAR}")
        a(f"s_cselect_b32 s{g.sPY}, s{sAR}, s{sAL}")
        a(f"s_cselect_b32 s{g.sXd}, 7168, 0")
        a(f"s_cselect_b32 s{g.sYd}, 0, 7168")
        a(f"s_min_u32 s{g.sPY}, s{g.sPY}, 3")
        a(f"s_add_u32 s{g.sXg}, s{g.sPX}, 1"); a(f"s_and_b32 s{g.sXg}, s{g.sXg}, 2")
        a(f"s_mul_i32 s{sT}, s{g.sPY}, 14336"); a(f"s_add_u32 s{g.sYd}, s{g.sYd}, s{sT}"); a(f"s_add_u32 s{g.sYd}, s{g.sYd}, {L_S-14336}")
        a(f"s_mul_i32 s{sT}, s{g.sPX}, 14336"); a(f"s_add_u32 s{g.sXd}, s{g.sXd}, s{sT}")
        g.head0(sCnt)
        a(f"s_cmp_eq_u32 s{g.sXg}, 0"); a(f"s_cselect_b32 s{sT}, s{sCnt}, {L_S-14336}")
        a(f"s_add_u32 s{g.sXd}, s{g.sXd}, s{sT}")
        a(f"s_mul_i32 s{g.sPX}, s{g.sPX}, 3584"); a(f"s_mul_i32 s{g.sPY}, s{g.sPY}, 3584")
        a(f"v_cmp_gt_u32 vcc, s{sM}, v2")
        a(f"s_cmp_eq_u32 s{sU}, 0")
        a(f"s_cselect_b64 {S(g.mLO,2)}, 0, -1")
        a(f"s_xor_b64 {S(g.mX,2)}, vcc, {S(g.mLO,2)}"); a(f"s_not_b64 {S(g.mY,2)}, {S(g.mX,2)}")
        a(f"s_mov_b32 s{g.mLO}, 0x00ff00ff"); a(f"s_mov_b32 s{g.mLO+1}, 0x00ff00ff"); a(f"s_not_b64 {S(g.mHI,2)}, {S(g.mLO,2)}")
        a(f"s_and_b64 {S(g.mXlo,2)}, {S(g.mX,2)}, {S(g.mLO,2)}"); a(f"s_and_b64 {S(g.mXhi,2)}, {S(g.mX,2)}, {S(g.mHI,2)}")
        a(f"s_and_b64 {S(g.mYlo,2)}, {S(g.mY,2)}, {S(g.mLO,2)}"); a(f"s_and_b64 {S(g.mYhi,2)}, {S(g.mY,2)}, {S(g.mHI,2)}")
        for k in range(4): a(f"v_mov_b32 v{4+k}, {POISON}")
        a("v_lshlrev_b32 v3, 4, v0")
        a(f"s_mul_i32 s{sT}, s{sTB}, 10"); a(f"s_add_u32 s{sT}, s{sT}, s{sCG}"); a(f"s_lshl_b32 s{sT}, s{sT}, 2"); a(f"s_add_u32 s{sT}, s{sT}, s{sW}")
        a(f"s_mul_i32 s{sJ}, s{sT}, 3584")
        g.ptrs(); g.ptrs2()
        if g.opt.get("nopoison"): a("s_branch L_noclrS")
        for off in (0, 1024, 2048, 2560):
            a(f"buffer_store_dwordx4 v[4:7], v3, {R(rWS)}, s{sJ} offen offset:{off} sc1")
        a(f"s_cmp_eq_u32 s{g.sXg}, 0"); a("s_cbranch_scc0 L_noclrS")
        a(f"s_add_u32 s{sT}, s{g.sXd}, 4096")
        for t in range(7):
            a(f"buffer_store_dwordx4 v[4:7], v3, {R(rWS)}, s{g.sXd if t < 4 else sT} offen offset:{(t%4)*1024} sc1")
        a.lab("L_noclrS")
        a("v_lshrrev_b32 v8, 1, v1"); a("v_xor_b32 v9, v8, v2"); a("v_lshlrev_b32 v9, 4, v9")
        a(f"v_lshl_add_u32 v{g.vXA0}, v1, 7, v9"); a(f"v_xor_b32 v{g.vXA1}, 64, v{g.vXA0}")
        g.tr_addr(g.vWB, f"s{sW}", WOFF)
        a(f"s_and_b32 s{sT}, s{sW}, 1"); a(f"s_lshl_b32 s{sT}, s{sT}, 2")
        a("v_lshrrev_b32 v9, 1, v2"); a(f"v_or_b32 v9, s{sT}, v9"); a("v_xor_b32 v9, v9, v8"); a("v_lshlrev_b32 v9, 4, v9")
        a("v_and_b32 v10, 1, v2"); a("v_lshl_add_u32 v9, v10, 3, v9"); a("v_lshl_add_u32 v9, v1, 7, v9")
        a(f"s_lshr_b32 s{sT}, s{sW}, 1"); a(f"s_mul_i32 s{sT}, s{sT}, {3*2048}")
        a(f"s_mul_i32 s{sCnt}, s{sCG}, 86"); a(f"s_lshr_b32 s{sCnt}, s{sCnt}, 8"); a(f"s_mul_i32 s{sCnt}, s{sCnt}, 3"); a(f"s_sub_u32 s{sCnt}, s{sCG}, s{sCnt}")
        a(f"s_sub_u32 s{sSlot}, 3, s{sCnt}"); a(f"s_cmp_eq_u32 s{sCnt}, 0"); a(f"s_cselect_b32 s{sSlot}, 0, s{sSlot}"); a(f"s_mul_i32 s{sSlot}, s{sSlot}, {SLOT}")
        a(f"s_add_u32 s{sT}, s{sT}, s{sSlot}")
        a(f"v_add_u32 v{g.vXR0}, s{sT}, v9"); a(f"v_xor_b32 v{g.vXR1}, 32, v{g.vXR0}")
        a("v_lshlrev_b32 v9, 2, v2"); a("v_sub_u32 v9, v1, v9")
        a(f"v_mov_b32 v11, {f32(-1e30)}")
        a(f"s_cmp_lt_i32 s{sI0}, 0"); a(f"s_cselect_b32 s{sT}, 32, 0")
        for r in range(4):
            a(f"v_subrev_u32 v10, {r}, v9"); a("v_and_b32 v10, 8, v10")
            a("v_cmp_eq_u32 vcc, 0, v10")
            a(f"v_cndmask_b32 v{g.BI+r}, v11, v10, vcc")
        a(f"v_cmp_gt_u32 vcc, s{sT}, v0")
        for r in range(4): a(f"v_cndmask_b32 v{g.BI0+r}, v{g.BI+r}, v11, vcc")
        for r in range(4, 88): a(f"v_mov_b32 v{r}, 0")
        for r in range(g.QX, g.QX+56): a(f"v_mov_b32 v{r}, 0")

        def reads(buf, ks):
            out = []
            for sec in range(3):
                for ab in range(2):
                    out.append(f"ds_read_b64_tr_b16 {V(g.WB[buf]+4*sec+2*ab,2)}, v{g.vWB} offset:{(ks*3+sec)*4096+ab*2048}")
            for t in range(7):
                out.append(f"ds_read_b128 {V(g.XA[buf]+4*t,4)}, v{g.vXA0 if ks == 0 else g.vXA1} offset:{t*2048}")
            return out
        def mf(buf, t, sec):
            acc = V((g.AQ, g.AK, g.AV)[sec]+4*t, 4); x = V(g.XA[buf]+4*t, 4); w = V(g.WB[buf]+4*sec, 4)
            return f"v_mfma_f32_16x16x32_bf16 {acc}, {x if sec == 2 else w}, {w if sec == 2 else x}, {acc}"
        def phase(buf, rd):
            ms = [mf(buf, t, sec) for t in range(7) for sec in range(3)]
            rd = list(rd)
            if g.opt.get("noreads"): rd = []
            for m in ms:
                if not g.opt.get("nomfma"): a(m)
                if rd: a(rd.pop(0))
        def xres():
            sk = g.lab("noxr")
            a(f"s_cmp_eq_u32 s{sCnt}, s{sCG}"); a(f"s_cbranch_scc0 {sk}")
            for t in range(4):
                a(f"ds_read_b64 {V(g.XR+4*t,2)}, v{g.vXR0} offset:{t*2048}")
                a(f"ds_read_b64 {V(g.XR+4*t+2,2)}, v{g.vXR1} offset:{t*2048}")
            a.lab(sk)
        def nextslot():
            a(f"s_cmp_eq_u32 s{sSlot}, 0")
            a(f"s_cselect_b32 s{sT}, {3*SLOT}, 0"); a(f"s_sub_u32 s{sT}, s{sT}, {SLOT}")
            a(f"s_add_u32 s{sSlot}, s{sSlot}, s{sT}")
            for r in (g.vXA0, g.vXA1, g.vWB): a(f"v_add_u32 v{r}, s{sT}, v{r}")
        a(f"s_mov_b32 s{sSlot}, 0"); a(f"s_mov_b32 s{sCnt}, 0")
        g.stamp(1)
        a("s_barrier")
        g.stamp(2)
        for r in reads(0, 0): a(r)
        a("s_branch L_cl_mid")
        a.lab("L_cl")
        a("s_barrier")
        if g.stamps: a("s_memtime s[98:99]")
        phase(1, reads(0, 0))
        a(f"s_lshl_b32 s{sT}, s{sW}, 4"); a(f"s_or_b32 s{sT}, s{sT}, s{sCnt}")
        a(f"s_cmp_eq_u32 s{sT}, 1"); a("s_cbranch_scc0 L_cl_mid")
        a(f"s_and_b32 s{sT}, s{sTB}, 3"); a(f"s_lshl_b32 s{sT}, s{sT}, 3"); a(f"s_lshl_b32 s{sT}, 1, s{sT}")
        a(f"v_mov_b32 v1, s{sT}")
        a(f"s_and_b32 s{sT}, s{sTB}, 0xfc")
        a(f"v_mov_b32 v2, s{sT}")
        a("s_mov_b64 exec, 1")
        a(f"buffer_atomic_add v1, v2, {R(rDBG)}, 0 offen offset:{56*4} sc1")
        a("s_mov_b64 exec, -1")
        a.lab("L_cl_mid")
        a("s_waitcnt lgkmcnt(0)")
        phase(0, reads(1, 1))
        xres()
        nextslot()
        a(f"s_cmp_eq_u32 s{sCnt}, 0"); a("s_cbranch_scc0 L_cl_nv")
        a("s_waitcnt vmcnt(0)")
        a.lab("L_cl_nv")
        if g.stamps:
            a(f"s_add_u32 m0, s{sCnt}, 32"); a("v_writelane_b32 v253, s98, m0")
        a(f"s_add_u32 s{sCnt}, s{sCnt}, 1"); a(f"s_cmp_lt_u32 s{sCnt}, 10")
        a("s_waitcnt lgkmcnt(0)")
        a("s_cbranch_scc1 L_cl")
        g.stamp(3)
        KK = g.XA[0]
        for t in range(7): a(mf(1, t, 1))
        ops = []
        for t in range(7):
            for h in range(2): ops.append(f"v_cvt_pk_bf16_f32 v{KK+4*t+2+h}, v{g.AK+4*t+2*h}, v{g.AK+4*t+2*h+1}")
        for t in range(7):
            a(mf(1, t, 0))
            if t >= 2: a(ops.pop(0)); a(ops.pop(0))
        a(f"s_mov_b64 vcc, {S(g.mLO,2)}")
        for t in range(7):
            tp = max(t-1, 0)
            for h in range(2): ops.append(f"v_cndmask_b32 v{KK+4*t+h}, v{KK+4*tp+2+h}, v{KK+4*t+2+h}, vcc")
        def qcvt(dst, half):
            return [f"v_cvt_pk_bf16_f32 v{dst+4*t+2*half+h}, v{g.AQ+4*t+2*h}, v{g.AQ+4*t+2*h+1}" for t in range(7) for h in range(2)]
        ops += [f"s_mov_b64 exec, {S(g.mXlo,2)}"] + qcvt(g.QX, 0) + [f"s_mov_b64 exec, {S(g.mXhi,2)}"]
        for t in range(7):
            a(mf(1, t, 2))
            for _ in range(3):
                if ops: a(ops.pop(0))
        for o in ops: a(o)
        hi = qcvt(g.QX, 1)
        def smf(dst, q, t): return f"v_mfma_f32_16x16x32_bf16 {V(dst+4*t,4)}, {V(KK+4*t,4)}, {V(q+4*t,4)}, {V(g.BI0 if t == 0 else g.BI,4)}"
        a(hi.pop(0)); a(hi.pop(0))
        for t in range(7):
            if hi: a(hi.pop(0)); a(hi.pop(0))
            a(smf(g.AK, g.QX, t))
        a("s_mov_b64 exec, -1")
        a("v_lshlrev_b32 v3, 4, v0")
        a(f"s_cmp_eq_u32 s{g.sXg}, 0"); a("s_cbranch_scc0 L_xlds")
        a(f"s_add_u32 s{sT}, s{g.sXd}, 4096")
        for t in range(7):
            a(f"buffer_store_dwordx4 {V(g.AK+4*t,4)}, v3, {R(rWS)}, s{g.sXd if t < 4 else sT} offen offset:{(t%4)*1024} sc1")
        a("s_branch L_xdone")
        a.lab("L_xlds")
        a(f"v_add_u32 v2, s{g.sXd}, v3")
        for t in range(7):
            if t == 5: a("s_nop 1")
            a(f"ds_write_b128 v2, {V(g.AK+4*t,4)} offset:{t*1024}")
        a.lab("L_xdone")
        g.stamp(4)
        a(f"s_cmp_eq_u32 s{g.sYp}, 0"); a("s_cbranch_scc1 L_ydone")
        a(f"v_add_u32 v2, s{g.sYd}, v3")
        a(f"s_mov_b64 exec, {S(g.mYlo,2)}")
        for o in qcvt(g.QY, 0): a(o)
        a(f"s_mov_b64 exec, {S(g.mYhi,2)}")
        hi = qcvt(g.QY, 1)
        a(hi.pop(0)); a(hi.pop(0))
        for t in range(7):
            if hi: a(hi.pop(0)); a(hi.pop(0))
            a(smf(g.AQ, g.QY, t))
        a("s_mov_b64 exec, -1")
        for t in range(7): a(f"ds_write_b128 v2, {V(g.AQ+4*t,4)} offset:{t*1024}")
        a.lab("L_ydone")
        a("s_waitcnt lgkmcnt(0)")

    def head0(g, dst):
        a = g.a
        a(f"s_and_b32 s{dst}, s2, 1"); a(f"s_lshl_b32 s{dst}, s{dst}, 4")
        a(f"s_mul_i32 s{sT}, s{sM0}, 3"); a(f"s_add_u32 s{dst}, s{dst}, s{sT}")
        a(f"s_lshl_b32 s{sT}, s{sTB}, 5"); a(f"s_add_u32 s{dst}, s{dst}, s{sT}")
        a(f"s_mul_i32 s{dst}, s{dst}, 14336"); a(f"s_add_u32 s{dst}, s{dst}, {WS_S}")

    def tr_addr(g, dst, win, base, t0=9, t1=10):
        a = g.a
        a(f"v_bfe_u32 v{t0}, v0, 3, 2"); a(f"v_xor_b32 v{t0}, {win}, v{t0}"); a(f"v_lshlrev_b32 v{t0}, 5, v{t0}")
        a(f"v_and_b32 v{t1}, 3, v0"); a(f"v_lshl_add_u32 v{t0}, v{t1}, 3, v{t0}")
        a(f"v_lshrrev_b32 v{t1}, 2, v0"); a(f"v_lshl_add_u32 v{t0}, v{t1}, 7, v{t0}")
        a(f"v_add_u32 v{dst}, {base}, v{t0}")

    def softmax2(g, A, B, vP0, vP1):
        a = g.a
        c = f32(20**-0.5 * math.log2(math.e))
        t0, t1, t2 = 20, 21, 22
        for k in range(8): a(f"v_add_f32 v{A+k}, v{A+k}, v{B+k}")
        for u, t in ((0, t0), (1, t1)):
            a(f"v_max3_f32 v{t}, v{A+4*u}, v{A+4*u+1}, v{A+4*u+2}")
        for u, t in ((0, t0), (1, t1)):
            a(f"v_max_f32 v{t}, v{t}, v{A+4*u+3}")
        def red(op):
            a(f"v_permlane32_swap_b32 v{t0}, v{t1}")
            a(f"{op} v{t0}, v{t0}, v{t1}")
            a(f"v_mov_b32 v{t1}, v{t0}")
            a(f"v_permlane16_swap_b32 v{t0}, v{t1}")
            a(f"{op} v{t0}, v{t0}, v{t1}")
        red("v_max_f32")
        a(f"v_mul_f32 v{t1}, s{sSlot}, v{t0}")
        a(f"v_mul_f32 v{t0}, s{sSlot}, v{t0}")
        a(f"v_permlane32_swap_b32 v{t0}, v{t1}")
        for k in range(8): a(f"v_fma_f32 v{A+k}, v{A+k}, s{sSlot}, -v{(t0,t1)[k//4]}")
        for k in range(8): a(f"v_exp_f32 v{A+k}, v{A+k}")
        a(f"v_add_f32 v{t0}, v{A}, v{A+1}"); a(f"v_add_f32 v{t2}, v{A+2}, v{A+3}")
        a(f"v_add_f32 v{t1}, v{A+4}, v{A+5}"); a(f"v_add_f32 v{t0}, v{t0}, v{t2}")
        a(f"v_add_f32 v{t2}, v{A+6}, v{A+7}"); a(f"v_add_f32 v{t1}, v{t1}, v{t2}")
        red("v_add_f32")
        a(f"v_rcp_f32 v{t1}, v{t0}")
        a(f"v_rcp_f32 v{t0}, v{t0}")
        a(f"v_permlane32_swap_b32 v{t0}, v{t1}")
        for k in range(8): a(f"v_mul_f32 v{A+k}, v{A+k}, v{(t0,t1)[k//4]}")
        for k in range(4): a(f"v_cvt_pk_bf16_f32 v{B+k}, v{A+2*k}, v{A+2*k+1}")
        a(f"ds_write_b64 v{vP0}, {V(B,2)}")
        a(f"ds_write_b64 v{vP1}, {V(B+2,2)}")

    def rounds(g):
        a = g.a
        a.lab("L_alpha")
        s0, s1, s2_, s3_, sK, sD = 20, 21, 22, 23, 24, 25
        a(f"s_and_b32 s{sK}, s{sW}, 3")
        a(f"s_cmp_lt_u32 s{sK}, 3"); a(f"s_cselect_b32 s{sD}, 512, 0")
        a(f"s_lshr_b32 s{sX}, s{sW}, 2")
        g.head0(s0)
        a(f"s_mul_i32 s{sT}, s{sX}, {3*14336}"); a(f"s_add_u32 s{s0}, s{s0}, s{sT}")
        a(f"s_lshl_b32 s{sT}, s{sK}, 11"); a(f"s_add_u32 s{s0}, s{s0}, s{sT}")
        a(f"s_lshl1_add_u32 s{s1}, s{sD}, s{s0}")
        a(f"s_add_u32 s{s2_}, s{s0}, 7168"); a(f"s_add_u32 s{s3_}, s{s1}, 7168")
        a(f"s_mul_i32 s{sCnt}, s{sX}, 14336"); a(f"s_add_u32 s{sT}, s{sT}, s{sCnt}"); a(f"s_add_u32 s{sT}, s{sT}, {L_S}")
        a("v_lshlrev_b32 v3, 4, v0")
        a(f"v_add_u32 v104, s{sT}, v3")
        a(f"v_lshl_add_u32 v105, s{sD}, 1, v104")
        a(f"s_lshl_b32 s{sT}, s{sK}, 10"); a(f"s_mul_i32 s{sCnt}, s{sX}, 3584"); a(f"s_add_u32 s{sT}, s{sT}, s{sCnt}"); a(f"s_add_u32 s{sT}, s{sT}, {L_P+3584}")
        a(f"v_lshl_add_u32 v106, v0, 3, s{sT}")
        a(f"v_add_u32 v107, s{sD}, v106")
        a(f"s_mul_i32 s{sT}, s{sX}, 7168"); a(f"s_sub_u32 s{sT}, s{sT}, 3584")
        a(f"v_add_u32 v108, s{sT}, v106"); a(f"v_add_u32 v109, s{sT}, v107")
        a(f"s_mov_b32 s{sSlot}, {f32(20**-0.5 * math.log2(math.e))}")
        g.stamp(5)
        a("s_barrier")
        g.stamp(6)
        a("ds_read_b128 v[4:7], v104"); a("ds_read_b128 v[8:11], v105")
        a("ds_read_b128 v[12:15], v104 offset:7168"); a("ds_read_b128 v[16:19], v105 offset:7168")
        a("s_waitcnt lgkmcnt(0)")
        g.softmax2(4, 12, 106, 107)
        def ld():
            for k, so in enumerate((s0, s1, s2_, s3_)):
                a(f"buffer_load_dwordx4 {V(88+4*k,4)}, v3, {R(rWS)}, s{so} offen sc1")
        ld()
        a(f"s_cmp_ge_u32 s{sW}, 4"); a("s_cbranch_scc1 L_novv")
        VV = g.XA[1]
        for t in range(7):
            for h in range(2): a(f"v_cvt_pk_bf16_f32 v{VV+4*t+2+h}, v{g.AV+4*t+2*h}, v{g.AV+4*t+2*h+1}")
        a("s_mov_b64 vcc, 0xffffffff")
        a("s_mov_b32 vcc_hi, 0")
        for t in range(7):
            tp = max(t-1, 0)
            for h in range(2): a(f"v_cndmask_b32 v{VV+4*t+h}, v{VV+4*tp+2+h}, v{VV+4*t+2+h}, vcc")
        a.lab("L_novv")
        g.stamp(7)
        a(f"s_mov_b32 s{sCnt}, 0")
        a.lab("L_r2poll")
        a("s_waitcnt vmcnt(0)")
        g.poison_chk(88, 16, 23)
        a("s_cbranch_vccz L_r2ok")
        a(f"s_add_u32 s{sCnt}, s{sCnt}, 1"); a(f"s_cmp_lt_u32 s{sCnt}, {SPIN}"); a("s_cbranch_scc0 L_r2ok")
        ld()
        a("s_branch L_r2poll")
        a.lab("L_r2ok")
        g.stamp(8)
        g.softmax2(88, 96, 108, 109)
        a("s_waitcnt lgkmcnt(0)")
        a("s_barrier")
        g.stamp(9)
        a(f"s_cmp_ge_u32 s{sW}, 4"); a("s_cbranch_scc1 L_l2")

    def poison_chk(g, base, n, t):
        a = g.a
        a(f"v_max3_u32 v{t}, v{base}, v{base+1}, v{base+2}")
        k = 3
        while k + 1 < n:
            a(f"v_max3_u32 v{t}, v{t}, v{base+k}, v{base+k+1}"); k += 2
        if k < n: a(f"v_max_u32 v{t}, v{t}, v{base+k}")
        a(f"v_cmp_eq_u32 vcc, {POISON}, v{t}")

    def cstage2(g):
        a = g.a
        VV = g.XA[1]
        a(f"v_lshl_add_u32 v1, v0, 3, s{g.sPX}"); a(f"v_lshl_add_u32 v2, v0, 3, s{g.sPY}")
        for half, m in ((0, g.mLO), (1, g.mHI)):
            a(f"s_mov_b64 exec, {S(m,2)}")
            for t in range(7):
                a(f"ds_read_b64 {V(g.QX+4*t+2*half,2)}, v1 offset:{L_P+t*512}")
                a(f"ds_read_b64 {V(g.QY+4*t+2*half,2)}, v2 offset:{L_P+t*512}")
        a("s_mov_b64 exec, -1")
        a("v_bfe_u32 v110, v0, 3, 1"); a("v_lshrrev_b32 v111, 4, v0"); a("v_lshlrev_b32 v112, 1, v110"); a("v_xor_b32 v111, v111, v112")
        a("v_and_b32 v112, 7, v0"); a("v_lshlrev_b32 v112, 3, v112"); a("v_lshl_add_u32 v112, v111, 6, v112"); a("v_lshl_add_u32 v110, v110, 8, v112")
        for t in range(7):
            a(f"s_waitcnt lgkmcnt({min(15, 12-2*t)})")
            a(f"v_mfma_f32_16x16x32_bf16 {V(4+4*t,4)}, {V(VV+4*t,4)}, {V(g.QX+4*t,4)}, 0")
            a(f"v_mfma_f32_16x16x32_bf16 {V(32+4*t,4)}, {V(VV+4*t,4)}, {V(g.QY+4*t,4)}, 0")
        OP = 60
        for t in range(7):
            for h in range(2): a(f"v_cvt_pk_bf16_f32 v{OP+2*t+h}, v{4+4*t+2*h}, v{4+4*t+2*h+1}")
        a(f"s_cmp_eq_u32 s{g.sYp}, 0"); a("s_cbranch_scc1 L_noy2")
        a(f"s_mov_b64 exec, {S(g.mY,2)}")
        for t in range(7):
            for h in range(2): a(f"v_cvt_pk_bf16_f32 v{OP+2*t+h}, v{32+4*t+2*h}, v{32+4*t+2*h+1}")
        a("s_mov_b64 exec, -1")
        a.lab("L_noy2")
        for t in range(7):
            a(f"buffer_store_dwordx2 {V(OP+2*t,2)}, v110, {R(rWS)}, s{sJ} offen offset:{t*512} sc1")
        g.stamp(10)
        AC, A2, B2, BB, GG = 4, (36, 52), (68, 76), 88, 120
        vA, vB0, vB1, vRow = 124, 125, 126, 127
        sIdx, sKey, sRH, sCk = 64, 65, 66, 67
        a("v_lshlrev_b32 v1, 2, v0")
        a(f"buffer_load_dword v2, v1, {R(rDBG)}, 0 offen sc1")
        a(f"s_lshr_b32 s{sRH}, s{sW}, 1"); a(f"s_mul_i32 s{sRH}, s{sRH}, 48")
        a(f"s_lshl_b32 s{sT}, s{sRH}, 5"); a(f"s_add_u32 s{sT}, s{sT}, {L_OR}")
        a(f"v_add_u32 v{vA}, s{sT}, v110")
        a(f"s_mul_i32 s{sCk}, s{sM0}, {g.rot}")
        a(f"s_and_b32 s{sT}, s{sW}, 1"); a(f"s_lshl_b32 s{sT}, s{sT}, 1")
        g.tr_addr(vB0, f"s{sT}", L_WO, 128, 129)
        a(f"s_lshl_b32 s{sT}, s{sCk}, 13")
        a(f"v_add_u32 v{vB0}, s{sT}, v{vB0}"); a(f"v_xor_b32 v{vB1}, 32, v{vB0}")
        for r in range(32): a(f"v_mov_b32 v{AC+r}, 0")
        a("v_and_b32 v3, 15, v0")
        a(f"s_add_u32 s{sT}, s{sI0}, s{sRH}")
        a(f"v_add_u32 v{vRow}, s{sT}, v3")
        a(f"s_mov_b32 s{sCnt}, 0")
        a.lab("L_slotpoll")
        a("s_waitcnt vmcnt(0)")
        a("v_cmp_eq_u32 vcc, 0, v2")
        a("s_and_b32 vcc_hi, vcc_hi, 0x00ffffff")
        a("s_cmp_eq_u64 vcc, 0"); a("s_cbranch_scc1 L_slotok")
        a(f"s_add_u32 s{sCnt}, s{sCnt}, 1"); a(f"s_cmp_lt_u32 s{sCnt}, {SPIN}"); a("s_cbranch_scc0 L_slotok")
        a(f"buffer_load_dword v2, v1, {R(rDBG)}, 0 offen sc1")
        a("s_branch L_slotpoll")
        a.lab("L_slotok")
        a(f"s_lshl_b32 s{sT}, s{sP}, 12"); a(f"s_add_u32 s{sT}, s{sT}, {WS_G-64}")
        a(f"v_lshl_add_u32 v128, v{vRow}, 2, 64")
        for t in range(4): a(f"buffer_load_dword v{GG+t}, v128, {R(rWS)}, s{sT} offen offset:{64*t} sc1")
        g.argmax(2, 129, sKey, sIdx)
        for t in range(4):
            for k in range(4):
                a(f"v_lshlrev_b32 v{BB+8*t+2*k}, 16, v{g.XR+4*t+k}")
                a(f"v_and_b32 v{BB+8*t+2*k+1}, 0xffff0000, v{g.XR+4*t+k}")
        a(f"s_lshr_b32 s{sT}, s{sIdx}, 1"); a(f"s_sub_u32 s{sT}, s{sT}, s{sI0}"); a(f"s_sub_u32 s{sRH}, s{sT}, s{sRH}")
        a(f"s_and_b32 s{sT}, s{sIdx}, 1"); a(f"s_cmp_eq_u32 s{sT}, s{sP}"); a(f"s_cselect_b32 s{sRH}, s{sRH}, 64")
        a(f"s_cmp_lt_u32 s{sRH}, 64"); a("s_cbranch_scc0 L_noy")
        g.yfetch(BB, sRH, sKey)
        a.lab("L_noy")
        a("s_waitcnt vmcnt(0)")
        for t in range(4):
            a(f"v_sub_f32 v128, 1.0, v{GG+t}")
            for k in range(8): a(f"v_mul_f32 v{BB+8*t+k}, v128, v{BB+8*t+k}")
        def reads(buf, ks):
            out = []
            for tau in range(2):
                for ab in range(2):
                    out.append(f"ds_read_b64_tr_b16 {V(B2[buf]+4*tau+2*ab,2)}, v{(vB0,vB1)[tau]} offset:{ks*4096+ab*2048}")
            for t in range(4):
                for ab in range(2):
                    out.append(f"ds_read_b64 {V(A2[buf]+4*t+2*ab,2)}, v{vA} offset:{(2*ks+ab)*3584+t*512}")
            return out
        def mf(buf, t, tau):
            acc = V(AC+8*t+4*tau, 4)
            return f"v_mfma_f32_16x16x32_bf16 {acc}, {V(B2[buf]+4*tau,4)}, {V(A2[buf]+4*t,4)}, {acc}"
        def phase(buf, rd):
            rd = list(rd)
            for t in range(4):
                for tau in range(2):
                    a(mf(buf, t, tau))
                    for _ in range(2):
                        if rd: a(rd.pop(0))
        a(f"s_mov_b32 s{sCnt}, 0"); a(f"s_mov_b32 s{sSlot}, 14336")
        g.stamp(11)
        a("s_barrier")
        g.stamp(12)
        for r in reads(0, 0): a(r)
        a("s_branch L_c2_mid")
        a.lab("L_c2")
        a("s_barrier")
        if g.stamps: a("s_memtime s[26:27]")
        phase(1, reads(0, 0))
        a.lab("L_c2_mid")
        a("s_waitcnt lgkmcnt(0)")
        phase(0, reads(1, 1))
        a(f"v_add_u32 v{vA}, s{sSlot}, v{vA}"); a(f"s_sub_u32 s{sSlot}, 0, s{sSlot}")
        a(f"s_add_u32 s{sCk}, s{sCk}, 1"); a(f"s_cmp_eq_u32 s{sCk}, 10")
        a(f"s_cselect_b32 s{sT}, {10*8192}, 0"); a(f"s_sub_u32 s{sT}, 8192, s{sT}")
        a(f"v_add_u32 v{vB0}, s{sT}, v{vB0}"); a(f"v_add_u32 v{vB1}, s{sT}, v{vB1}")
        if g.stamps:
            a(f"s_add_u32 m0, s{sCnt}, 48"); a("v_writelane_b32 v253, s26, m0")
        a(f"s_add_u32 s{sCnt}, s{sCnt}, 1"); a(f"s_cmp_lt_u32 s{sCnt}, 10")
        a("s_waitcnt lgkmcnt(0)")
        a("s_cbranch_scc1 L_c2")
        g.stamp(13)
        phase(1, [])
        a(f"s_mul_i32 s{sT}, s{sW}, 5120"); a(f"s_add_u32 s{sT}, s{sT}, {L_EP}")
        a("v_mul_u32_u24 v128, 80, v3"); a("v_lshrrev_b32 v129, 4, v0"); a("v_lshl_add_u32 v128, v129, 3, v128"); a(f"v_add_u32 v128, s{sT}, v128")
        a("v_lshrrev_b32 v130, 2, v0"); a("v_mul_u32_u24 v129, 80, v130"); a("v_and_b32 v131, 3, v0"); a("v_lshl_add_u32 v129, v131, 4, v129"); a(f"v_add_u32 v129, s{sT}, v129")
        for t in range(4):
            for k in range(8): a(f"v_fmac_f32 v{BB+8*t+k}, v{GG+t}, v{AC+8*t+k}")
            for k in range(4): a(f"v_cvt_pk_bf16_f32 v{36+4*t+k}, v{BB+8*t+2*k}, v{BB+8*t+2*k+1}")
            for tau in range(2): a(f"ds_write_b64 v128, {V(36+4*t+2*tau,2)} offset:{t*1280+tau*32}")
            a(f"ds_read_b128 {V(52+4*t,4)}, v129 offset:{t*1280}")
        a(f"s_lshr_b32 s{sRH}, s{sW}, 1"); a(f"s_mul_i32 s{sRH}, s{sRH}, 48")
        a(f"v_add_u32 v130, s{sRH}, v130")
        a(f"v_add_u32 v132, s{sI0}, v130")
        a(f"s_movk_i32 s{sT}, 2560"); a(f"v_mul_lo_u32 v132, v132, s{sT}")
        a(f"s_mul_i32 s{sT}, s{sP}, 1280"); a(f"s_lshl_b32 s{sCnt}, s{sCG}, 7"); a(f"s_add_u32 s{sT}, s{sT}, s{sCnt}")
        a(f"s_and_b32 s{sCnt}, s{sW}, 1"); a(f"s_lshl_b32 s{sCnt}, s{sCnt}, 6"); a(f"s_add_u32 s{sT}, s{sT}, s{sCnt}")
        a("v_lshl_add_u32 v132, v131, 4, v132"); a(f"v_add_u32 v132, s{sT}, v132")
        a(f"s_cmp_eq_u32 s{sJB}, 4"); a(f"s_cselect_b32 s{sT}, 0, 8"); a(f"s_add_u32 s{sT}, s{sT}, 96")
        a("v_bfrev_b32 v134, 1")
        for t in range(4):
            a(f"v_add_u32 v133, {16*t-8}, v130")
            a(f"v_cmp_gt_u32 vcc, s{sT}, v133")
            a(f"v_add_u32 v133, {16*t*2560}, v132")
            a(f"v_cndmask_b32 v{136+t}, v134, v133, vcc")
        for t in range(4):
            a(f"s_waitcnt lgkmcnt({3*(3-t)})")
            a(f"buffer_store_dwordx4 {V(52+4*t,4)}, v{136+t}, {R(rOUT)}, 0 offen")
        g.stamp(14)
        if g.stamps:
            a("s_waitcnt vmcnt(0)"); g.stamp(15)
        g.dump_stamps(16)
        a("s_endpgm")

    def argmax(g, v, t, sKey, sIdx):
        a = g.a
        a("v_cmp_gt_u32 vcc, 56, v0")
        a(f"v_cndmask_b32 v{v}, 0, v{v}, vcc")
        for d in ("quad_perm:[1,0,3,2]", "quad_perm:[2,3,0,1]", "row_half_mirror", "row_mirror"):
            a(f"v_max_u32_dpp v{v}, v{v}, v{v} {d} row_mask:0xf bank_mask:0xf")
        a(f"v_readlane_b32 s{sKey}, v{v}, 0"); a(f"v_readlane_b32 s{sIdx}, v{v}, 16")
        a(f"s_max_u32 s{sKey}, s{sKey}, s{sIdx}")
        a(f"v_readlane_b32 s{sIdx}, v{v}, 32"); a(f"s_max_u32 s{sKey}, s{sKey}, s{sIdx}")
        a(f"v_readlane_b32 s{sIdx}, v{v}, 48"); a(f"s_max_u32 s{sKey}, s{sKey}, s{sIdx}")
        a(f"s_and_b32 s{sIdx}, s{sKey}, 0xffff"); a(f"s_sub_u32 s{sIdx}, 0xffff, s{sIdx}")
        a(f"s_and_b32 s{sIdx}, s{sIdx}, 0x7ff")

    def bf16r(g, r):
        g.a(f"v_cvt_pk_bf16_f32 v{r}, v{r}, v{r}"); g.a(f"v_and_b32 v{r}, 0xffff0000, v{r}")
    def sigmoid(g, d, s):
        a = g.a
        a(f"v_mul_f32 v{d}, {f32(-math.log2(math.e))}, v{s}")
        a(f"v_exp_f32 v{d}, v{d}")
        a(f"v_add_f32 v{d}, 1.0, v{d}")
        a(f"v_rcp_f32 v{d}, v{d}")

    def yfetch(g, BB, sD, sKey):
        a = g.a
        Y = 140
        a(f"v_mov_b32 v130, {61*4}")
        a(f"s_mov_b32 s{sCnt}, 0")
        a.lab("L_ypoll")
        a(f"buffer_load_dword v131, v130, {R(rDBG)}, 0 offen sc1")
        a("s_waitcnt vmcnt(0)")
        a(f"v_readfirstlane_b32 s{sT}, v131")
        a(f"s_cmp_ge_u32 s{sT}, 54"); a("s_cbranch_scc1 L_yok")
        a(f"s_add_u32 s{sCnt}, s{sCnt}, 1"); a(f"s_cmp_lt_u32 s{sCnt}, {SPIN}"); a("s_cbranch_scc1 L_ypoll")
        a.lab("L_yok")
        a("v_lshrrev_b32 v130, 3, v0"); a("v_mul_u32_u24 v131, 2560, v130"); a("v_and_b32 v132, 7, v0"); a("v_lshl_add_u32 v131, v132, 4, v131")
        a("v_cmp_gt_u32 vcc, 6, v130"); a("v_bfrev_b32 v132, 1"); a("v_cndmask_b32 v132, v132, v131, vcc")
        a(f"s_lshl_b32 s{sT}, s{sCG}, 8"); a(f"s_and_b32 s{sCnt}, s{sW}, 1"); a(f"s_lshl_b32 s{sCnt}, s{sCnt}, 7"); a(f"s_add_u32 s{sT}, s{sT}, s{sCnt}")
        a(f"s_add_u32 s{sT}, s{sT}, {WS_Y}")
        for e in range(7):
            a(f"buffer_load_dwordx4 {V(Y+4*e,4)}, v{131 if e < 6 else 132}, {R(rWS)}, s{sT} offen sc1")
            a(f"s_add_u32 s{sT}, s{sT}, {8*2560}")
        a(f"s_and_b32 s{sT}, s{sKey}, 0xffff0000"); a(f"s_cmp_lt_i32 s{sKey}, 0")
        a(f"s_cselect_b32 s{sCnt}, 0x80000000, 0xffff0000" if False else f"s_cselect_b32 s{sCnt}, 0, 0x7fff0000")
        a(f"s_xor_b32 s{sT}, s{sT}, s{sCnt}"); a(f"s_xor_b32 s{sT}, s{sT}, 0x80000000")
        a(f"v_mov_b32 v133, s{sT}")
        g.sigmoid(133, 133); g.bf16r(133)
        a("s_waitcnt vmcnt(0)")
        for e in range(1, 7):
            for k in range(4): a(f"v_add_f32 v{Y+k}, v{Y+k}, v{Y+4*e+k}")
        for k in range(4): a(f"v_add_f32_dpp v{Y+k}, v{Y+k}, v{Y+k} row_ror:8 row_mask:0xf bank_mask:0xf")
        for pl in ("16", "32"):
            for k in range(4): a(f"v_mov_b32 v{Y+4+k}, v{Y+k}")
            for k in range(4): a(f"v_permlane{pl}_swap_b32 v{Y+k}, v{Y+4+k}")
            for k in range(4): a(f"v_add_f32 v{Y+k}, v{Y+k}, v{Y+4+k}")
        for k in range(4):
            g.bf16r(Y+k); a(f"v_mul_f32 v{Y+k}, v{Y+k}, v133"); g.bf16r(Y+k)
        a("v_lshrrev_b32 v130, 4, v0"); a("v_lshlrev_b32 v130, 2, v130")
        for tau in range(2):
            for k in range(4): a(f"ds_bpermute_b32 v{Y+8+4*tau+k}, v130, v{Y+k} offset:{16*tau}")
        a("s_waitcnt lgkmcnt(0)")
        for t in range(4):
            a(f"v_add_u32 v130, {16*t}, v3")
            a(f"v_cmp_eq_u32 vcc, s{sD}, v130")
            a(f"v_cndmask_b32 v131, 0, 1.0, vcc")
            for k in range(8): a(f"v_fmac_f32 v{BB+8*t+k}, v131, v{Y+8+k}")

    def lstage2(g):
        a = g.a
        a.lab("L_l2")
        O = 64; sO = 64; sRet = 76
        a(f"s_mul_i32 s{sT}, s{sTB}, 40"); a(f"s_add_u32 s{sT}, s{sT}, s{sW}"); a(f"s_sub_u32 s{sT}, s{sT}, 4"); a(f"s_mul_i32 s{sT}, s{sT}, 3584")
        a(f"v_add_u32 v1, s{sT}, v3")
        a("v_cmp_gt_u32 vcc, 32, v0"); a("v_bfrev_b32 v2, 1"); a("v_cndmask_b32 v2, v2, v1, vcc")
        a(f"s_mul_i32 s{sCnt}, s{sM0}, {g.rot}")
        for k in range(10):
            a(f"s_mul_i32 s{sO+k}, s{sCnt}, {4*3584}")
            a(f"s_add_u32 s{sCnt}, s{sCnt}, 1"); a(f"s_cmp_eq_u32 s{sCnt}, 10"); a(f"s_cselect_b32 s{sCnt}, 0, s{sCnt}")
        a(f"s_sub_u32 s{sT}, s{sW}, 4"); a(f"s_mul_i32 s{sT}, s{sT}, 3584"); a(f"s_add_u32 s{sT}, s{sT}, {L_OR}")
        a(f"v_add_u32 v4, s{sT}, v3")
        def ld(k):
            for e in range(4):
                a(f"buffer_load_dwordx4 {V(O+16*k+4*e,4)}, v{1 if e < 3 else 2}, {R(rWS)}, s{sO+k} offen offset:{e*1024} sc1")
        def put(k):
            for e in range(3): a(f"ds_write_b128 v4, {V(O+16*k+4*e,4)} offset:{(k%2)*14336+e*1024}")
            a("s_mov_b32 exec_hi, 0")
            a(f"ds_write_b128 v4, {V(O+16*k+12,4)} offset:{(k%2)*14336+3*1024}")
            a("s_mov_b32 exec_hi, -1")
            a("s_waitcnt lgkmcnt(0)")
            a("s_barrier")
        a(f"s_mov_b32 s{sCnt}, 0")
        a.lab("L_o0")
        ld(0)
        a("s_waitcnt vmcnt(0)")
        g.poison_chk(O, 16, 5)
        a("s_cbranch_vccz L_o0ok")
        a(f"s_add_u32 s{sCnt}, s{sCnt}, 1"); a(f"s_cmp_lt_u32 s{sCnt}, {SPIN}"); a("s_cbranch_scc1 L_o0")
        a.lab("L_o0ok")
        g.stamp(10)
        ld(1); ld(2)
        put(0)
        a(f"s_mov_b32 s{sRet}, 1")
        a("s_branch L_old_3")
        for k in range(1, 10):
            a.lab(f"L_old_{k}")
            ld(k)
        for k in range(2, 10):
            a(f"s_cmp_eq_u32 s{sRet}, {k}"); a(f"s_cbranch_scc1 L_ochk_{k}")
        for k in range(1, 10):
            a.lab(f"L_ochk_{k}")
            a(f"s_waitcnt vmcnt({4*(9-k)})")
            g.poison_chk(O+16*k, 16, 5)
            a(f"s_cbranch_vccz L_ook_{k}")
            a(f"s_mov_b32 s{sRet}, {k}")
            a(f"s_add_u32 s{sCnt}, s{sCnt}, 1"); a(f"s_cmp_lt_u32 s{sCnt}, {SPIN}"); a(f"s_cbranch_scc1 L_old_{k}")
            a.lab(f"L_ook_{k}")
            put(k)
        if g.stamps:
            a(f"s_mov_b32 s{4+2*(11-8)}, s{sCnt}")
        g.dump_stamps(12)
        a("s_endpgm")

    def aux(g):
        a = g.a
        a.lab("L_aux")
        if g.opt.get("noaux"): a("s_endpgm")
        sA, sF, sHalf, sTmp, sU0 = 56, 57, 58, 59, 60
        r1, r2, rD = 64, 68, 72
        rWR, rGW = 76, 80
        A_M = 0
        A_D = 81920
        A_WR, A_GW = 122880, 124928
        A_XS = 126976
        A_PRE = 129024
        A_MAX = 129536
        a(f"s_sub_u32 s{sA}, s{sJ}, 25")
        a(f"s_lshr_b32 s{sU0}, s{sX}, 2"); a(f"s_lshl_b32 s{sU0}, s{sU0}, 1"); a(f"s_and_b32 s{sT}, s{sX}, 1"); a(f"s_add_u32 s{sU0}, s{sU0}, s{sT}")
        a(f"s_lshl_b32 s{sU0}, s{sU0}, 8"); a(f"s_mul_i32 s{sT}, s{sA}, 40"); a(f"s_add_u32 s{sU0}, s{sU0}, s{sT}")
        a(f"s_lshr_b32 s{sF}, s{sA}, 1"); a(f"s_lshl_b32 s{sF}, s{sF}, 3"); a(f"s_add_u32 s{sF}, s{sF}, s{sX}"); a(f"s_lshl_b32 s{sF}, s{sF}, 1")
        a(f"s_and_b32 s{sT}, s{sA}, 1"); a(f"s_add_u32 s{sF}, s{sF}, s{sT}")
        a(f"s_add_u32 s{sT}, s{sX}, 48"); a(f"s_cmp_eq_u32 s{sA}, 6"); a(f"s_cselect_b32 s{sF}, s{sT}, s{sF}")
        a(f"s_and_b32 s{sHalf}, s{sF}, 1")
        for r in (r1, r2, rD): g.srd_consts(r, 640*3456)
        for r in (rWR, rGW): g.srd_consts(r, 1280)
        a("v_lshrrev_b32 v1, 3, v0"); a("v_and_b32 v2, 7, v0")
        a(f"s_cmp_ge_u32 s{sW}, 5"); a("s_cbranch_scc1 L_aux_hi")
        a(f"s_lshl_b32 s{sT}, s{sW}, 3"); a(f"s_add_u32 s{sU0}, s{sU0}, s{sT}")
        a(f"v_add_u32 v3, s{sU0}, v1")
        a(f"v_lshl_add_u32 v4, v3, 1, s{sP}")
        a("v_mul_u32_u24 v5, 1280, v4"); a("v_lshl_add_u32 v5, v2, 4, v5")
        a(f"s_mul_i32 s{sTmp}, s{sA}, 5"); a(f"s_add_u32 s{sTmp}, s{sTmp}, s{sW}")
        a(f"s_cmp_lt_u32 s{sTmp}, 32"); a(f"s_cselect_b32 s{sT}, 0, 0x80000000")
        a(f"v_or_b32 v5, s{sT}, v5")
        g.ptrs()
        XD, WD = 8, 48
        for c in range(10):
            a(f"buffer_load_dwordx4 {V(XD+4*c,4)}, v5, {R(rX)}, 0 offen offset:{128*c}")
            if c % 2 == 1: a("s_barrier")
        g.ptrs2()
        a("v_lshlrev_b32 v6, 4, v2")
        a(f"v_add_u32 v6, {A_WR}, v6")
        for c in range(10):
            a(f"ds_read_b128 {V(WD+8*c,4)}, v6 offset:{128*c}")
            a(f"ds_read_b128 {V(WD+8*c+4,4)}, v6 offset:{2048+128*c}")
            if c == 6: a("s_waitcnt lgkmcnt(6)")
        for k in range(4): a(f"v_mov_b32 v{128+k}, 0")
        a("s_waitcnt lgkmcnt(0)")
        for c in range(10):
            a(f"s_waitcnt vmcnt({9-c})")
            for k in range(4):
                a(f"v_dot2c_f32_bf16 v{128+(k&1)}, v{XD+4*c+k}, v{WD+8*c+k}")
                a(f"v_dot2c_f32_bf16 v{130+(k&1)}, v{XD+4*c+k}, v{WD+8*c+4+k}")
        a("v_add_f32 v128, v128, v129"); a("v_add_f32 v130, v130, v131")
        for d in ("quad_perm:[1,0,3,2]", "quad_perm:[2,3,0,1]", "row_half_mirror"):
            a(f"v_add_f32_dpp v128, v128, v128 {d} row_mask:0xf bank_mask:0xf")
            a(f"v_add_f32_dpp v130, v130, v130 {d} row_mask:0xf bank_mask:0xf")
        g.bf16r(130); g.sigmoid(130, 130); g.bf16r(130)
        g.bf16r(128)
        a("v_ashrrev_i32 v129, 31, v128"); a("v_or_b32 v129, 0x80000000, v129"); a("v_xor_b32 v128, v128, v129")
        a("v_and_b32 v128, 0xffff0000, v128"); a("v_sub_u32 v129, 0xffff, v4"); a("v_or_b32 v128, v128, v129")
        a(f"v_mov_b32 v7, {A_MAX}")
        a(f"s_lshl_b32 s{sT}, s{sP}, 12"); a(f"s_add_u32 s{sT}, s{sT}, {WS_G}")
        a("v_lshlrev_b32 v3, 2, v3")
        a(f"s_cmp_lt_u32 s{sTmp}, 32"); a("s_cbranch_scc0 L_aux_norg")
        a("s_mov_b32 exec_lo, 0x01010101"); a("s_mov_b32 exec_hi, 0x01010101")
        a(f"buffer_store_dword v130, v3, {R(rWS)}, s{sT} offen sc1")
        a("ds_max_u32 v7, v128")
        a.lab("L_aux_norg")
        a("s_mov_b64 exec, 1")
        a("v_mov_b32 v129, 1")
        a("s_waitcnt vmcnt(0) lgkmcnt(0)")
        a("ds_add_rtn_u32 v129, v7, v129 offset:4")
        a("ds_read_b32 v128, v7")
        a(f"s_lshl_b32 s{sT}, s{sA}, 3"); a(f"s_add_u32 s{sT}, s{sT}, s{sX}"); a(f"s_lshl_b32 s{sT}, s{sT}, 2")
        a(f"v_mov_b32 v3, s{sT}")
        a("s_waitcnt lgkmcnt(0)")
        a("v_cmp_eq_u32 vcc, 4, v129"); a("s_cbranch_vccz L_aux_nopub")
        a(f"buffer_store_dword v128, v3, {R(rDBG)}, 0 offen sc1")
        a.lab("L_aux_nopub")
        a("s_mov_b64 exec, -1")
        g.stamp(1)
        a(f"s_cmp_ge_u32 s{sF}, 54"); a("s_cbranch_scc1 L_aux_end")
        a(f"s_cmp_eq_u32 s{sW}, 4"); a("s_cbranch_scc0 L_aux_f1")
        a("v_lshlrev_b32 v1, 2, v0")
        a(f"s_mov_b32 s{sCnt}, 0")
        a.lab("L_aux_poll")
        a(f"buffer_load_dword v2, v1, {R(rDBG)}, 0 offen sc1")
        a("s_waitcnt vmcnt(0)")
        a("v_cmp_eq_u32 vcc, 0, v2")
        a("s_and_b32 vcc_hi, vcc_hi, 0x00ffffff")
        a("s_cmp_eq_u64 vcc, 0"); a("s_cbranch_scc1 L_aux_pok")
        a(f"s_add_u32 s{sCnt}, s{sCnt}, 1"); a(f"s_cmp_lt_u32 s{sCnt}, {SPIN}"); a("s_cbranch_scc1 L_aux_poll")
        a.lab("L_aux_pok")
        g.argmax(2, 3, 84, 85)
        a("s_mul_i32 s85, s85, 1280")
        a("v_lshl_add_u32 v1, v0, 4, s85")
        a(f"s_mov_b32 m0, {A_XS}")
        a(f"buffer_load_dwordx4 v1, {R(rX)}, 0 offen lds")
        a(f"buffer_load_dwordx4 v1, {R(rX)}, 0 offen offset:1024 lds")
        g.stamp(2)
        a("s_waitcnt vmcnt(0)")
        a("s_branch L_aux_f1")
        a.lab("L_aux_hi")
        sV = 84
        a(f"s_sub_u32 s{sV}, s{sW}, 5")
        a("v_mul_u32_u24 v3, 4370, v0"); a("v_lshrrev_b32 v3, 16, v3")
        a("v_mul_u32_u24 v4, 15, v3"); a("v_sub_u32 v4, v0, v4")
        a("v_mul_u32_u24 v5, 52, v4"); a("v_lshrrev_b32 v5, 8, v5")
        a("v_mul_u32_u24 v5, 640, v5"); a("v_lshl_add_u32 v5, v4, 7, v5")
        a(f"v_mul_u32_u24 v3, {4*3840}, v3"); a("v_add_u32 v5, v5, v3")
        a(f"s_lshr_b32 s{sT}, s{sX}, 1"); a(f"s_mul_i32 s{sT}, s{sT}, 3840"); a(f"s_and_b32 s{sTmp}, s{sX}, 1"); a(f"s_mul_i32 s{sTmp}, s{sTmp}, 640")
        a(f"s_add_u32 s{sT}, s{sT}, s{sTmp}"); a(f"s_mul_i32 s{sTmp}, s{sA}, {16*3840}"); a(f"s_add_u32 s{sT}, s{sT}, s{sTmp}")
        a(f"v_add_u32 v5, s{sT}, v5")
        a("v_cmp_gt_u32 vcc, 60, v0"); a("v_bfrev_b32 v6, 1"); a("v_cndmask_b32 v5, v6, v5, vcc")
        a("v_lshlrev_b32 v6, 4, v0")
        a(f"v_mov_b32 v7, {A_MAX}"); a("v_mov_b32 v8, 0"); a("v_mov_b32 v9, 0")
        a("ds_write_b64 v7, v[8:9]")
        g.ptrs()
        a(f"s_mov_b64 {S(rWR,2)}, s[12:13]"); a(f"s_mov_b64 {S(rGW,2)}, s[20:21]")
        a(f"s_cmp_eq_u32 s{sHalf}, 0")
        a(f"s_cselect_b64 {S(r1,2)}, s[14:15], s[16:17]"); a(f"s_cselect_b64 {S(r2,2)}, s[16:17], s[14:15]")
        a(f"s_mov_b64 {S(rD,2)}, s[18:19]")
        g.ptrs2()
        a(f"s_cmp_eq_u32 s{sV}, 0"); a("s_cbranch_scc1 L_aux_w5")
        a(f"s_cmp_eq_u32 s{sV}, 1"); a("s_cbranch_scc0 L_aux_w7")
        a(f"s_mov_b32 m0, {A_WR}")
        a(f"buffer_load_dwordx4 v6, {R(rWR)}, 0 offen lds"); a(f"buffer_load_dwordx4 v6, {R(rWR)}, 0 offen offset:1024 lds")
        a(f"s_mov_b32 m0, {A_GW}")
        a(f"buffer_load_dwordx4 v6, {R(rGW)}, 0 offen lds"); a(f"buffer_load_dwordx4 v6, {R(rGW)}, 0 offen offset:1024 lds")
        a.lab("L_aux_w7")
        for c in range(4): a("s_barrier")
        a("s_waitcnt vmcnt(0) lgkmcnt(0)")
        a("s_barrier")
        a("s_branch L_aux_hi2")
        a.lab("L_aux_w5")
        a(f"s_mov_b32 s{sT}, 0")
        for n in range(6):
            a(f"buffer_load_dword v{10+n}, v5, {R(rW)}, s{sT} offen")
            a(f"s_add_u32 s{sT}, s{sT}, {7*16*3840}")
            if n >= 1: a("s_barrier")
        a.lab("L_aux_hi2")
        a(f"s_cmp_eq_u32 s{sV}, 0"); a("s_cbranch_scc1 L_aux_nowo")
        a(f"s_lshl_b32 s{sT}, s{sA}, 3"); a(f"s_add_u32 s{sT}, s{sT}, s{sX}"); a(f"s_lshl_b32 s{sT}, s{sT}, 1"); a(f"s_add_u32 s{sT}, s{sT}, s{sV}"); a(f"s_sub_u32 s{sT}, s{sT}, 1")
        a(f"s_lshl_b32 s{sT}, s{sT}, 13")
        a("v_lshlrev_b32 v3, 7, v0")
        a(f"buffer_load_dword v10, v3, {R(rWO)}, s{sT} offen")
        a.lab("L_aux_nowo")
        a(f"s_cmp_ge_u32 s{sF}, 54"); a("s_cbranch_scc1 L_aux_end")
        a("v_lshrrev_b32 v3, 2, v0"); a("v_mul_u32_u24 v3, 3456, v3")
        a("v_lshrrev_b32 v4, 3, v0"); a("v_and_b32 v4, 2, v4"); a("v_and_b32 v5, 3, v0"); a("v_xor_b32 v4, v4, v5")
        a("v_lshl_add_u32 v3, v4, 4, v3")
        a(f"s_lshl_b32 s{sT}, s{sF}, 6"); a(f"v_add_u32 v3, s{sT}, v3")
        for mi, rr in enumerate((r1, r2)):
            lp = g.lab("fm")
            a(f"s_xor_b32 s{sT}, s{sHalf}, {mi}"); a(f"s_mul_i32 s{sTmp}, s{sT}, 40960")
            a(f"s_mov_b32 s{sCnt}, s{sV}")
            a.lab(lp)
            a(f"s_lshl_b32 s{sT}, s{sCnt}, 10"); a(f"s_add_u32 m0, s{sT}, s{sTmp}")
            a(f"s_mul_i32 s{sT}, s{sCnt}, {16*3456}")
            a(f"buffer_load_dwordx4 v3, {R(rr)}, s{sT} offen lds")
            a("s_waitcnt vmcnt(6)")
            a(f"s_add_u32 s{sCnt}, s{sCnt}, 3"); a(f"s_cmp_lt_u32 s{sCnt}, 40"); a(f"s_cbranch_scc1 {lp}")
        a("v_lshrrev_b32 v4, 1, v1"); a("v_lshlrev_b32 v4, 1, v4"); a("v_xor_b32 v4, v4, v2"); a("v_lshlrev_b32 v4, 4, v4")
        a("v_mul_u32_u24 v5, 1280, v1"); a("v_add_u32 v4, v4, v5")
        a(f"s_mul_i32 s{sT}, s{sF}, {32*1280}"); a(f"v_add_u32 v4, s{sT}, v4")
        a(f"s_mov_b32 s{sCnt}, s{sV}")
        def dn(lim):
            lp = g.lab("fd")
            a.lab(lp)
            a(f"s_lshl_b32 s{sT}, s{sCnt}, 10"); a(f"s_add_u32 m0, s{sT}, {A_D}")
            a(f"s_and_b32 s{sT}, s{sCnt}, 3"); a(f"s_mul_i32 s{sT}, s{sT}, {8*1280}"); a(f"s_lshr_b32 s{sTmp}, s{sCnt}, 2"); a(f"s_lshl_b32 s{sTmp}, s{sTmp}, 7"); a(f"s_add_u32 s{sT}, s{sT}, s{sTmp}")
            a(f"buffer_load_dwordx4 v4, {R(rD)}, s{sT} offen lds")
            a(f"s_add_u32 s{sCnt}, s{sCnt}, 3"); a(f"s_cmp_lt_u32 s{sCnt}, {lim}"); a(f"s_cbranch_scc1 {lp}")
        dn(24)
        a("s_waitcnt vmcnt(8)")
        g.stamp(2)
        a("s_barrier")
        dn(40)
        a("s_waitcnt vmcnt(0)")
        a("s_branch L_aux_f2")
        a.lab("L_aux_f1")
        a(f"s_and_b32 s{sT}, s{sW}, 1")
        a("v_bfe_u32 v1, v0, 4, 1"); a(f"v_xor_b32 v1, s{sT}, v1"); a("v_lshlrev_b32 v1, 5, v1")
        a("v_and_b32 v2, 3, v0"); a("v_lshl_add_u32 v1, v2, 3, v1")
        a("v_lshrrev_b32 v2, 2, v0"); a("v_lshl_add_u32 v1, v2, 6, v1")
        a(f"s_lshr_b32 s{sT}, s{sW}, 1"); a(f"s_mul_i32 s{sT}, s{sT}, 40960"); a(f"v_add_u32 v1, s{sT}, v1")
        a("v_lshrrev_b32 v2, 4, v0"); a("v_lshlrev_b32 v2, 3, v2"); a(f"v_add_u32 v2, {A_XS}, v2")
        a("s_barrier")
        g.stamp(3)
        a(f"s_cmp_ge_u32 s{sW}, 4"); a("s_cbranch_scc1 L_aux_f2")
        for ks in range(20):
            a(f"ds_read_b64_tr_b16 {V(8+8*ks,2)}, v1 offset:{ks*2048}")
            a(f"ds_read_b64_tr_b16 {V(10+8*ks,2)}, v1 offset:{ks*2048+1024}")
            a(f"ds_read2_b64 {V(12+8*ks,4)}, v2 offset0:{8*ks} offset1:{8*ks+4}")
            if ks >= 4:
                k = ks - 4
                a("s_waitcnt lgkmcnt(12)")
                a(f"v_mfma_f32_16x16x32_bf16 v[4:7], {V(8+8*k,4)}, {V(12+8*k,4)}, {'0' if k == 0 else 'v[4:7]'}")
        for k in range(16, 20):
            a(f"s_waitcnt lgkmcnt({3*(19-k)})")
            a(f"v_mfma_f32_16x16x32_bf16 v[4:7], {V(8+8*k,4)}, {V(12+8*k,4)}, v[4:7]")
        a(f"s_lshl_b32 s{sT}, s{sW}, 6"); a(f"s_add_u32 s{sT}, s{sT}, {A_PRE}")
        a("v_and_b32 v3, 48, v0"); a(f"v_add_u32 v3, s{sT}, v3")
        a("ds_write_b128 v3, v[4:7]")
        a("s_waitcnt lgkmcnt(0)")
        a.lab("L_aux_f2")
        a(f"s_and_b32 s{sT}, s{sW}, 3")
        g.tr_addr(1, f"s{sT}", A_D, 9, 10)
        a(f"s_lshr_b32 s{sTmp}, s{sW}, 2"); a(f"s_mul_i32 s{sCnt}, s{sTmp}, {5*4096}"); a(f"v_add_u32 v1, s{sCnt}, v1")
        a("v_and_b32 v3, 48, v0"); a(f"v_add_u32 v2, {A_PRE}, v3")
        a("s_barrier")
        g.stamp(4)
        for k in range(4): a(f"ds_read_b128 {V(8+4*k,4)}, v2 offset:{64*k}")
        for e in range(5):
            for ab in range(2): a(f"ds_read_b64_tr_b16 {V(40+4*e+2*ab,2)}, v1 offset:{e*4096+ab*2048}")
        a("s_waitcnt lgkmcnt(10)")
        for k in range(16): g.bf16r(8+k)
        for k in range(8): a(f"v_mul_f32 v{24+k}, {f32(-math.log2(math.e))}, v{8+k}")
        for k in range(8): a(f"v_exp_f32 v{24+k}, v{24+k}")
        for k in range(8): a(f"v_add_f32 v{24+k}, 1.0, v{24+k}")
        for k in range(8): a(f"v_rcp_f32 v{24+k}, v{24+k}")
        for k in range(8): a(f"v_mul_f32 v{24+k}, v{24+k}, v{8+k}")
        for k in range(8): g.bf16r(24+k)
        for k in range(8): a(f"v_mul_f32 v{24+k}, v{24+k}, v{16+k}")
        for k in range(4): a(f"v_cvt_pk_bf16_f32 v{32+k}, v{24+2*k}, v{25+2*k}")
        a("s_waitcnt lgkmcnt(0)")
        for e in range(5): a(f"v_mfma_f32_16x16x32_bf16 {V(64+4*e,4)}, {V(40+4*e,4)}, v[32:35], 0")
        a("v_and_b32 v4, 15, v0"); a("v_lshl_add_u32 v5, v4, 8, v3")
        a(f"s_mul_i32 s{sCnt}, s{sF}, 2560"); a(f"s_mul_i32 s{sTmp}, s{sTmp}, 1280"); a(f"s_add_u32 s{sCnt}, s{sCnt}, s{sTmp}")
        a(f"s_lshl_b32 s{sT}, s{sT}, 6"); a(f"s_add_u32 s{sCnt}, s{sCnt}, s{sT}"); a(f"s_add_u32 s{sCnt}, s{sCnt}, {WS_Y}")
        for e in range(1, 5):
            a(f"v_cmp_eq_u32 vcc, {e}, v4")
            for k in range(4): a(f"v_cndmask_b32 v{64+k}, v{64+k}, v{64+4*e+k}, vcc")
        a("s_mov_b32 exec_lo, 0x001f001f"); a("s_mov_b32 exec_hi, 0x001f001f")
        a(f"buffer_store_dwordx4 v[64:67], v5, {R(rWS)}, s{sCnt} offen sc1")
        a("s_mov_b64 exec, -1")
        a("s_waitcnt vmcnt(0)")
        a("s_barrier")
        a(f"s_cmp_eq_u32 s{sW}, 0"); a("s_cbranch_scc0 L_aux_end")
        a("v_mov_b32 v1, 1"); a(f"v_mov_b32 v2, {61*4}")
        a("s_mov_b64 exec, 1")
        a(f"buffer_atomic_add v1, v2, {R(rDBG)}, 0 offen sc1")
        a("s_mov_b64 exec, -1")
        a.lab("L_aux_end")
        g.stamp(5)
        g.dump_stamps(6)

    def build(g):
        g.prologue(); g.lwave(); g.cwave(); g.rounds(); g.cstage2(); g.lstage2(); g.aux()
        g.a.lab("L_end")
        g.a("s_endpgm")
        body = g.a.finish()
        hdr = open(f"cdna_kernels/{KN}.s.ref").read().split("; Override launch")[0]
        k = KN + "_kernel"
        return hdr + f"""; @launch grid=(256,1,1) block=(512,1,1) lds={LDS_BYTES}
.amdgcn_target "amdgcn-amd-amdhsa--gfx950"
.text
.globl {k}
.p2align 8
.type {k},@function
{k}:
{body}
.section .rodata,"a"
.p2align 6
.amdhsa_kernel {k}
  .amdhsa_next_free_vgpr 256
  .amdhsa_next_free_sgpr 102
  .amdhsa_accum_offset 256
  .amdhsa_group_segment_fixed_size 0
  .amdhsa_kernarg_size 96
  .amdhsa_user_sgpr_count 2
  .amdhsa_user_sgpr_kernarg_segment_ptr 1
  .amdhsa_system_sgpr_workgroup_id_x 1
  .amdhsa_float_denorm_mode_32 3
.end_amdhsa_kernel
"""

if __name__ == "__main__":
    out = sys.argv[1] if len(sys.argv) > 1 else "k1.s"
    kw = {}
    for x in sys.argv[2:]:
        k, v = x.split("="); kw[k] = eval(v)
    g = Gen(**kw)
    open(out, "w").write(g.build())
    print("wrote", out, "pads", g.a.npad)
```

```python
import re

def regs_of(tok):
    tok = tok.strip()
    neg = tok.lstrip('-')
    m = re.fullmatch(r'(?:abs\()?([vs])(\d+)\)?', neg)
    if m: return [(m.group(1), int(m.group(2)))]
    m = re.fullmatch(r'([vs])\[(\d+):(\d+)\]', neg)
    if m: return [(m.group(1), i) for i in range(int(m.group(2)), int(m.group(3))+1)]
    if neg in ('vcc', 'vcc_lo', 'vcc_hi'): return [('s', 'vcc')]
    if neg in ('exec', 'exec_lo', 'exec_hi'): return [('s', 'exec')]
    if neg == 'm0': return [('s', 'm0')]
    return []

TRANS = ('v_exp_', 'v_log_', 'v_rcp_', 'v_rsq_', 'v_sqrt_', 'v_sin_', 'v_cos_')

class Ins:
    def __init__(s, text):
        s.text = text
        t = text.split(';')[0].strip()
        s.op = t.split()[0] if t else ''
        rest = t[len(s.op):].strip()
        rest = re.sub(r'\b(op_sel|op_sel_hi|neg_lo|neg_hi|quad_perm):\[[^\]]*\]', lambda m: m.group(1), rest)
        parts = [p.strip() for p in rest.split(',')] if rest else []
        s.mods = ''
        if parts:
            last = parts[-1].split()
            parts[-1] = last[0] if last else ''
            s.mods = ' '.join(last[1:])
        s.parts = parts
        op = s.op
        s.mfma = op.startswith('v_mfma')
        s.valu = op.startswith('v_') and not s.mfma
        s.trans = op.startswith(TRANS)
        s.dot = op.startswith('v_dot')
        s.ds = op.startswith('ds_')
        s.vmem = op.startswith(('buffer_', 'global_'))
        s.salu = op.startswith('s_')
        s.perm = op.startswith('v_permlane')
        s.dpp = '_dpp' in op or 'quad_perm' in s.mods or 'row_' in s.mods
        s.rdlane = op.startswith(('v_readlane', 'v_readfirstlane'))
        R = [regs_of(p) for p in parts]
        flat = lambda l: [x for y in l for x in y]
        s.w, s.r = [], []
        s.srcC = []
        if s.mfma:
            s.w = R[0]; s.r = flat(R[1:]); s.srcC = R[3]; s.srcAB = R[1] + R[2]
        elif s.valu:
            s.w = list(R[0]); s.r = flat(R[1:])
            if s.perm or op.startswith('v_swap'): s.w = flat(R); s.r = flat(R)
            if op.startswith(('v_fmac', 'v_dot2c', 'v_writelane')) or s.dpp: s.r += R[0]
            if op.startswith(('v_add_co', 'v_sub_co', 'v_addc_co')): s.w += R[1]
            if op.startswith('v_cmpx'): s.w += [('s', 'exec')]
        elif s.ds:
            if op.startswith(('ds_read', 'ds_bpermute', 'ds_permute', 'ds_swizzle')) or '_rtn' in op:
                s.w = R[0]; s.r = flat(R[1:])
            else: s.r = flat(R)
        elif s.vmem:
            lds = ' lds' in (' ' + s.mods)
            if 'load' in op and not lds: s.w = R[0]; s.r = flat(R[1:])
            else: s.r = flat(R)
            if lds: s.r += [('s', 'm0')]
            s.lds = lds
            s.widestore = ('store' in op and ('x3' in op or 'x4' in op))
            s.sdata = R[0] if 'store' in op and op.startswith('buffer_') else (R[1] if 'store' in op else [])
        elif s.salu:
            if op.startswith(('s_cmp', 's_cbranch', 's_branch', 's_waitcnt', 's_barrier', 's_nop', 's_sleep', 's_setprio', 's_endpgm', 's_bitcmp', 's_setpc')):
                s.r = flat(R)
            else:
                s.w = R[0] if R else []; s.r = flat(R[1:])
                if 'saveexec' in op: s.w = s.w + [('s', 'exec')]
        s.states = 1
        if op == 's_nop': s.states = int(parts[0], 0) + 1

def need(p, c):
    W = set(p.w); n = 0
    def ov(a, b): return bool(set(a) & set(b))
    vW = [x for x in p.w if x[0] == 'v']; sW = [x for x in p.w if x[0] == 's']
    if p.mfma:
        passes = 8 if '32x32' in p.op else 4
        big = {4: 8, 8: 12}[passes]; part = {4: 6, 8: 10}[passes]; war = {4: 3, 8: 7}[passes]
        if c.mfma:
            if ov(vW, c.srcAB): n = max(n, big)
            if ov(vW, c.srcC) and c.srcC != p.w: n = max(n, part)
            if ov(vW, c.srcC) and c.op != p.op: n = max(n, big)
            if ov(vW, c.w) and not (c.srcC == p.w and c.w == p.w): n = max(n, part if not ov(vW, c.srcC) else 0)
        elif c.valu or c.ds or c.vmem:
            if ov(vW, c.r) or ov(vW, c.w): n = max(n, big)
        if c.valu and ov([x for x in p.srcC if x[0]=='v'], c.w): n = max(n, war)
    if p.valu:
        if c.mfma and ov(vW, c.r): n = max(n, 2)
        if c.mfma and ('s','exec') in W: n = max(n, 4)
        if c.perm and ov(vW, c.r): n = max(n, 2)
        if c.dpp and ov(vW, c.r): n = max(n, 2)
        if c.rdlane and ov(vW, c.r): n = max(n, 1)
        if p.trans and c.valu and not c.trans and ov(vW, c.r): n = max(n, 1)
        if p.trans and (c.ds or c.vmem or c.trans) and ov(vW, c.r): n = max(n, 1)
        if p.dot and (c.valu or c.ds or c.vmem) and (ov(vW, c.r) or ov(vW, c.w)):
            same = c.op == p.op
            if not (same and (c.op.startswith('v_dot2c') or (len(c.parts) > 3 and regs_of(c.parts[3]) == p.w)) and not ov(vW, regs_of(c.parts[1]) + regs_of(c.parts[2]))): n = max(n, 3)
        if sW:
            if c.vmem and ov(sW, c.r): n = max(n, 5)
            if c.valu and ov(sW, c.r): n = max(n, 4 if c.op.startswith(('v_readlane','v_writelane')) else 2)
            if c.salu and ov(sW, c.r): n = max(n, 1)
            if ('s','exec') in W:
                if c.dpp: n = max(n, 5)
                if c.rdlane or c.perm: n = max(n, 4)
    if p.salu and ('s','m0') in W and ((c.vmem and c.lds) or c.op.startswith('v_writelane') or c.op.startswith('v_readlane')): n = max(n, 1)
    if p.vmem and p.widestore and (c.valu or c.mfma or c.ds or c.vmem) and ov(p.sdata, c.w): n = max(n, 2)
    return n

class Asm:
    def __init__(s):
        s.L = []
    def __call__(s, x):
        for ln in x.split('\n'):
            if ln.strip(): s.L.append(ln.strip())
    def lab(s, x): s.L.append(x + ':')
    def finish(s):
        out = []; hist = []
        npad = 0
        for ln in s.L:
            if ln.endswith(':') or ln.startswith(('.', ';')):
                out.append(ln); continue
            c = Ins(ln)
            d = 0; req = 0
            for p in reversed(hist):
                if d >= 12: break
                r = need(p, c) - d
                if r > req: req = r
                d += p.states
            if req > 0:
                nop = Ins(f's_nop {req-1}')
                out.append('    ' + nop.text); hist.append(nop); npad += 1
            out.append('    ' + ln); hist.append(c)
            if c.op in ('s_branch', 's_endpgm', 's_setpc_b64'): hist = []
            hist = hist[-16:]
        s.npad = npad
        return '\n'.join(out)

import subprocess, tempfile, os
def _sizes(lines, kname):
    src = '.amdgcn_target "amdgcn-amd-amdhsa--gfx950"\n.text\n' + kname + ':\n' + '\n'.join(lines) + '\n'
    d = tempfile.mkdtemp()
    open(d + '/a.s', 'w').write(src)
    r = subprocess.run(['clang', '-x', 'assembler', '-target', 'amdgcn-amd-amdhsa', '-mcpu=gfx950', '-c', d + '/a.s', '-o', d + '/a.o'], capture_output=True, text=True)
    if r.returncode: raise SystemExit(r.stderr[:2000])
    o = subprocess.run(['llvm-objdump', '-d', '--mcpu=gfx950', d + '/a.o'], capture_output=True, text=True).stdout
    out = []
    for ln in o.split('\n'):
        m = re.search(r'//\s*([0-9A-F]{12}):((?: [0-9A-F]{8})+)', ln)
        if m: out.append(4*len(m.group(2).split()))
    return out

NOPROMO = ('v_readfirstlane', 'v_permlane', 'v_dot2c', 'v_swap', 'v_nop', 'v_fmamk', 'v_fmaak')
def align8(text, kname, minrun=3):
    lines = text.split('\n')
    assert not any(l.strip().startswith('.p2align') for l in lines)
    idx = [i for i, l in enumerate(lines) if l.strip() and not l.strip().endswith(':') and not l.strip().startswith(('.', ';'))]
    sz = _sizes(lines, kname)
    assert len(sz) == len(idx), (len(sz), len(idx))
    addr = 0; npro = nnop = 0
    pre = {}
    k = 0
    while k < len(idx):
        if sz[k] == 8 and addr % 8 == 4:
            run = 0; dense = 0
            while k + run < len(idx) and sz[k+run] == 8:
                if not lines[idx[k+run]].strip().startswith('v_mfma'): dense += 1
                else: dense -= 2
                run += 1
            j = k - 1; done = False
            while j >= 0 and sz[j] == 4:
                op = lines[idx[j]].split()[0]
                if op.startswith('v_') and not op.startswith(NOPROMO) and not op.endswith(('_e64', '_dpp')):
                    lines[idx[j]] = lines[idx[j]].replace(op, op + '_e64', 1); sz[j] = 8; addr += 4; done = True; npro += 1
                    break
                j -= 1
            if not done:
                prev = lines[idx[k-1]].split()[0] if k else ''
                if prev in ('s_branch', 's_endpgm', 's_setpc_b64'):
                    lines[idx[k-1]] += '\n    s_nop 0'; addr += 4; nnop += 1
                elif dense >= 6:
                    lines[idx[k]] = '    s_nop 0\n' + lines[idx[k]]; addr += 4; nnop += 1
            for _ in range(run): addr += 8; k += 1
            continue
        addr += sz[k]; k += 1
    return '\n'.join(lines), npro, nnop
```

```python
import sys, struct, math
sys.path.insert(0, "work")
from asmlib import Asm, align8

KN = "gated_mix__sliding_local_dilated__moe_arch_mod__prompt"
def f32(x): return "0x%08x" % struct.unpack("<I", struct.pack("<f", x))[0]

BLK = 1 << 19
WS_OG = 143360
WS_FL = 2*143360
WS_FA = WS_FL + 4096
WS_Y = 20*BLK
WS_G = WS_Y + 139264
WS_F = WS_G + 16384
WS_K = WS_F + 8192
WS_T = 16 << 20
WS_SIZE = 20 << 20
SLOT = 38912
WOFF = 14336
L_WO = 81920
L_QK = 38912
L_P = 0
L_EP = 0
L_CNT = 28672
L_BB = 38912
LDS_BYTES = 163840
POISON = -1
SPIN = 30000
CSC = f32(20**-0.5 * math.log2(math.e))

rX, rW, rWO, rWS, rDBG, rOUT = 28, 32, 36, 40, 44, 48
sW, sX, sJ, sP, sM0, sJB, sCG, sTB, sI0, sCnt, sSlot, sT = 52, 53, 54, 55, 56, 57, 58, 59, 60, 61, 62, 63
def S(n, k=1): return f"s{n}" if k == 1 else f"s[{n}:{n+k-1}]"
def V(n, k=1): return f"v{n}" if k == 1 else f"v[{n}:{n+k-1}]"
def R(n): return S(n, 4)

class Gen:
    def __init__(g, stamps=False, look=8, rot=1, depth=4, **kw):
        g.a = Asm(); g.stamps = stamps; g.look = look; g.rot = rot; g.depth = depth
        g.opt = kw
        g.nlab = 0
        g.tail = []
    def lab(g, base): g.nlab += 1; return f"L_{base}_{g.nlab}"
    def sreg(g, k): return 86 + 2*k if k < 8 else 4 + 2*(k-8)
    def stamp(g, k):
        if g.stamps and (g.stamps is True or k in g.stamps or k == 0): g.a(f"s_memtime {S(g.sreg(k),2)}")
    def dump_stamps(g, nst):
        if not g.stamps: return
        a = g.a
        a("s_memrealtime s[62:63]")
        a("s_waitcnt lgkmcnt(0)")
        a("v_mov_b32 v1, v253")
        for k in range(nst): a(f"v_writelane_b32 v1, s{g.sreg(k)}, {k}")
        a("v_writelane_b32 v1, s3, 30")
        a("v_writelane_b32 v1, s62, 31")
        a(f"s_lshl_b32 s62, s2, 3"); a(f"s_add_u32 s62, s62, s{sW}"); a("s_lshl_b32 s62, s62, 8"); a(f"s_add_u32 s62, s62, {WS_T}")
        a("v_lshlrev_b32 v2, 2, v0")
        a(f"buffer_store_dword v1, v2, {R(rWS)}, s62 offen")
    def srd_consts(g, r, size):
        g.a(f"s_mov_b32 s{r+2}, {size}"); g.a(f"s_mov_b32 s{r+3}, 0x20000")

    def prologue(g):
        a = g.a
        a("s_load_dwordx16 s[4:19], s[0:1], 0")
        a("s_load_dwordx8 s[20:27], s[0:1], 64")
        if g.stamps:
            a("s_memrealtime s[100:101]")
            g.stamp(0)
        a("v_lshrrev_b32 v1, 6, v0")
        a("s_cmp_ge_u32 s2, 256")
        a("s_cbranch_scc1 L_end")
        a(f"v_readfirstlane_b32 s{sW}, v1")
        a("v_and_b32 v0, 63, v0")
        a(f"s_and_b32 s{sX}, s2, 7")
        a(f"s_lshr_b32 s{sJ}, s2, 3")
        g.srd_consts(rX, 2048*1280); g.srd_consts(rW, 640*3840)
        a(f"s_bfe_u32 s{sP}, s2, 0x10001")
        a(f"s_cmp_ge_u32 s{sJ}, 25")
        a("s_cbranch_scc1 L_aux")
        a(f"s_mul_i32 s{sM0}, s{sJ}, 52"); a(f"s_lshr_b32 s{sM0}, s{sM0}, 8")
        a(f"s_mul_i32 s{sJB}, s{sM0}, 5"); a(f"s_sub_u32 s{sJB}, s{sJ}, s{sJB}")
        a(f"s_and_b32 s{sCG}, s2, 1"); a(f"s_mul_i32 s{sCG}, s{sCG}, 5"); a(f"s_add_u32 s{sCG}, s{sCG}, s{sM0}")
        a(f"s_lshr_b32 s{sTB}, s{sX}, 1"); a(f"s_mul_i32 s{sTB}, s{sTB}, 5"); a(f"s_add_u32 s{sTB}, s{sTB}, s{sJB}")
        a(f"s_and_b32 s{sI0}, s{sX}, 4"); a(f"s_lshl_b32 s{sI0}, s{sI0}, 7")
        a(f"s_mul_i32 s{sCnt}, s{sJB}, 104"); a(f"s_add_u32 s{sI0}, s{sI0}, s{sCnt}"); a(f"s_sub_u32 s{sI0}, s{sI0}, 8")
        a(f"s_cmp_lt_u32 s{sW}, 4")
        a("s_cbranch_scc1 L_cwave")

    def ptrs(g):
        a = g.a
        a("s_waitcnt lgkmcnt(0)")
        a(f"s_mov_b64 {S(rX,2)}, s[4:5]"); a(f"s_mov_b64 {S(rW,2)}, s[6:7]")
        if g.stamps: a("s_mov_b32 s3, s100")
    def ptrs2(g):
        a = g.a
        a(f"s_mov_b64 {S(rWO,2)}, s[8:9]"); a(f"s_mov_b64 {S(rWS,2)}, s[26:27]")
        a(f"s_mov_b64 {S(rDBG,2)}, s[24:25]"); a(f"s_mov_b64 {S(rOUT,2)}, s[22:23]")
        g.srd_consts(rWO, 640*1280); g.srd_consts(rWS, WS_SIZE); g.srd_consts(rDBG, 256); g.srd_consts(rOUT, 2048*1280)

    XR = 224
    vXR = 3
    vSP = 254
    vL16 = 255
    sFL, sCur, sAr, sLoc = 20, 21, 0, 53

    def xres_addr(g):
        a = g.a
        a("v_bfe_u32 v8, v0, 1, 3"); a("v_lshrrev_b32 v9, 5, v0"); a("v_xor_b32 v9, v9, v8"); a("v_lshlrev_b32 v9, 4, v9")
        a("v_bfe_u32 v10, v0, 4, 1"); a("v_lshl_add_u32 v9, v10, 3, v9"); a("v_and_b32 v10, 15, v0"); a("v_lshl_add_u32 v9, v10, 7, v9")
        a(f"s_mul_i32 s{sCnt}, s{sCG}, 86"); a(f"s_lshr_b32 s{sCnt}, s{sCnt}, 8"); a(f"s_mul_i32 s{sCnt}, s{sCnt}, 3"); a(f"s_sub_u32 s{sCnt}, s{sCG}, s{sCnt}")
        a(f"s_sub_u32 s{sSlot}, 3, s{sCnt}"); a(f"s_cmp_eq_u32 s{sCnt}, 0"); a(f"s_cselect_b32 s{sSlot}, 0, s{sSlot}"); a(f"s_mul_i32 s{sSlot}, s{sSlot}, {SLOT}")
        a(f"s_lshl_b32 s{sT}, s{sW}, 12"); a(f"s_add_u32 s{sT}, s{sT}, s{sSlot}")
        a(f"v_add_u32 v{g.vXR}, s{sT}, v9")
    def xres_read(g):
        a = g.a
        for tau, x in ((0, 0), (1, 32), (3, 64), (2, 32)):
            if tau: a(f"v_xor_b32 v{g.vXR}, {x}, v{g.vXR}")
            for q in range(2): a(f"ds_read_b64 {V(g.XR+8*q+2*tau,2)}, v{g.vXR} offset:{2048*q}")
    BI, BI0 = 240, 244
    B1, B2 = 200, 216
    vQ1, vQ2 = 251, 252
    def unit_setup(g, sA):
        a = g.a
        a(f"s_and_b32 s{sCnt}, s{sW}, 1"); a(f"s_mul_i32 s{sCnt}, s{sCnt}, 1536")
        a(f"s_mul_i32 s{sT}, s{sA}, 7168"); a(f"s_lshl1_add_u32 s{sT}, s{sCnt}, s{sT}"); a(f"s_add_u32 s{sT}, s{sT}, {L_P+8}")
        a(f"v_lshlrev_b32 v{g.vL16}, 4, v0")
        a("v_lshrrev_b32 v8, 2, v0"); a("v_bfi_b32 v8, v0, 0, v8"); a("v_and_b32 v8, 8, v8")
        a(f"v_sub_u32 v8, v{g.vL16}, v8"); a(f"v_add_u32 v{g.vSP}, s{sT}, v8")
        a(f"s_mul_i32 s{sT}, s{sA}, 5"); a(f"s_sub_u32 s{sT}, s{sT}, s{sM0}"); a(f"s_add_u32 s{sT}, s{sT}, 4")
        a(f"s_add_u32 s{sCnt}, s{sCnt}, {L_QK}")
        a("v_and_b32 v9, 15, v0"); a(f"v_lshl_add_u32 v10, v9, 3, s{sCnt}")
        a("v_lshrrev_b32 v11, 4, v0"); a(f"v_add_u32 v8, s{sT}, v11")
        a(f"v_lshl_add_u32 v{g.vQ1}, v8, 7, v10"); a("v_lshrrev_b32 v8, 2, v8"); a(f"v_mul_u32_u24 v8, {7168-512}, v8"); a(f"v_add_u32 v{g.vQ1}, v{g.vQ1}, v8")
        a(f"s_add_u32 s{sT}, s{sT}, 4"); a(f"s_lshr_b32 s{sSlot}, s{sT}, 2"); a(f"s_mul_i32 s{sSlot}, s{sSlot}, {7168-512}"); a(f"s_lshl_b32 s{sT}, s{sT}, 7"); a(f"s_add_u32 s{sT}, s{sT}, s{sSlot}")
        a(f"v_add_u32 v{g.vQ2}, s{sT}, v10")
        a(";cut")
        a("v_lshlrev_b32 v8, 2, v11"); a("v_sub_u32 v9, v9, v8")
        a(f"v_mov_b32 v11, {f32(-1e30)}")
        for r in range(4):
            a(f"v_subrev_u32 v10, {r}, v9"); a("v_and_b32 v10, 8, v10")
            a("v_cmp_eq_u32 vcc, 0, v10")
            a(f"v_cndmask_b32_e64 v{g.BI+r}, v11, v10, vcc")
        a(f"s_cmp_lt_i32 s{sI0}, 0"); a(f"s_cselect_b32 s{sT}, 32, 0"); a(f"s_bitcmp1_b32 s{sW}, 0"); a(f"s_cselect_b32 s{sT}, 0, s{sT}")
        a(f"v_cmp_gt_u32 vcc, s{sT}, v0")
        for r in range(4): a(f"v_cndmask_b32_e64 v{g.BI0+r}, v{g.BI+r}, v11, vcc")
    vK = 120
    def unit_late(g):
        v = g.vK
        return [f"v_and_b32 v{v}, 8, v0", f"v_lshlrev_b32 v{v}, 6, v{v}",
                f"v_lshlrev_b32 v{v+2}, 5, v0", f"v_bfi_b32 v{v+2}, v{v+2}, 0, v{v}",
                f"s_bitcmp1_b32 s{sW}, 0", f"s_cselect_b32 s{sT}, -1, 0",
                f"v_and_b32 v{v+1}, s{sT}, v{v}", f"v_and_b32 v{v+3}, s{sT}, v{v+2}",
                f"v_sub_u32 v{v}, v{g.vQ1}, v{v}", f"v_sub_u32 v{v+1}, v{g.vQ1}, v{v+1}",
                f"v_sub_u32 v{v+2}, v{g.vQ2}, v{v+2}", f"v_sub_u32 v{v+3}, v{g.vQ2}, v{v+3}",
                f"v_xor_b32 v{v+4}, 8, v{g.vSP}", f"v_mov_b32 v{v+6}, 0", f"v_mov_b32 v{v+7}, 0",
                f"s_mov_b32 s{sSlot}, {CSC}", f"s_mov_b32 s{sT}, {CSC}"]
    def fl_addr(g):
        a = g.a
        a(f"s_lshl_b32 s{g.sFL}, s{sTB}, 11"); a(f"s_add_u32 s{g.sFL}, s{g.sFL}, s{sCG}"); a(f"s_lshl_b32 s{g.sFL}, s{g.sFL}, 8"); a(f"s_add_u32 s{g.sFL}, s{g.sFL}, {WS_FL}")
    sFA = 78
    def fa_addr(g, d):
        a = g.a
        a(f"s_and_b32 s{d}, s2, 1"); a(f"s_lshl_b32 s{sT}, s{sTB}, 9"); a(f"s_add_u32 s{d}, s{d}, s{sT}"); a(f"s_lshl_b32 s{d}, s{d}, 10"); a(f"s_add_u32 s{d}, s{d}, {WS_FA}")
    def arr_load(g): return [f"s_lshl_b32 s{g.sLoc}, s{sTB}, 3", f"s_load_dwordx2 {S(g.sAr,2)}, {S(rDBG,2)}, s{g.sLoc}"]
    def arr_check(g, nm, t0, t1, va, vd):
        a = g.a
        ops = [[f"L_ac_{nm}:", f"s_add_u32 s{t0}, s{g.sAr}, s{g.sAr+1}", f"s_lshr_b32 s{t1}, s{t0}, 4", f"s_and_b32 s{t1}, s{t1}, 0x0f0f0f0f"],
               [f"s_and_b32 s{t0}, s{t0}, 0x0f0f0f0f", f"s_add_u32 s{t0}, s{t0}, s{t1}", f"s_mul_i32 s{t0}, s{t0}, 0x01010101"],
               [f"s_lshr_b32 s{t0}, s{t0}, 24", f"s_cmp_eq_u32 s{t0}, 10", f"s_cbranch_scc0 L_ar_{nm}", f"L_ao_{nm}:"],
               ["s_bitcmp1_b32 s2, 0", f"s_cselect_b32 s{t0}, s{g.sAr+1}, s{g.sAr}", f"s_getreg_b32 s{t1}, hwreg(HW_REG_XCC_ID, 0, 3)"],
               [f"s_lshl_b32 s{t1}, s{t1}, 2", f"s_lshr_b32 s{t0}, s{t0}, s{t1}"],
               [f"s_cmp_eq_u32 s{t0}, 5", f"s_cselect_b32 s{g.sLoc}, {0 if g.opt.get('nolocal') else 1}, 0"]]
        def t():
            a.lab(f"L_ar_{nm}")
            a(f"s_mov_b32 s{g.sCur}, 0"); a(f"v_mov_b32 v{va}, s{g.sLoc}")
            a.lab(f"L_ar2_{nm}")
            a("s_sleep 4")
            a(f"buffer_load_dwordx2 {V(vd,2)}, v{va}, {R(rDBG)}, 0 offen sc1")
            a(f"s_add_u32 s{g.sCur}, s{g.sCur}, 1")
            a("s_waitcnt vmcnt(0)")
            a(f"v_readfirstlane_b32 s{g.sAr}, v{vd}"); a(f"v_readfirstlane_b32 s{g.sAr+1}, v{vd+1}")
            a(f"v_mov_b64 {V(vd,2)}, 0")
            a(f"s_cmp_lt_u32 s{g.sCur}, {SPIN}"); a(f"s_cbranch_scc0 L_ao_{nm}")
            for x in ops[0][1:] + ops[1] + ops[2][:2]: a(x)
            a(f"s_cbranch_scc0 L_ar2_{nm}")
            a(f"s_branch L_ao_{nm}")
        g.tail.append(t)
        return ops
    def emit(g, ops):
        for grp in ops:
            for x in (grp if isinstance(grp, list) else [grp]):
                if x.endswith(":"): g.a.lab(x[:-1])
                else: g.a(x)

    def lwave(g):
        a = g.a
        vX, vW, vWO = 12, 16, 43
        sLW, sXo, sWo, sMb, sTmp, sS0, sS1 = 64, 65, 66, 67, 68, 69, 70
        sNeed = 71
        a(f"s_sub_u32 s{sLW}, s{sW}, 4")
        a("v_lshrrev_b32 v1, 3, v0")
        a("v_and_b32 v2, 7, v0")
        a("v_lshrrev_b32 v3, 4, v0")
        a(f"s_and_b32 s{sTmp}, s{sLW}, 1"); a(f"s_lshl_b32 s{sWo}, s{sTmp}, 2")
        a(f"v_xor_b32 v4, v3, v2"); a(f"v_xor_b32 v4, s{sWo}, v4")
        a(f"s_lshl3_add_u32 s{sMb}, s{sLW}, s{sI0}")
        a(f"s_lshl1_add_u32 s{sMb}, s{sMb}, s{sP}"); a(f"s_mul_i32 s{sMb}, s{sMb}, 1280")
        a("v_mul_u32_u24 v5, 2560, v1")
        a(f"v_lshl_add_u32 v5, v4, 4, v5")
        a(f"v_add_u32 v{vX}, s{sMb}, v5")
        a("v_and_b32 v3, 6, v1"); a("v_xor_b32 v4, v3, v2")
        a(f"s_lshl_b32 s{sXo}, s{sCG}, 7")
        a(f"v_lshl_add_u32 v4, v4, 4, s{sXo}")
        a(f"s_lshl_b32 s{sTmp}, s{sTmp}, 4"); a(f"s_and_b32 s{sXo}, s{sLW}, 2"); a(f"s_lshl1_add_u32 s{sTmp}, s{sXo}, s{sTmp}")
        a("v_and_b32 v5, 4, v1"); a(f"v_add3_u32 v5, v5, v1, s{sTmp}")
        a("v_mul_u32_u24 v5, 3840, v5")
        a(f"v_add_u32 v{vW}, v5, v4")
        for m in range(1, 4): a(f"v_add_u32 v{vX+m}, {32*2560*m}, v{vX}")
        a(f"s_lshl_b32 s{sMb}, s{sLW}, 10")
        a(f"s_cmp_ge_u32 s{sLW}, 2"); a("s_cselect_b64 vcc, -1, 0")
        g.ptrs()
        g.stamp(3)
        order = [('x',0),('w',0),('w',1),('x',1),('w',2),('w',3),('x',2),('w',4),('w',5),('x',3)]
        slot = lambda c: (0, 2*SLOT, SLOT)[c % 3]
        def issue(c, j):
            kind, m = order[j]
            if kind == 'x':
                skip = None
                if m == 3:
                    skip = g.lab("skipx")
                    a(f"s_cbranch_vccnz {skip}")
                a(f"s_add_u32 m0, s{sMb}, {slot(c) + m*4096}")
                if m == 0: a(f"s_movk_i32 s{sXo}, {c*128}")
                a(f"buffer_load_dwordx4 v{vX+m}, {R(rX)}, s{sXo} offen lds")
                if skip: a.lab(skip)
            else:
                ks, sec = divmod(m, 3)
                a(f"s_add_u32 m0, s{sMb}, {slot(c) + WOFF + m*4096 - sec*1280}")
                if sec == 0: a(f"s_mov_b32 s{g.sLd}, {c*245760 + ks*122880}")
                a(f"buffer_load_dwordx4 v{vW}, {R(rW)}, s{g.sLd} offen offset:{sec*1280} lds")
        look = g.look
        main = g.a; g.a = Asm(); g.l_setup(); pieces = g.a.L; g.a = main
        c0, c1 = g.opt.get("su0", 2), g.opt.get("su1", 7)
        cuts = [i for i, x in enumerate(pieces) if x == ";cut"]
        per = -(-len(pieces) // (c1 - c0))
        pos = 0
        t0 = g.opt.get("t0", 1); tn = g.opt.get("tn", 7)
        for c in range(10):
            for j in range(look): issue(c, j)
            if c == 1:
                g.ptrs2()
            if c0 <= c < c1:
                end = len(pieces) if c == c1 - 1 else min([i for i in cuts if i >= pos + per] + [len(pieces)])
                for x in pieces[pos:end]: a(x)
                pos = end
                a(f"s_cmp_ge_u32 s{sLW}, 2"); a("s_cselect_b64 vcc, -1, 0")
            if c > 0:
                a(f"s_waitcnt vmcnt({look})")
                a("s_barrier")
            for j in range(look, 10): issue(c, j)
            if c == 1:
                a(f"s_cmp_eq_u32 s{sLW}, 3"); a("s_cbranch_scc0 L_ll_na")
                a(f"s_getreg_b32 s85, hwreg(HW_REG_XCC_ID, 0, 3)"); a(f"s_lshl_b32 s85, s85, 2"); a(f"s_lshl_b32 s85, 1, s85")
                a(f"s_and_b32 s{sCnt}, s2, 1"); a(f"s_lshl1_add_u32 s{sCnt}, s{sTB}, s{sCnt}"); a(f"s_lshl_b32 s{sCnt}, s{sCnt}, 2")
                a(f"s_atomic_add s85, {S(rDBG,2)}, s{sCnt}")
                a.lab("L_ll_na")
            if c == 7: g.emit(g.arr_load())
        g.stamp(1)
        a(f"s_add_u32 s{sMb}, s{sMb}, {L_WO}")
        a(f"s_mul_i32 s{sWo}, s{sM0}, {g.rot*81920}")
        a(f"s_sub_u32 s{sXo}, s{sCG}, s{sM0}"); a(f"s_mul_i32 s{sXo}, s{sXo}, 81920")
        def wo(lim):
            lp = g.lab("wo")
            a.lab(lp)
            a(f"s_mov_b32 m0, s{sMb}")
            a(f"s_add_u32 s{sTmp}, s{sWo}, s{sXo}")
            a(f"buffer_load_dwordx4 v{vWO}, {R(rWO)}, s{sTmp} offen lds")
            a(f"s_add_u32 s{sWo}, s{sWo}, 40960"); a(f"s_cmp_eq_u32 s{sWo}, 409600"); a(f"s_cselect_b32 s{sWo}, 0, s{sWo}")
            a(f"s_add_u32 s{sMb}, s{sMb}, 4096")
            a(f"s_cmp_lt_u32 s{sMb}, {L_WO + lim*4096}"); a(f"s_cbranch_scc1 {lp}")
        n1 = g.opt.get("wo1", 5)
        wo(n1)
        if g.opt.get("touch", 1):
            a(f"buffer_load_dword v6, v7, {R(rWS)}, 0 offen sc1")
        a(f"s_waitcnt vmcnt({n1 + (1 if g.opt.get('touch', 1) else 0)})")
        a("s_barrier")
        wo(10)
        a(f"s_sub_u32 s{sXo}, 409600, s{sXo}")
        g.stamp(2)
        a("s_waitcnt lgkmcnt(0)")
        g.emit(g.arr_check("l", sT, sTmp, 8, 10))
        g.s2_setup2()
        a(f"s_mul_i32 s84, s{sS1}, {5*7168}"); a(f"s_add_u32 s84, s84, {L_QK}")
        a(f"s_and_b32 s{sT}, s{sLW}, 1"); a(f"s_mul_i32 s82, s{sT}, 1536"); a(f"s_lshl_b32 s83, s{sT}, 9"); a(f"s_add_u32 s83, s83, 3584")
        a(f"s_mov_b32 s{sSlot}, {CSC}"); a(f"s_mov_b32 s{sT}, {CSC}")
        a(f"s_mov_b32 s{sCnt}, 0")
        a(f"s_cmp_eq_u32 s{sNeed}, s{sM0}")
        g.stamp(5)
        a("s_barrier")
        g.stamp(6)
        a("s_cbranch_scc1 L_sdone")
        a.lab("L_spoll")
        a(f"buffer_load_dword v42, v41, {R(rWS)}, 0 offen sc1")
        a(f"s_add_u32 s{sCnt}, s{sCnt}, 1"); a(f"s_cmp_lt_u32 s{sCnt}, {SPIN}")
        a("s_waitcnt vmcnt(0)")
        a("v_cmp_eq_u32 vcc, 0, v42"); a("s_cbranch_scc0 L_sok"); a("s_cbranch_vccnz L_spoll")
        a.lab("L_sok")
        for so, n in ((82, 2), (83, 3)):
            a(f"s_add_u32 m0, s84, s{so}"); a(f"s_add_u32 s{sTmp}, s{sS0}, s{so}")
            for e in range(n): a(f"buffer_load_dwordx4 v{g.vL16}, {R(rWS)}, s{sTmp} offen offset:{1024*e} sc1 lds")
        g.stamp(4)
        a.lab("L_sdone")
        if g.opt.get("wo2", 0) == 0:
            a("s_waitcnt vmcnt(0)")
        else:
            wo(10 + g.opt["wo2"]); a(f"s_waitcnt vmcnt({g.opt['wo2']})")
        g.wo = wo
        a("s_branch L_units")

    sLd = 66
    def l_setup(g):
        a = g.a
        sLW, sTmp, sS0, sS1, sNeed = 64, 68, 69, 70, 71
        a(f"s_lshl_b32 s{sTmp}, s{sLW}, 3")
        a(f"v_add_u32 v5, s{sTmp}, v1")
        a("v_mul_u32_u24 v5, 1280, v5")
        a(f"v_add_u32 v43, v5, v4")
        a(f"s_lshl2_add_u32 s{sTmp}, s{sCG}, s{sLW}"); a(f"s_mul_i32 s{sTmp}, s{sTmp}, 3584"); a(f"s_lshl_b32 s{sT}, s{sTB}, 19"); a(f"s_add_u32 s{sTmp}, s{sTmp}, s{sT}")
        a("v_min_u32 v7, 27, v0"); a(f"v_lshl_add_u32 v7, v7, 7, s{sTmp}")
        g.fl_addr()
        a(f"s_lshr_b32 s{sS1}, s{sLW}, 1")
        a(f"s_mul_i32 s{sTmp}, s{sS1}, 3")
        g.unit_setup(sTmp)
        a(";cut")
        for r in range(g.B1, g.B1+24, 2): a(f"v_mov_b64 {V(r,2)}, 0")
        a(";cut")
        a(f"s_lshl1_add_u32 s{sS0}, s{sCG}, s{sS1}"); a(f"s_mul_i32 s{sS0}, s{sS0}, 7168"); a(f"s_lshl_b32 s{sT}, s{sTB}, 19"); a(f"s_add_u32 s{sS0}, s{sS0}, s{sT}")
        a(f"s_lshl2_add_u32 s{sT}, s{sS1}, s{g.sFL}"); a(f"v_mov_b32 v41, s{sT}")
        a(f"s_lshl_b32 s{sNeed}, s{sS1}, 2")
        a(";cut")
        g.emit(g.unit_late()[:-2])
        a(";cut")
        g.s2_setup()

    AQ, AK, AV = 4, 32, 60
    XA = (88, 128); WB = (116, 156)
    VL, VR = 168, 184
    vXA0, vXA1, vWB, vO = 248, 249, 250, 125
    mSend, mCL = 64, 66
    sXg, sXf, sPL, sPR, sKey, sD = 80, 81, 82, 83, 75, 79

    def cwave(g):
        a = g.a
        a.lab("L_cwave")
        sM, sAL, sAR, sU = 74, 75, 78, 79
        a("v_and_b32 v1, 15, v0")
        a("v_lshrrev_b32 v2, 4, v0")
        for r in range(4): a(f"v_mov_b32 v{88+r}, 0")
        a("v_lshlrev_b32 v12, 7, v0")
        g.ptrs(); g.ptrs2(); g.fl_addr(); g.fa_addr(g.sFA)
        a(f"s_mul_i32 s{sJ}, s{sCG}, 14336"); a(f"s_lshl_b32 s{sT}, s{sTB}, 19"); a(f"s_add_u32 s{sJ}, s{sJ}, s{sT}")
        a(f"s_cmp_eq_u32 s{sW}, 0"); a("s_cbranch_scc0 L_ch1")
        a("s_mov_b64 exec, 3")
        a(f"buffer_store_dwordx4 v[88:91], v12, {R(rWS)}, s{g.sFL} offen sc1")
        a(f"s_cmp_eq_u32 s{sM0}, 0"); a("s_cbranch_scc0 L_ch3")
        a("s_mov_b64 exec, -1")
        a("v_lshlrev_b32 v13, 4, v0")
        a(f"buffer_store_dwordx4 v[88:91], v13, {R(rWS)}, s{g.sFA} offen sc1")
        a("s_branch L_ch3")
        a.lab("L_ch1")
        if g.opt.get("tlb", 1):
            a(f"s_cmp_eq_u32 s{sW}, 3"); a("s_cbranch_scc0 L_ch3")
            a(f"s_max_i32 s{sT}, s{sI0}, 0"); a(f"s_mul_i32 s{sT}, s{sT}, 2560"); a(f"v_mul_u32_u24 v13, {100*2560}, v0")
            a("s_mov_b64 exec, 3")
            a(f"buffer_load_dword v{g.XA[1]}, v13, {R(rOUT)}, s{sT} offen sc1")
        a.lab("L_ch3")
        a("s_mov_b64 exec, -1")
        a(f"s_add_u32 s{sM}, s{sW}, 5"); a(f"s_sub_u32 s{sM}, s{sM}, s{sM0}")
        a(f"s_cmp_ge_u32 s{sM}, 5"); a(f"s_cselect_b32 s{sT}, 5, 0"); a(f"s_sub_u32 s{sM}, s{sM}, s{sT}")
        a(f"s_cmp_gt_u32 s{sW}, s{sM0}"); a(f"s_subb_u32 s{g.sPL}, s{sW}, 0")
        a(f"s_cmp_lt_u32 s{sW}, s{sM0}"); a(f"s_addc_u32 s{g.sPR}, s{sW}, 0")
        a(f"s_min_u32 s{g.sPR}, s{g.sPR}, 3")
        a(f"s_mul_i32 s{g.sPL}, s{g.sPL}, 7168"); a(f"s_mul_i32 s{g.sPR}, s{g.sPR}, 7168")
        a(f"v_cmp_gt_u32 vcc, s{sM}, v2")
        a("v_lshrrev_b32 v12, 2, v1")
        a(f"v_cmp_gt_u32 {S(g.mCL,2)}, s{sM}, v12")
        a(f"s_cmp_eq_u32 s{sW}, 3"); a(f"s_cselect_b64 {S(g.mSend,2)}, -1, 0"); a(f"s_cselect_b32 s{sT}, 2, -1"); a(f"s_cselect_b32 s{sU}, 508, 0")
        a(f"s_xor_b64 {S(g.mSend,2)}, {S(g.mSend,2)}, vcc")
        a(f"s_mul_i32 s{g.sXg}, s{sT}, 7168"); a(f"s_add_u32 s{g.sXg}, s{g.sXg}, s{sJ}")
        a(f"s_add_u32 s{g.sXf}, s{g.sFL}, s{sU}"); a(f"s_sub_u32 s{g.sXf}, s{g.sXf}, 252")
        a(f"s_add_u32 s{sCnt}, s{sW}, 1"); a(f"s_and_b32 s{sCnt}, s{sCnt}, 2"); a(f"s_cselect_b32 s{g.sXf}, 0, s{g.sXf}")
        a(f"s_cmp_eq_u64 {S(g.mSend,2)}, 0"); a(f"s_cselect_b32 s{g.sXf}, 0, s{g.sXf}")
        a(f"s_lshr_b32 s{sU}, s{sW}, 1"); a(f"s_mul_i32 s{sT}, s{sU}, 7168"); a(f"s_add_u32 s{sJ}, s{sJ}, s{sT}")
        a(f"s_and_b32 s{sT}, s{sW}, 1"); a(f"s_lshl_b32 s{sT}, s{sT}, 9"); a(f"s_add_u32 s{sJ}, s{sJ}, s{sT}")
        a(f"s_add_u32 s{sAL}, s{sU}, 1")
        g.unit_setup(sAL)
        a("v_lshrrev_b32 v8, 1, v1"); a("v_xor_b32 v9, v8, v2"); a("v_lshlrev_b32 v9, 4, v9")
        a(f"v_lshl_add_u32 v{g.vXA0}, v1, 7, v9"); a(f"v_xor_b32 v{g.vXA1}, 64, v{g.vXA0}")
        g.tr_addr(g.vWB, f"s{sW}", WOFF)
        g.xres_addr()
        for r in list(range(4, 88, 4)) + list(range(g.VL, g.VL+64, 4)):
            a(f"v_mfma_f32_16x16x32_bf16 {V(r,4)}, v[88:91], v[88:91], 0")

        def reads(buf, ks):
            out = []
            for sec in range(3):
                for ab in range(2):
                    out.append(f"ds_read_b64_tr_b16 {V(g.WB[buf]+4*sec+2*ab,2)}, v{g.vWB} offset:{(ks*3+sec)*4096+ab*2048}")
            for t in range(7):
                out.append(f"ds_read_b128 {V(g.XA[buf]+4*t,4)}, v{g.vXA0 if ks == 0 else g.vXA1} offset:{t*2048}")
            return out
        def mf(buf, t, sec):
            acc = V((g.AQ, g.AK, g.AV)[sec]+4*t, 4); x = V(g.XA[buf]+4*t, 4); w = V(g.WB[buf]+4*sec, 4)
            return f"v_mfma_f32_16x16x32_bf16 {acc}, {x if sec == 2 else w}, {w if sec == 2 else x}, {acc}"
        def phase(buf, fill):
            ms = [mf(buf, t, sec) for t in range(7) for sec in range(3)]
            fill = list(fill)
            for m in ms:
                a(m)
                if fill:
                    f = fill.pop(0)
                    for x in (f if isinstance(f, list) else [f]):
                        if x.endswith(":"): a.lab(x[:-1])
                        else: a(x)
            assert not fill
        a(f"s_cmp_eq_u32 s{sW}, 0"); a("s_cbranch_scc0 L_ch4")
        a(f"s_cmp_eq_u32 s{sM0}, 0"); a(f"s_cselect_b32 s{sT}, 8, 0")
        a(f"v_lshl_add_u32 v1, v0, 7, s{g.sFA}"); a(f"v_mov_b32 v2, s{g.sFL}"); a(f"v_cmp_gt_u32 vcc, s{sT}, v0"); a("v_cndmask_b32_e64 v1, v2, v1, vcc")
        a("s_waitcnt vmcnt(0)")
        a(f"buffer_load_dword v2, v1, {R(rWS)}, 0 offen sc1")
        a("s_branch L_ch5")
        a.lab("L_ch4")
        a("s_waitcnt vmcnt(0)")
        a.lab("L_ch5")
        g.stamp(1)
        a("s_barrier")
        g.stamp(2)
        for r in reads(0, 0): a(r)
        slot = lambda c: (0, 2*SLOT, SLOT)[c % 3]
        for c in range(10):
            if c > 0:
                st = [["s_memtime s[98:99]"]] if g.stamps is True else []
                pre = g.arr_load() if c == 8 else []
                ex = g.arr_check("c", sT, sCnt, 1, g.VL) if c == 9 else []
                phase(1, [["s_barrier"] + pre] + st + reads(0, 0) + ex)
            a("s_waitcnt lgkmcnt(0)")
            book = [[f"s_cmp_eq_u32 s{sCG}, {c}", f"s_cbranch_scc1 L_xres_{c}", f"L_xret_{c}:"]]
            if c < 9:
                d = (slot(c+1) - slot(c)) & 0xffffffff
                book += [f"v_add_u32 v{r}, {d}, v{r}" for r in (g.vXA0, g.vXA1, g.vWB)]
            if c == 4: book.append("s_waitcnt vmcnt(0)")
            if g.stamps is True and c > 0: book.append(f"v_writelane_b32 v253, s98, {32+c}")
            book += [[]] * (7 - len(book)) + ["s_waitcnt lgkmcnt(0)"]
            phase(0, reads(1, 1) + book)
        def t():
            for c in range(10):
                a.lab(f"L_xres_{c}"); a(f"s_call_b64 s[26:27], L_xres"); a(f"s_branch L_xret_{c}")
            a.lab("L_xres"); g.xres_read(); a("s_setpc_b64 s[26:27]")
        g.tail.append(t)
        g.stamp(3)
        PK, PQ = g.XA[0], g.XA[0] + 14
        cv = lambda d, s_, t: [f"v_cvt_pk_bf16_f32 v{d+2*t+h}, v{s_+4*t+2*h}, v{s_+4*t+2*h+1}" for h in range(2)]
        pre = [[f"s_load_dword s{g.sKey}, {S(rDBG,2)}, {62*4}"], [f"s_mul_i32 s{sCnt}, s{sW}, 7168", f"s_add_u32 s{sCnt}, s{sCnt}, {L_QK+7168}"],
               ["v_lshlrev_b32 v1, 3, v0", f"v_add_u32 v2, s{sCnt}, v1"], [f"s_add_u32 s{sCnt}, s{g.sXg}, 3584"]]
        late = g.unit_late()
        for t in range(7):
            a(mf(1, t, 1))
            if pre: g.emit([pre.pop(0)])
            else: a(late.pop(0)); a(late.pop(0))
        for t in range(7):
            a(mf(1, t, 0)); g.emit(cv(PK, g.AK, t))
            if t > 0: a(f"ds_write_b64 v2, {V(PK+2*t-2,2)} offset:{3584+(t-1)*512}")
        a(f"ds_write_b64 v2, {V(PK+12,2)} offset:{3584+6*512}")
        a(f"s_cmp_eq_u32 s{g.sXf}, 0"); a("s_cbranch_scc0 L_send")
        for t in range(7):
            a(mf(1, t, 2)); g.emit(cv(PQ, g.AQ, t))
            a(f"ds_write_b64 v2, {V(PQ+2*t,2)} offset:{t*512}")
        g.emit(late)
        a.lab("L_sent")
        def t():
            a.lab("L_send")
            for t in range(7): g.emit(cv(PQ, g.AQ, t))
            a(f"s_mov_b64 exec, {S(g.mSend,2)}")
            a(f"s_cmp_eq_u32 s{g.sLoc}, 0"); a("s_cbranch_scc1 L_send1")
            def st(fl):
                for t in range(7):
                    a(f"buffer_store_dwordx2 {V(PK+2*t,2)}, v1, {R(rWS)}, s{sCnt} offen offset:{t*512} {fl}")
                    a(f"buffer_store_dwordx2 {V(PQ+2*t,2)}, v1, {R(rWS)}, s{g.sXg} offen offset:{t*512} {fl}")
            st("")
            a.lab("L_send2")
            a("s_mov_b64 exec, -1")
            for t in range(7):
                a(mf(1, t, 2)); a(f"ds_write_b64 v2, {V(PQ+2*t,2)} offset:{t*512}")
            g.emit(late)
            if g.opt.get("flagpre", 1): g.flagstore("s", g.sXf)
            a("s_branch L_sent")
            a.lab("L_send1"); st("sc1"); a("s_branch L_send2")
        g.tail.append(t)
        g.stamp(4)
        a("s_waitcnt lgkmcnt(0)")
        g.stamp(5)
        a("s_barrier")
        g.stamp(6)

    def flagstore(g, nm, sOff, off=0, wait=True):
        a = g.a
        a("v_mov_b32 v1, 0"); a("v_mov_b32 v3, 1")
        a(f"s_cmp_eq_u32 s{g.sLoc}, 0")
        a("s_mov_b64 exec, 1")
        if wait: a("s_waitcnt vmcnt(0)")
        a(f"s_cbranch_scc1 L_fs_{nm}")
        a(f"buffer_store_dword v3, v1, {R(rWS)}, s{sOff} offen offset:{off}")
        a.lab(f"L_fr_{nm}")
        a("s_mov_b64 exec, -1")
        def t():
            a.lab(f"L_fs_{nm}")
            a(f"buffer_store_dword v3, v1, {R(rWS)}, s{sOff} offen offset:{off} sc1")
            a(f"s_branch L_fr_{nm}")
        g.tail.append(t)

    def tr_addr(g, dst, win, base, t0=9, t1=10, hmul=1024):
        a = g.a
        a(f"v_bfe_u32 v{t0}, v0, 3, 2")
        if win != "0": a(f"v_xor_b32 v{t0}, {win}, v{t0}")
        a(f"v_lshlrev_b32 v{t0}, 5, v{t0}")
        a(f"v_and_b32 v{t1}, 3, v0"); a(f"v_lshl_add_u32 v{t0}, v{t1}, 3, v{t0}")
        a(f"v_lshrrev_b32 v{t1}, 2, v0"); a(f"v_lshl_add_u32 v{t0}, v{t1}, 7, v{t0}")
        if hmul == 2048:
            a(f"v_and_b32 v{t1}, 32, v0"); a(f"v_lshl_add_u32 v{t0}, v{t1}, 5, v{t0}")
        a(f"v_add_u32 v{dst}, {base}, v{t0}")

    def poison_max(g, base, n, t, cont=False):
        a = g.a
        k = 0
        if not cont:
            a(f"v_max3_u32 v{t}, v{base}, v{base+1}, v{base+2}"); k = 3
        while k + 1 < n:
            a(f"v_max3_u32 v{t}, v{t}, v{base+k}, v{base+k+1}"); k += 2
        if k < n: a(f"v_max_u32 v{t}, v{t}, v{base+k}")

    def softmax(g):
        a = g.a
        a.lab("L_units")
        A, B, M = 4, 20, 36
        A1, A2, vK = 128, 144, g.vK
        sc = S(sSlot, 2)
        for u in range(4): a(f"ds_read_b64 {V(A2+2*u,2)}, v{vK+2+(u==0)} offset:{3584+u*512}")
        a("s_mov_b32 exec_lo, 0xff0000ff"); a("s_mov_b32 exec_hi, 0")
        for u in range(4): a(f"ds_read_b64 {V(g.B2+2*u,2)}, v{g.vQ2} offset:{u*512}")
        a("s_mov_b32 exec_lo, 0x00ff00ff"); a("s_mov_b32 exec_hi, exec_lo")
        for u in range(4): a(f"ds_read_b64 {V(g.B1+4*u,2)}, v{g.vQ1} offset:{u*512}")
        a("s_not_b64 exec, exec")
        for u in range(4): a(f"ds_read_b64 {V(g.B1+4*u+2,2)}, v{g.vQ1} offset:{u*512}")
        a("s_mov_b64 exec, -1")
        for u in range(4):
            if u == 0: a("s_waitcnt lgkmcnt(8)")
            a(f"v_mfma_f32_16x16x16_bf16 {V(A+4*u,4)}, {V(A2+2*u,2)}, {V(g.B2+2*u,2)}, {V(g.BI0 if u == 0 else g.BI,4)}")
            a(f"ds_read_b64 {V(A1+4*u,2)}, v{vK+(u==0)} offset:{3584+u*512}")
            a(f"ds_read_b64 {V(A1+4*u+2,2)}, v{g.vQ1} offset:{3584+u*512}")
        a(f"s_cmp_ge_u32 s{sW}, 4"); a("s_cbranch_scc1 L_u2")
        if not g.opt.get("flagpre", 1):
            a(f"s_cmp_eq_u32 s{g.sXf}, 0"); a("s_cbranch_scc1 L_nosig")
            g.flagstore("s", g.sXf)
            a.lab("L_nosig")
        a.lab("L_u2")
        for u in range(4):
            a(f"s_waitcnt lgkmcnt({6-2*u+u})")
            a(f"v_mfma_f32_16x16x32_bf16 {V(A+4*u,4)}, {V(A1+4*u,4)}, {V(g.B1+4*u,4)}, {V(A+4*u,4)}")
            a(f"ds_write_b64 v{vK+4}, {V(vK+6,2)} offset:{u*1024}")
        g.stamp(8)
        for u in range(4): a(f"v_max3_f32 v{M+u}, v{A+4*u}, v{A+4*u+1}, v{A+4*u+2}")
        for u in range(4): a(f"v_max_f32 v{M+u}, v{M+u}, v{A+4*u+3}")
        def red(op):
            a(f"v_permlane32_swap_b32 v{M}, v{M+1}"); a(f"v_permlane32_swap_b32 v{M+2}, v{M+3}")
            a(f"{op} v{M}, v{M}, v{M+1}"); a(f"{op} v{M+2}, v{M+2}, v{M+3}")
            a(f"v_permlane16_swap_b32 v{M}, v{M+2}")
            a(f"{op} v{M}, v{M}, v{M+2}")
        def bc():
            a(f"v_permlane16_swap_b32 v{M}, v{M+2}")
            a(f"v_mov_b32 v{M+1}, v{M}"); a(f"v_mov_b32 v{M+3}, v{M+2}")
            a(f"v_permlane32_swap_b32 v{M}, v{M+1}"); a(f"v_permlane32_swap_b32 v{M+2}, v{M+3}")
        red("v_max_f32")
        a(f"v_mul_f32 v{M+2}, s{sSlot}, v{M}"); a(f"v_mul_f32 v{M}, s{sSlot}, v{M}")
        bc()
        for k in range(0, 16, 2):
            u = k//4; sel = "op_sel_hi:[1,1,0]" if u % 2 == 0 else "op_sel:[0,0,1] op_sel_hi:[1,1,1]"
            a(f"v_pk_fma_f32 {V(A+k,2)}, {V(A+k,2)}, {sc}, {V(M+(u&2),2)} {sel} neg_lo:[0,0,1] neg_hi:[0,0,1]")
        for k in range(16): a(f"v_exp_f32 v{A+k}, v{A+k}")
        for u in range(4): a(f"v_pk_add_f32 {V(B+2*u,2)}, {V(A+4*u,2)}, {V(A+4*u+2,2)}")
        for u in range(4): a(f"v_add_f32 v{M+u}, v{B+2*u}, v{B+2*u+1}")
        red("v_add_f32")
        a(f"v_rcp_f32 v{M+2}, v{M}"); a(f"v_rcp_f32 v{M}, v{M}")
        bc()
        for u in range(4):
            sel = "op_sel_hi:[1,0]" if u % 2 == 0 else "op_sel:[0,1] op_sel_hi:[1,1]"
            for k in (0, 2): a(f"v_pk_mul_f32 {V(A+4*u+k,2)}, {V(A+4*u+k,2)}, {V(M+(u&2),2)} {sel}")
            for h in range(2): a(f"v_cvt_pk_bf16_f32 v{B+2*u+h}, v{A+4*u+2*h}, v{A+4*u+2*h+1}")
            a(f"ds_write_b64 v{g.vSP}, {V(B+2*u,2)} offset:{u*1024}")
        a(f"s_cmp_ge_u32 s{sW}, 4"); a("s_cbranch_scc1 L_lbeta")
        g.stamp(7)
        for dst, ex in ((g.VL, f"s_mov_b64 exec, {S(g.mCL,2)}"), (g.VR, "s_not_b64 exec, exec")):
            a(ex)
            for t in range(7):
                for h in range(2): a(f"v_cvt_pk_bf16_f32 v{dst+2+2*t+h}, v{g.AV+4*t+2*h}, v{g.AV+4*t+2*h+1}")
        a("s_mov_b64 exec, -1")
        PL, PR = 88, 128
        a(f"s_cmp_eq_u32 s{g.sKey}, 0"); a("s_cbranch_scc1 L_keypoll")
        a.lab("L_keyok")
        def t():
            a.lab("L_keypoll")
            a(f"v_mov_b32 v1, {62*4}"); a(f"s_mov_b32 s{sCnt}, 0")
            a.lab("L_keypoll2")
            a(f"buffer_load_dword v2, v1, {R(rDBG)}, 0 offen sc1")
            a(f"s_add_u32 s{sCnt}, s{sCnt}, 1")
            a("s_waitcnt vmcnt(0)")
            a(f"v_readfirstlane_b32 s{g.sKey}, v2")
            a(f"s_cmp_lt_u32 s{sCnt}, {SPIN}"); a("s_cbranch_scc0 L_keyok")
            a(f"s_cmp_eq_u32 s{g.sKey}, 0"); a("s_cbranch_scc0 L_keyok")
            a("s_sleep 4"); a("s_branch L_keypoll2")
        g.tail.append(t)
        a("v_and_b32 v77, 15, v0"); a("v_lshlrev_b32 v1, 2, v77")
        a(f"s_lshl_b32 s{g.sD}, s{sW}, 5"); a(f"s_add_u32 s{g.sD}, s{g.sD}, s{sI0}")
        a(f"s_lshl_b32 s67, s{sP}, 10"); a(f"s_add_u32 s67, s67, s{g.sD}"); a(f"s_lshl_b32 s67, s67, 2"); a(f"s_add_u32 s67, s67, {WS_G}")
        for q in range(2):
            a(f"v_add3_u32 v2, s{g.sD}, v77, {16*q}"); a("v_and_b32 v2, 0x400, v2"); a(f"v_lshl_or_b32 v{78+q}, v2, 21, v1")
            a(f"buffer_load_dword v{86+q}, v{78+q}, {R(rWS)}, s67 offen offset:{64*q} sc1")
        g.keyidx(g.sKey, 65)
        a(f"s_lshr_b32 s{sT}, s65, 1"); a(f"s_sub_u32 s{g.sD}, s{sT}, s{g.sD}")
        a(f"s_and_b32 s{sT}, s65, 1"); a(f"s_cmp_eq_u32 s{sT}, s{sP}"); a(f"s_cselect_b32 s{g.sD}, s{g.sD}, 64")
        a(f"v_and_b32 v2, 32, v0"); a(f"v_lshl_add_u32 v{g.vO}, v2, 4, v{g.vL16}")
        a(f"v_mov_b32 v83, {L_CNT}"); a(f"ds_write_b32 v83, v{g.vK+6}")
        a(f"s_lshl2_add_u32 s{g.sFA}, s{sM0}, s{g.sFA}"); a("v_lshlrev_b32 v84, 6, v0"); a("v_mov_b32 v85, 1")
        a(f"v_add_u32 v1, s{g.sPL}, v{g.vL16}"); a(f"v_add_u32 v2, s{g.sPR}, v{g.vL16}")
        a(f"s_add_u32 s{sT}, s{sJ}, 4096"); a(f"s_add_u32 s68, s{sJ}, {WS_OG}"); a(f"s_add_u32 s69, s{sT}, {WS_OG}")
        a("s_waitcnt lgkmcnt(0)")
        a("s_barrier")
        g.stamp(9)
        for t in range(7):
            a(f"ds_read_b128 {V(PL+4*t,4)}, v1 offset:{L_P+t*1024}")
            a(f"ds_read_b128 {V(PR+4*t,4)}, v2 offset:{L_P+t*1024}")
        OP = 60
        def fin(j):
            for t in (2*j, min(2*j+1, 6)):
                if t == 6 and j == 3 and False: pass
            for q, t in enumerate((2*j, min(2*j+1, 6))):
                for h in range(2): a(f"v_cvt_pk_bf16_f32 v{OP+4*j+2*q+h}, v{4+4*t+2*h}, v{4+4*t+2*h+1}")
            for h in range(2): a(f"v_permlane32_swap_b32 v{OP+4*j+h}, v{OP+4*j+2+h}")
            if j == 3: a("s_mov_b32 exec_hi, 0")
            a(f"buffer_store_dwordx4 {V(OP+4*j,4)}, v{g.vO}, {R(rWS)}, s{sJ if j < 2 else sT} offen offset:{(j%2)*2048}")
        for t in range(7):
            a(f"s_waitcnt lgkmcnt({12-2*t})")
            a(f"v_mfma_f32_16x16x32_bf16 {V(4+4*t,4)}, {V(g.VL+2*t,4)}, {V(PL+4*t,4)}, 0")
            a(f"v_mfma_f32_16x16x32_bf16 {V(4+4*t,4)}, {V(g.VR+2*t,4)}, {V(PR+4*t,4)}, {V(4+4*t,4)}")
            if t == 4: fin(0)
            if t == 6: fin(1)
        fin(2); fin(3)
        a("s_mov_b32 exec_hi, -1")
        g.stamp(10)
        a("s_branch L_cfin")
        a.lab("L_lbeta")
        a("s_waitcnt lgkmcnt(0)")
        if g.opt.get("wo2", 0) < 10 and g.opt.get("wopre", 1): g.wo(20)
        a("s_barrier")
        g.stamp(9)
        if g.opt.get("wo2", 0) < 10 and not g.opt.get("wopre", 1): g.wo(20)

    vA, vB, vE = 224, 232, 236
    sO = 72
    sOut = 82
    def s2_setup2(g):
        a = g.a
        sB5, sR = 82, 83
        a(f"s_sub_u32 s{sB5}, s{sCG}, s{sM0}"); a(f"s_mul_i32 s{sB5}, s{sB5}, 14336")
        a(f"s_cmp_eq_u32 s{g.sLoc}, 0"); a(f"s_cselect_b32 s{sT}, {WS_OG}, 0"); a(f"s_add_u32 s{sT}, s{sT}, s{sB5}")
        a(f"s_sub_u32 s{sCnt}, {WS_OG+5*14336}, s{sB5}")
        a(f"s_mul_i32 s{sR}, s{sM0}, {g.rot*14336}")
        for j in range(5):
            a(f"s_add_u32 s{g.sO+j}, s{sT}, s{sR}"); a(f"s_add_u32 s{g.sO+5+j}, s{sCnt}, s{sR}")
            if j < 4: a(f"s_add_u32 s{sR}, s{sR}, 14336"); a(f"s_cmp_eq_u32 s{sR}, {5*14336}"); a(f"s_cselect_b32 s{sR}, 0, s{sR}")
    def s2_setup(g):
        a = g.a
        sLW, sGi = 64, 84
        a(f"s_lshl_b32 s{sT}, s{sTB}, 19"); a(f"s_lshl_b32 s{sCnt}, s{sLW}, 11"); a(f"s_add_u32 s{sT}, s{sT}, s{sCnt}")
        a(f"v_add_u32 v{g.vA}, s{sT}, v{g.vL16}")
        a(f"s_cmp_eq_u32 s{sLW}, 3"); a(f"s_cselect_b32 s{sT}, 0x80000000, 0"); a(f"s_add_u32 s{sT}, s{sT}, 1024")
        a(f"v_add_u32 v{g.vA+1}, s{sT}, v{g.vA}")
        for q in range(2): a(f"v_add_u32 v{g.vA+2+q}, 7168, v{g.vA+q}")
        g.tr_addr(g.vB, "0", L_WO, 8, 9, hmul=2048)
        for tau in range(1, 4): a(f"v_xor_b32 v{g.vB+tau}, {32*tau}, v{g.vB}")
        g.fa_addr(22)
        a("v_min_u32 v8, 4, v0"); a(f"v_lshl_add_u32 v{g.vA+4}, v8, 2, s22")
        a(";cut")
        a(f"s_mul_i32 s{sT}, s{sLW}, 4608"); a(f"s_add_u32 s{sT}, s{sT}, {L_EP}")
        a("v_and_b32 v8, 15, v0"); a("v_mul_u32_u24 v8, 144, v8"); a("v_lshrrev_b32 v9, 4, v0"); a("v_lshl_add_u32 v8, v9, 3, v8"); a(f"v_add_u32 v{g.vE}, s{sT}, v8")
        a("v_mul_u32_u24 v8, 144, v1"); a("v_lshl_add_u32 v8, v2, 4, v8"); a(f"v_add_u32 v{g.vE+1}, s{sT}, v8")
        a(f"s_mul_i32 s{sT}, s{sLW}, 9216"); a(f"s_add_u32 s{sT}, s{sT}, {L_BB}"); a(f"v_add_u32 v{g.vE+2}, s{sT}, v{g.vL16}")
        a("v_mul_u32_u24 v8, 2560, v1"); a(f"v_lshl_add_u32 v{g.vE+3}, v2, 4, v8")
        a(";cut")
        a(f"s_lshl_b32 s{sGi}, s{sLW}, 5"); a(f"s_add_u32 s{sT}, s{sGi}, s{sI0}")
        a(f"s_lshl1_add_u32 s{sT}, s{sT}, s{sP}"); a(f"s_mul_i32 s{sT}, s{sT}, 1280"); a(f"s_lshl_b32 s{sCnt}, s{sCG}, 7"); a(f"s_add_u32 s{sT}, s{sT}, s{sCnt}")
        a(f"s_cmp_eq_u32 s{sJB}, 4"); a(f"s_cselect_b32 s{sCnt}, 0, 8"); a(f"s_add_u32 s{sCnt}, s{sCnt}, 96")
        a(f"s_sub_u32 s{sGi}, s{sGi}, 8")
        for e in range(4):
            a(f"s_cmp_lt_u32 s{sGi}, s{sCnt}"); a(f"s_cselect_b32 s{g.sOut}, s{sT}, 0x80000000")
            a(f"v_add_u32 v{(229,230,231,250)[e]}, s{g.sOut}, v{g.vE+3}")
            if e < 3: a(f"s_add_u32 s{sGi}, s{sGi}, 8"); a(f"s_add_u32 s{sT}, s{sT}, {8*2560}")

    def stage2(g):
        a = g.a
        a.lab("L_s2")
        D = g.depth
        NA = D + 2; NB = g.opt.get("nb", 8)
        AC, AF = 4, 36
        BF = AF + 8*NA
        assert BF + 16*NB <= 224, (BF, NB)
        vA, vB, vE, sO = g.vA, g.vB, g.vE, g.sO
        af = lambda k, q: AF + 8*(k % NA) + 4*q
        bf = lambda k: BF + 16*(k % NB)
        def aload(k): return [f"buffer_load_dwordx4 {V(af(k,q),4)}, v{vA+2*(k%2)+q}, {R(rWS)}, s{sO+k//2} offen sc1" for q in range(2)]
        def breads(k):
            return [[f"ds_read_b64_tr_b16 {V(bf(k)+4*tau+2*ab,2)}, v{vB+tau} offset:{(k - (NB if k >= NB else 0))*4096+ab*1024}"] for tau in range(4) for ab in range(2)]
        for k in range(NB): g.emit(breads(k))
        for tau in range(4): a(f"v_add_u32 v{vB+tau}, {NB*4096}, v{vB+tau}")
        a(f"s_mov_b32 s{sCnt}, 0"); a(f"s_add_u32 s{g.sFL}, s{g.sFL}, 128")
        a("s_add_u32 s23, s22, 1024")
        g.stamp(10)
        a("s_waitcnt vmcnt(0)")
        a("s_barrier")
        g.stamp(11)
        for _ in range(g.opt.get("pdelay", 0)): a("s_nop 15")
        a.lab("L_opoll")
        a(f"s_load_dwordx8 s[64:71], {S(rWS,2)}, s22")
        a("s_add_u32 s22, s22, 64")
        if g.stamps: a(f"s_add_u32 s{sCnt}, s{sCnt}, 1")
        a("s_waitcnt lgkmcnt(0)")
        a("s_and_b64 s[64:65], s[64:65], s[66:67]"); a("s_and_b32 s64, s64, s65"); a("s_and_b32 s64, s64, s68"); a("s_cbranch_scc0 L_oretry")
        a.lab("L_ook")
        def t():
            a.lab("L_oretry")
            a("s_cmp_lt_u32 s22, s23"); a("s_cbranch_scc1 L_opoll")
            a.lab("L_opoll2")
            a(f"buffer_load_dword v2, v{vA+4}, {R(rWS)}, 0 offen sc1")
            a(f"s_add_u32 s{sCnt}, s{sCnt}, 1"); a(f"s_cmp_lt_u32 s{sCnt}, {SPIN}")
            a("s_waitcnt vmcnt(0)")
            a("v_cmp_eq_u32 vcc, 0, v2"); a("s_cbranch_scc0 L_ook"); a("s_cbranch_vccnz L_opoll2")
            a("s_branch L_ook")
        g.tail.append(t)
        g.stamp(12)
        for j in range(D+1):
            for x in aload(j): a(x)
        a(f"s_waitcnt vmcnt({2*D}) lgkmcnt(0)")
        g.stamp(7)
        kp = 10 - D - 1
        BBk = 20 - NB
        BBr = bf(BBk)
        assert bf(BBk+1) == BBr + 16
        GG = 240
        pend = []
        for k in range(20):
            tailf = []
            if k == kp - g.opt.get("pollahead", 3): tailf += [[f"s_load_dword s{g.sCur}, {S(rWS,2)}, s{g.sFL} glc"]]
            if k == kp:
                a("s_waitcnt lgkmcnt(0)")
                tailf += [[f"s_cmp_eq_u32 s{g.sCur}, 5", "s_cbranch_scc0 L_mb", "L_mb_ret:"]]
                def t():
                    a.lab("L_mb")
                    a(f"s_load_dword s{g.sCur}, {S(rWS,2)}, s{g.sFL} glc")
                    a(f"s_add_u32 s{sCnt}, s{sCnt}, 1"); a(f"s_cmp_lt_u32 s{sCnt}, {SPIN}")
                    a("s_waitcnt lgkmcnt(0)")
                    a("s_cbranch_scc0 L_mb_ret")
                    a(f"s_cmp_eq_u32 s{g.sCur}, 5"); a("s_cbranch_scc0 L_mb")
                    a("s_branch L_mb_ret")
                g.tail.append(t)
            if k + D + 1 < 20: tailf += [[x] for x in aload(k+D+1)]
            if 1 <= k and k-1+NB < 20: pend += breads(k-1+NB)
            if k == g.opt.get("kg", 9): tailf = [["s_barrier"]] + tailf
            if k == 14: pend += [[f"ds_read_b128 {V(BBr+4*j,4)}, v{vE+2} offset:{1024*j}"] for j in range(8)] + [[f"ds_read_b64 v[{GG}:{GG+1}], v{vE+2} offset:8192"]]
            nrd = g.opt.get("nrd", 6)
            rd = pend[:nrd]; pend = pend[nrd:]
            slots = [[] for _ in range(8)]
            for j, grp in enumerate(rd): slots[j] += grp
            for j, grp in enumerate(tailf): slots[8-len(tailf)+j] += grp
            n = 0
            for q in range(2):
                for tau in range(4):
                    acc = V(AC+16*q+4*tau, 4)
                    a(f"v_mfma_f32_16x16x32_bf16 {acc}, {V(bf(k)+4*tau,4)}, {V(af(k,q),4)}, {'0' if k == 0 else acc}")
                    for x in slots[n]:
                        if x.endswith(":"): a.lab(x[:-1])
                        else: a(x)
                    n += 1
            if g.stamps is True and k % 2 == 1 and k < 19: a("s_memtime s[26:27]")
            if g.stamps is True and k % 2 == 0 and k > 0: a(f"v_writelane_b32 v253, s26, {48 + k//2}")
            if k + 1 < 20:
                a(f"s_waitcnt vmcnt({2*min(D, 18-k)})" + (" lgkmcnt(6)" if k + 1 >= NB else ""))
        assert not pend
        g.stamp(13)
        a("s_waitcnt lgkmcnt(0)")
        for q in range(2):
            sel = "op_sel_hi:[1,0,1]" if q == 0 else "op_sel:[0,1,0] op_sel_hi:[1,1,1]"
            for tau in range(4):
                b = BBr + 16*q + 4*tau
                for k in (0, 2): a(f"v_pk_fma_f32 {V(b+k,2)}, {V(AC+16*q+4*tau+k,2)}, {V(GG,2)}, {V(b+k,2)} {sel}")
                for h in range(2): a(f"v_cvt_pk_bf16_f32 v{b+h}, v{b+2*h}, v{b+2*h+1}")
                a(f"ds_write_b64 v{vE}, {V(b,2)} offset:{q*2304+32*tau}")
            for e in range(2): a(f"ds_read_b128 {V(AF+8*q+4*e,4)}, v{vE+1} offset:{q*2304+e*8*144}")
        for e in range(4):
            a(f"s_waitcnt lgkmcnt({(7,6,1,0)[e]})")
            a(f"buffer_store_dwordx4 {V(AF+4*e,4)}, v{(229,230,231,250)[e]}, {R(rOUT)}, 0 offen {g.opt.get('outfl','')}")
        g.stamp(14)
        if g.stamps:
            a("s_waitcnt vmcnt(0)"); g.stamp(15)
            a(f"v_writelane_b32 v253, s{sCnt}, 29")
        if g.opt.get("amp"):
            r = g.sreg(g.opt.get("ampk", 15))
            a("s_waitcnt lgkmcnt(0)")
            a(f"s_sub_u32 s60, s{r}, s86"); a(f"s_mul_i32 s60, s60, {g.opt['amp']}")
            a.lab("L_amp")
            a("s_sleep 2"); a("s_memtime s[62:63]"); a("s_waitcnt lgkmcnt(0)")
            a("s_sub_u32 s61, s62, s86"); a("s_cmp_lt_u32 s61, s60"); a("s_cbranch_scc1 L_amp")
        g.dump_stamps(16)
        a("s_endpgm")

    def argmax(g, v, sKey, sTmp):
        a = g.a
        a("v_cmp_gt_u32 vcc, 56, v0")
        a(f"v_cndmask_b32_e64 v{v}, 0, v{v}, vcc")
        for d in ("quad_perm:[1,0,3,2]", "quad_perm:[2,3,0,1]", "row_half_mirror", "row_mirror"):
            a(f"v_max_u32_dpp v{v}, v{v}, v{v} {d} row_mask:0xf bank_mask:0xf")
        a(f"v_readlane_b32 s{sKey}, v{v}, 0"); a(f"v_readlane_b32 s{sTmp}, v{v}, 16")
        a(f"s_max_u32 s{sKey}, s{sKey}, s{sTmp}")
        a(f"v_readlane_b32 s{sTmp}, v{v}, 32"); a(f"s_max_u32 s{sKey}, s{sKey}, s{sTmp}")
        a(f"v_readlane_b32 s{sTmp}, v{v}, 48"); a(f"s_max_u32 s{sKey}, s{sKey}, s{sTmp}")
    def keyidx(g, sKey, sIdx):
        g.a(f"s_andn2_b32 s{sIdx}, 0x7ff, s{sKey}")

    def bf16r(g, r):
        g.a(f"v_cvt_pk_bf16_f32 v{r}, v{r}, v{r}"); g.a(f"v_and_b32 v{r}, 0xffff0000, v{r}")
    def sigmoid(g, d, s):
        a = g.a
        a(f"v_mul_f32 v{d}, {f32(-math.log2(math.e))}, v{s}")
        a(f"v_exp_f32 v{d}, v{d}")
        a(f"v_add_f32 v{d}, 1.0, v{d}")
        a(f"v_rcp_f32 v{d}, v{d}")

    def cfin(g):
        a = g.a
        a.lab("L_cfin")
        sKey, sD = g.sKey, g.sD
        Y, BB = 128, 88
        def yloads():
            a(f"s_lshl_b32 s{sT}, s{sCG}, 8"); a(f"s_add_u32 s{sT}, s{sT}, {WS_Y}")
            for e in range(14):
                a(f"buffer_load_dwordx4 {V(Y+4*e,4)}, v{80 if e < 13 else 81}, {R(rWS)}, s{sT} offen sc1")
                if e < 13: a(f"s_add_u32 s{sT}, s{sT}, {4*2560}")
        OP = 60
        a(f"s_lshl1_add_u32 s{sT}, s{sW}, s{g.sLoc}"); a(f"s_cmp_eq_u32 s{sT}, 1")
        a("s_waitcnt vmcnt(0)")
        a("s_barrier")
        a("s_cbranch_scc0 L_nosig2")
        a("s_mov_b64 exec, 0xffff")
        a(f"buffer_store_dword v85, v84, {R(rWS)}, s{g.sFA} offen")
        a("s_mov_b64 exec, -1")
        a.lab("L_nosig2")
        for j in range(4):
            if j == 3: a("s_mov_b32 exec_hi, 0")
            a(f"buffer_store_dwordx4 {V(OP+4*j,4)}, v{g.vO}, {R(rWS)}, s{68 if j < 2 else 69} offen offset:{(j%2)*2048} sc1")
        a("s_mov_b32 exec_hi, -1")
        g.stamp(12)
        a("v_lshrrev_b32 v82, 4, v0"); a("v_mul_u32_u24 v80, 2560, v82"); a("v_lshl_add_u32 v80, v77, 4, v80")
        a("v_and_b32 v81, 32, v0"); a("v_lshl_or_b32 v81, v81, 26, v80")
        a(f"s_cmp_lt_u32 s{sD}, 32"); a("s_cbranch_scc1 L_y0")
        a.lab("L_y0ret")
        for k in range(16):
            a(f"v_lshlrev_b32 v{BB+2*k}, 16, v{g.XR+k}")
            a(f"v_and_b32 v{BB+2*k+1}, 0xffff0000, v{g.XR+k}")
        a(f"s_and_b32 s{sT}, s2, 1"); a(f"s_xor_b32 s{sT}, s{sT}, 1"); a(f"s_mul_i32 s{sT}, s{sT}, 1280"); a(f"s_lshl_b32 s68, s{sTB}, 19"); a(f"s_add_u32 s68, s68, s{sT}")
        a(f"s_add_u32 s68, s68, s{rWS}"); a(f"s_addc_u32 s69, s{rWS+1}, 0"); a("s_mov_b32 s70, 1")
        a("s_mov_b64 exec, 1")
        a("s_waitcnt vmcnt(0)")
        a("ds_add_rtn_u32 v2, v83, v85")
        g.stamp(13)
        a("s_waitcnt lgkmcnt(0)")
        a("v_cmp_eq_u32 vcc, 3, v2"); a("s_cbranch_vccz L_nosig3")
        for j in range(5): a(f"s_atomic_add s70, s[68:69], {WS_FL+128+256*j}")
        a(f"s_cmp_eq_u32 s{g.sLoc}, 0"); a("s_cbranch_scc0 L_nosig3")
        a("s_mov_b64 exec, 0xffff")
        a(f"buffer_store_dword v85, v84, {R(rWS)}, s{g.sFA} offen sc1")
        a.lab("L_nosig3")
        a("s_mov_b64 exec, -1")
        a(f"s_mov_b32 s{sCnt}, 0")
        a.lab("L_gchk")
        a("v_max_u32 v2, v86, v87"); a(f"v_cmp_eq_u32 vcc, {POISON}, v2"); a("s_cbranch_vccnz L_gpoll")
        a.lab("L_gok")
        a(f"s_cmp_lt_u32 s{sD}, 32"); a("s_cbranch_scc1 L_y")
        a.lab("L_yret")
        a(f"s_mul_i32 s{sT}, s{sW}, 9216"); a(f"s_add_u32 s{sT}, s{sT}, {L_BB}"); a(f"v_add_u32 v1, s{sT}, v{g.vL16}")
        a("v_sub_f32 v2, 1.0, v86"); a("v_sub_f32 v3, 1.0, v87")
        a("ds_write_b64 v1, v[86:87] offset:8192")
        for j in range(8):
            for k in range(4): a(f"v_mul_f32 v{BB+4*j+k}, v{2+j//4}, v{BB+4*j+k}")
            a(f"ds_write_b128 v1, {V(BB+4*j,4)} offset:{1024*j}")
        g.stamp(11)
        a("s_waitcnt lgkmcnt(0)")
        a("s_barrier")
        g.dump_stamps(14)
        a("s_endpgm")
        a.lab("L_gpoll")
        for q in range(2): a(f"buffer_load_dword v{86+q}, v{78+q}, {R(rWS)}, s67 offen offset:{64*q} sc1")
        a(f"s_add_u32 s{sCnt}, s{sCnt}, 1"); a(f"s_cmp_lt_u32 s{sCnt}, {SPIN}")
        a("s_waitcnt vmcnt(0)")
        a("s_cbranch_scc1 L_gchk")
        a("s_branch L_gok")
        a.lab("L_y0")
        yloads()
        a("s_branch L_y0ret")
        a.lab("L_y")
        a(f"s_and_b32 s{sT}, s{sKey}, 0xffff0000"); a(f"s_cmp_lt_i32 s{sKey}, 0")
        a(f"s_cselect_b32 s{sCnt}, 0, 0x7fff0000")
        a(f"s_xor_b32 s{sT}, s{sT}, s{sCnt}"); a(f"s_xor_b32 s{sT}, s{sT}, 0x80000000")
        a(f"v_mov_b32 v5, s{sT}")
        g.sigmoid(5, 5); g.bf16r(5)
        a(f"s_mov_b32 s{sCnt}, 0")
        a.lab("L_ypoll")
        a("s_waitcnt vmcnt(0)")
        g.poison_max(Y, 56, 6)
        a(f"v_cmp_eq_u32 vcc, {POISON}, v6")
        a("s_cbranch_vccz L_yok")
        a(f"s_add_u32 s{sCnt}, s{sCnt}, 1"); a(f"s_cmp_lt_u32 s{sCnt}, {SPIN}"); a("s_cbranch_scc0 L_yok")
        a("s_sleep 8")
        yloads()
        a("s_branch L_ypoll")
        a.lab("L_yok")
        for e in range(1, 14):
            for k in (0, 2): a(f"v_pk_add_f32 {V(Y+k,2)}, {V(Y+k,2)}, {V(Y+4*e+k,2)}")
        for pl in ("16", "32"):
            for k in range(4): a(f"v_mov_b32 v{Y+4+k}, v{Y+k}")
            for k in range(4): a(f"v_permlane{pl}_swap_b32 v{Y+k}, v{Y+4+k}")
            for k in range(4): a(f"v_add_f32 v{Y+k}, v{Y+k}, v{Y+4+k}")
        for k in range(4):
            g.bf16r(Y+k); a(f"v_mul_f32 v{Y+k}, v{Y+k}, v5"); g.bf16r(Y+k)
        a("v_lshlrev_b32 v1, 2, v82")
        for tau in range(4):
            for k in range(4): a(f"ds_bpermute_b32 v{Y+8+4*tau+k}, v1, v{Y+k} offset:{16*tau}")
        a(f"s_and_b32 s{sT}, s{sD}, 15"); a(f"v_cmp_eq_u32 vcc, s{sT}, v77")
        a(f"s_cmp_lt_u32 s{sD}, 16")
        a("s_waitcnt lgkmcnt(0)")
        a("s_mov_b64 exec, vcc")
        a("s_cbranch_scc0 L_y1")
        for q in range(2):
            if q: a.lab("L_y1")
            for k in range(16): a(f"v_add_f32 v{BB+16*q+k}, v{BB+16*q+k}, v{Y+8+k}")
            a("s_mov_b64 exec, -1")
            a("s_branch L_yret")

    def aux(g):
        a = g.a
        a.lab("L_aux")
        if g.opt.get("noaux"): a("s_endpgm")
        sA, sF, sHalf, sTmp, sU0 = 56, 57, 58, 59, 60
        r1, r2, rD = 64, 68, 72
        rWR, rGW = 76, 80
        rC = 64
        A_D = 81920
        A_WR, A_GW = 122880, 124928
        A_XS = 126976
        A_PRE = 129024
        A_MAX = 129536
        NCLR = 1
        a(f"s_sub_u32 s{sA}, s{sJ}, 25")
        a(f"s_lshr_b32 s{sF}, s{sA}, 1"); a(f"s_lshl3_add_u32 s{sF}, s{sF}, s{sX}")
        a(f"s_and_b32 s{sT}, s{sA}, 1"); a(f"s_lshl1_add_u32 s{sF}, s{sF}, s{sT}")
        a(f"s_add_u32 s{sT}, s{sX}, 48"); a(f"s_cmp_eq_u32 s{sA}, 6"); a(f"s_cselect_b32 s{sF}, s{sT}, s{sF}")
        a("v_lshrrev_b32 v1, 3, v0"); a("v_and_b32 v2, 7, v0")
        a(f"s_cmp_ge_u32 s{sW}, 5"); a("s_cbranch_scc1 L_aux_hi")
        a(f"s_lshr_b32 s{sU0}, s{sX}, 2"); a(f"s_and_b32 s{sT}, s{sX}, 1"); a(f"s_lshl1_add_u32 s{sU0}, s{sU0}, s{sT}")
        a(f"s_mul_i32 s{sTmp}, s{sA}, 5"); a(f"s_add_u32 s{sTmp}, s{sTmp}, s{sW}")
        a(f"s_lshl_b32 s{sU0}, s{sU0}, 8"); a(f"s_lshl3_add_u32 s{sU0}, s{sTmp}, s{sU0}")
        a(f"v_add_u32 v3, s{sU0}, v1")
        a(f"v_lshl_add_u32 v4, v3, 1, s{sP}")
        a("v_mul_u32_u24 v5, 1280, v4"); a("v_lshl_add_u32 v5, v2, 4, v5")
        a(f"s_cmp_lt_u32 s{sTmp}, 32"); a(f"s_cselect_b32 s{sT}, 0, 0x80000000")
        a(f"v_or_b32 v5, s{sT}, v5")
        g.ptrs()
        XD, WD = 8, 48
        for c in range(10):
            a(f"buffer_load_dwordx4 {V(XD+4*c,4)}, v5, {R(rX)}, 0 offen offset:{128*c}")
            if c % 2 == 1 and c < 9: a("s_barrier")
        g.ptrs2()
        a(f"v_mov_b32 v136, {63*4}")
        a("v_lshlrev_b32 v6, 4, v2")
        a(f"v_add_u32 v6, {A_WR}, v6")
        a("s_barrier")
        a(f"v_mov_b32 v7, {A_MAX}")
        a(f"s_cmp_lt_u32 s{sTmp}, 32"); a("s_cbranch_scc1 L_aux_rg")
        a(f"s_mov_b64 {S(rC,2)}, {S(rWS,2)}"); g.srd_consts(rC, WS_Y + 54*2560)
        for k in range(4): a(f"v_mov_b32 v{132+k}, {POISON}")
        a(f"s_mul_i32 s{sT}, s{sX}, 3"); a(f"s_add_u32 s{sT}, s{sT}, s{sW}"); a(f"s_mul_i32 s{sT}, s{sT}, {6*1024}"); a(f"s_add_u32 s{sT}, s{sT}, {WS_Y-2*6*1024}")
        a(f"v_lshl_add_u32 v5, v0, 4, s{sT}"); a("v_add_u32 v6, 3072, v5")
        for k in range(6): a(f"buffer_store_dwordx4 v[132:135], v{5+k//3}, {R(rC)}, 0 offen offset:{1024*(k%3)} sc1")
        a("v_mov_b32 v137, 0")
        a("s_branch L_aux_rgdone")
        a.lab("L_aux_rg")
        a(f"buffer_load_dword v137, v136, {R(rDBG)}, 0 offen sc1")
        g.stamp(6)
        for c in range(10):
            a(f"ds_read_b128 {V(WD+8*c,4)}, v6 offset:{128*c}")
            a(f"ds_read_b128 {V(WD+8*c+4,4)}, v6 offset:{2048+128*c}")
        for k in range(4): a(f"v_mov_b32 v{128+k}, 0")
        a(f"s_waitcnt vmcnt(1) lgkmcnt(0)")
        for c in range(10):
            for k in range(4):
                a(f"v_dot2c_f32_bf16 v{128+(k&1)}, v{XD+4*c+k}, v{WD+8*c+k}")
                a(f"v_dot2c_f32_bf16 v{130+(k&1)}, v{XD+4*c+k}, v{WD+8*c+4+k}")
        a("v_add_f32 v128, v128, v129"); a("v_add_f32 v130, v130, v131")
        for d in ("quad_perm:[1,0,3,2]", "quad_perm:[2,3,0,1]", "row_half_mirror"):
            a(f"v_add_f32_dpp v128, v128, v128 {d} row_mask:0xf bank_mask:0xf")
            a(f"v_add_f32_dpp v130, v130, v130 {d} row_mask:0xf bank_mask:0xf")
        g.bf16r(130); g.sigmoid(130, 130); g.bf16r(130)
        g.bf16r(128)
        a("v_ashrrev_i32 v129, 31, v128"); a("v_or_b32 v129, 0x80000000, v129"); a("v_xor_b32 v128, v128, v129")
        a("v_and_b32 v128, 0xffff0000, v128"); a("v_sub_u32 v129, 0xffff, v4"); a("v_or_b32 v128, v128, v129")
        a.lab("L_aux_rgdone")
        a(f"s_lshl_b32 s{sT}, s{sP}, 12"); a(f"s_add_u32 s{sT}, s{sT}, {WS_G}")
        a("v_lshlrev_b32 v3, 2, v3")
        a(f"s_mov_b32 s{sCnt}, 0")
        a("s_waitcnt vmcnt(0)")
        a.lab("L_aux_init")
        a("v_cmp_eq_u32 vcc, 0, v137"); a("s_cbranch_vccz L_aux_initok")
        a(f"buffer_load_dword v137, v136, {R(rDBG)}, 0 offen sc1")
        a(f"s_add_u32 s{sCnt}, s{sCnt}, 1"); a(f"s_cmp_lt_u32 s{sCnt}, {SPIN}")
        a("s_waitcnt vmcnt(0)")
        a("s_cbranch_scc1 L_aux_init")
        a.lab("L_aux_initok")
        a(f"s_cmp_lt_u32 s{sTmp}, 32"); a("s_cbranch_scc0 L_aux_norg")
        a("s_mov_b32 exec_lo, 0x01010101"); a("s_mov_b32 exec_hi, 0x01010101")
        a("ds_max_u32 v7, v128")
        a(f"buffer_store_dword v130, v3, {R(rWS)}, s{sT} offen sc1")
        a.lab("L_aux_norg")
        a.lab("L_aux_arr")
        a("s_mov_b64 exec, 1")
        a("v_mov_b32 v129, 1")
        a("s_waitcnt lgkmcnt(0)")
        a("ds_add_rtn_u32 v131, v7, v129 offset:4")
        a("ds_read_b32 v128, v7")
        a(f"s_lshl3_add_u32 s{sT}, s{sA}, s{sX}"); a(f"s_lshl_b32 s{sT}, s{sT}, 7"); a(f"s_add_u32 s{sT}, s{sT}, {WS_F}")
        a("s_waitcnt lgkmcnt(0)")
        a("v_cmp_eq_u32 vcc, 4, v131"); a(f"v_readfirstlane_b32 s{sCnt}, v128"); a("s_cbranch_vccz L_aux_nopub")
        a(f"s_atomic_add s{sCnt}, {S(rWS,2)}, s{sT}")
        a("s_waitcnt lgkmcnt(0)")
        a.lab("L_aux_nopub")
        a("s_mov_b64 exec, -1")
        g.stamp(1)
        a(f"s_cmp_ge_u32 s{sF}, 54"); a("s_cbranch_scc1 L_aux_end")
        a(f"s_cmp_eq_u32 s{sW}, 4"); a("s_cbranch_scc0 L_aux_f1")
        a(f"s_lshl_b32 s{sT}, s{sF}, 7"); a(f"s_add_u32 s{sT}, s{sT}, {WS_K}")
        a(f"s_mov_b32 s{sCnt}, 0")
        a.lab("L_aux_key")
        a(f"s_load_dword s84, {S(rWS,2)}, s{sT} glc")
        a(f"s_add_u32 s{sCnt}, s{sCnt}, 1")
        a("s_waitcnt lgkmcnt(0)")
        a(f"s_cmp_lt_u32 s{sCnt}, {SPIN}"); a("s_cselect_b32 s84, s84, 1")
        a("s_cmp_eq_u32 s84, 0"); a("s_cbranch_scc1 L_aux_key")
        g.keyidx(84, 85)
        a("s_mul_i32 s85, s85, 1280")
        a("v_lshl_add_u32 v1, v0, 4, s85")
        a(f"s_mov_b32 m0, {A_XS}")
        a(f"buffer_load_dwordx4 v1, {R(rX)}, 0 offen lds")
        a(f"buffer_load_dwordx4 v1, {R(rX)}, 0 offen offset:1024 lds")
        g.stamp(2)
        a("s_waitcnt vmcnt(0)")
        a("s_branch L_aux_f1")
        a.lab("L_aux_hi")
        sV = 84
        a(f"s_sub_u32 s{sV}, s{sW}, 5")
        a(f"s_cmp_eq_u32 s{sV}, 0"); a("s_cbranch_scc0 L_aux_w67")
        a("v_mul_u32_u24 v3, 4370, v0"); a("v_lshrrev_b32 v3, 16, v3")
        a("v_mul_u32_u24 v4, 15, v3"); a("v_sub_u32 v4, v0, v4")
        a("v_mul_u32_u24 v5, 52, v4"); a("v_lshrrev_b32 v5, 8, v5")
        a("v_mul_u32_u24 v5, 640, v5"); a("v_lshl_add_u32 v5, v4, 7, v5")
        a(f"v_mul_u32_u24 v3, {4*3840}, v3")
        a(f"s_lshr_b32 s{sT}, s{sX}, 1"); a(f"s_lshl4_add_u32 s{sT}, s{sA}, s{sT}"); a(f"s_mul_i32 s{sT}, s{sT}, 6"); a(f"s_and_b32 s{sTmp}, s{sX}, 1")
        a(f"s_add_u32 s{sT}, s{sT}, s{sTmp}"); a(f"s_mul_i32 s{sT}, s{sT}, 640")
        a(f"v_add3_u32 v5, s{sT}, v5, v3")
        a("v_cmp_gt_u32 vcc, 60, v0"); a("v_bfrev_b32 v6, 1"); a("v_cndmask_b32_e64 v5, v6, v5, vcc")
        g.ptrs()
        a(f"s_mov_b32 s{sT}, 0")
        for n in range(6):
            a(f"buffer_load_dword v{10+n}, v5, {R(rW)}, s{sT} offen")
            a(f"s_add_u32 s{sT}, s{sT}, {7*16*3840}")
            if n >= 1: a("s_barrier")
        g.ptrs2()
        a("s_branch L_aux_hi2")
        a.lab("L_aux_w67")
        a("v_lshlrev_b32 v6, 4, v0")
        a(f"v_mov_b32 v7, {A_MAX}"); a("v_mov_b32 v8, 0"); a("v_mov_b32 v9, 0")
        a("ds_write_b64 v7, v[8:9]")
        for r in (rWR, rGW): g.srd_consts(r, 1280)
        if g.opt.get("codepf", 2):
            a(f"s_cmp_ge_u32 s{sA}, {g.opt.get('codepf', 2)}"); a("s_cbranch_scc1 L_aux_nocpf")
            a("s_getpc_b64 s[88:89]" if not g.stamps else "s_getpc_b64 s[98:99]")
            pc = 88 if not g.stamps else 98
            a.lab("L_pc")
            a(f"s_sub_u32 s{pc}, s{pc}, L_pc-{KN}_kernel"); a(f"s_subb_u32 s{pc+1}, s{pc+1}, 0")
            a(f"s_lshl1_add_u32 s{sT}, s{sA}, s{sV}"); a(f"s_sub_u32 s{sT}, s{sT}, 1"); a(f"s_lshl_b32 s{sT}, s{sT}, 13")
            a(f"v_lshl_add_u32 v3, v0, 7, s{sT}")
            a(f"v_min_u32 v3, L_end-{KN}_kernel, v3")
            a(f"global_load_dword v10, v3, s[{pc}:{pc+1}]")
            a.lab("L_aux_nocpf")
        g.ptrs(); g.ptrs2()
        a(f"s_mov_b64 {S(rWR,2)}, s[12:13]"); a(f"s_mov_b64 {S(rGW,2)}, s[20:21]")
        a(f"s_cmp_eq_u32 s{sV}, 1"); a("s_cbranch_scc0 L_aux_w7")
        a(f"s_mov_b32 m0, {A_WR}")
        a(f"buffer_load_dwordx4 v6, {R(rWR)}, 0 offen lds"); a(f"buffer_load_dwordx4 v6, {R(rWR)}, 0 offen offset:1024 lds")
        a(f"s_mov_b32 m0, {A_GW}")
        a(f"buffer_load_dwordx4 v6, {R(rGW)}, 0 offen lds"); a(f"buffer_load_dwordx4 v6, {R(rGW)}, 0 offen offset:1024 lds")
        a.lab("L_aux_w7")
        a("v_lshlrev_b32 v3, 7, v0")
        a(f"s_lshl3_add_u32 s{sTmp}, s2, s{sW}"); a(f"s_cmp_eq_u32 s{sTmp}, {255*8+7}"); a("s_cbranch_scc0 L_aux_nn0")
        for k in range(4): a(f"v_mov_b32 v{12+k}, {POISON}")
        for off in (WS_F, WS_K):
            a(f"s_mov_b32 s{sT}, {off}"); a(f"buffer_store_dword v8, v3, {R(rWS)}, s{sT} offen sc1")
        for k in range(8):
            if k % 4 == 0: a(f"s_mov_b32 s{sT}, {WS_G+1024*k}")
            a(f"buffer_store_dwordx4 v[12:15], v6, {R(rWS)}, s{sT} offen offset:{1024*(k%4)} sc1")
        a.lab("L_aux_nn0")
        for c in range(4): a("s_barrier")
        a("s_waitcnt vmcnt(0)")
        a(f"s_cmp_eq_u32 s{sTmp}, {255*8+7}"); a("s_cbranch_scc0 L_aux_nn1")
        a(f"s_mov_b32 s{sT}, 1"); a(f"s_atomic_add s{sT}, {S(rDBG,2)}, {63*4}")
        a("s_waitcnt lgkmcnt(0)")
        a.lab("L_aux_nn1")
        a("s_barrier")
        a(f"s_lshl3_add_u32 s{sT}, s{sA}, s{sX}"); a(f"s_lshl1_add_u32 s{sT}, s{sT}, s{sV}"); a(f"s_sub_u32 s{sT}, s{sT}, 1")
        a(f"s_lshl_b32 s{sT}, s{sT}, 13")
        a(f"buffer_load_dword v10, v3, {R(rWO)}, s{sT} offen")
        a(f"s_cmp_eq_u32 s{sTmp}, {255*8+7}"); a("s_cbranch_scc0 L_aux_hi2")
        a(f"s_mov_b32 s{sCnt}, 0"); a(f"s_mov_b32 s{sT}, {WS_F}")
        a.lab("L_aux_col")
        a(f"buffer_load_dword v11, v3, {R(rWS)}, s{sT} offen sc1")
        a(f"s_add_u32 s{sCnt}, s{sCnt}, 1")
        a("s_waitcnt vmcnt(0)")
        a("v_cmp_eq_u32 vcc, 0, v11")
        a("s_and_b32 vcc_hi, vcc_hi, 0x00ffffff")
        a(f"s_cmp_lt_u32 s{sCnt}, {SPIN}"); a("s_cselect_b64 vcc, vcc, 0")
        a("s_cmp_eq_u64 vcc, 0"); a("s_cbranch_scc0 L_aux_col")
        g.argmax(11, sCnt, sT)
        a(f"v_mov_b32 v11, s{sCnt}"); a(f"s_mov_b32 s{sT}, {WS_K}")
        a(f"buffer_store_dword v11, v3, {R(rWS)}, s{sT} offen sc1")
        a(f"s_atomic_add s{sCnt}, {S(rDBG,2)}, {62*4}")
        a("s_waitcnt lgkmcnt(0)")
        a.lab("L_aux_hi2")
        a(f"s_cmp_ge_u32 s{sF}, 54"); a("s_cbranch_scc1 L_aux_end")
        a(f"s_and_b32 s{sHalf}, s{sF}, 1")
        for r in (r1, r2, rD): g.srd_consts(r, 640*3456)
        a(f"s_cmp_eq_u32 s{sHalf}, 0")
        a(f"s_cselect_b64 {S(r1,2)}, s[14:15], s[16:17]"); a(f"s_cselect_b64 {S(r2,2)}, s[16:17], s[14:15]")
        a(f"s_mov_b64 {S(rD,2)}, s[18:19]")
        a("v_lshrrev_b32 v3, 2, v0"); a("v_mul_u32_u24 v3, 3456, v3")
        a("v_and_b32 v4, 2, v1"); a("v_and_b32 v5, 3, v0"); a("v_xor_b32 v4, v4, v5")
        a("v_lshl_add_u32 v3, v4, 4, v3")
        a(f"s_lshl_b32 s{sT}, s{sF}, 6"); a(f"v_add_u32 v3, s{sT}, v3")
        for mi, rr in enumerate((r1, r2)):
            lp = g.lab("fm")
            a(f"s_xor_b32 s{sT}, s{sHalf}, {mi}"); a(f"s_mul_i32 s{sTmp}, s{sT}, 40960")
            a(f"s_mov_b32 s{sCnt}, s{sV}")
            a.lab(lp)
            a(f"s_lshl_b32 s{sT}, s{sCnt}, 10"); a(f"s_add_u32 m0, s{sT}, s{sTmp}")
            a(f"s_mul_i32 s{sT}, s{sCnt}, {16*3456}")
            a(f"buffer_load_dwordx4 v3, {R(rr)}, s{sT} offen lds")
            a(f"s_waitcnt vmcnt({g.opt.get('fthr', 5)})")
            a(f"s_add_u32 s{sCnt}, s{sCnt}, 3"); a(f"s_cmp_lt_u32 s{sCnt}, 40"); a(f"s_cbranch_scc1 {lp}")
        a("v_and_b32 v4, 6, v1"); a("v_xor_b32 v4, v4, v2"); a("v_lshlrev_b32 v4, 4, v4")
        a("v_mul_u32_u24 v5, 1280, v1")
        a(f"s_mul_i32 s{sT}, s{sF}, {32*1280}"); a(f"v_add3_u32 v4, s{sT}, v4, v5")
        a(f"s_mov_b32 s{sCnt}, s{sV}")
        def dn(lim):
            lp = g.lab("fd")
            a.lab(lp)
            a(f"s_lshl_b32 s{sT}, s{sCnt}, 10"); a(f"s_add_u32 m0, s{sT}, {A_D}")
            a(f"s_and_b32 s{sT}, s{sCnt}, 3"); a(f"s_mul_i32 s{sT}, s{sT}, {8*1280}"); a(f"s_lshr_b32 s{sTmp}, s{sCnt}, 2"); a(f"s_lshl_b32 s{sTmp}, s{sTmp}, 7"); a(f"s_add_u32 s{sT}, s{sT}, s{sTmp}")
            a(f"buffer_load_dwordx4 v4, {R(rD)}, s{sT} offen lds")
            a(f"s_add_u32 s{sCnt}, s{sCnt}, 3"); a(f"s_cmp_lt_u32 s{sCnt}, {lim}"); a(f"s_cbranch_scc1 {lp}")
        dn(40)
        a("s_waitcnt vmcnt(13)")
        g.stamp(2)
        a("s_barrier")
        a("s_waitcnt vmcnt(0)")
        a("s_branch L_aux_f2")
        a.lab("L_aux_f1")
        a(f"s_and_b32 s{sT}, s{sW}, 1")
        a("v_bfe_u32 v1, v0, 4, 1"); a(f"v_xor_b32 v1, s{sT}, v1"); a("v_lshlrev_b32 v1, 5, v1")
        a("v_and_b32 v2, 3, v0"); a("v_lshl_add_u32 v1, v2, 3, v1")
        a("v_lshrrev_b32 v2, 2, v0"); a("v_lshl_add_u32 v1, v2, 6, v1")
        a(f"s_lshr_b32 s{sT}, s{sW}, 1"); a(f"s_mul_i32 s{sT}, s{sT}, 40960"); a(f"v_add_u32 v1, s{sT}, v1")
        a("v_lshrrev_b32 v2, 4, v0"); a("v_lshlrev_b32 v2, 3, v2"); a(f"v_add_u32 v2, {A_XS}, v2")
        for k in range(4): a(f"v_mov_b32 v{4+k}, 0")
        a(f"s_mov_b32 s{sCnt}, 0")
        a("s_barrier")
        g.stamp(3)
        a(f"s_cmp_ge_u32 s{sW}, 4"); a("s_cbranch_scc1 L_aux_f2")
        a.lab("L_aux_gu")
        for ks in range(5):
            a(f"ds_read_b64_tr_b16 {V(8+8*ks,2)}, v1 offset:{ks*2048}")
            a(f"ds_read_b64_tr_b16 {V(10+8*ks,2)}, v1 offset:{ks*2048+1024}")
            a(f"ds_read2_b64 {V(12+8*ks,4)}, v2 offset0:{8*ks} offset1:{8*ks+4}")
        a(f"v_add_u32 v1, {5*2048}, v1"); a(f"v_add_u32 v2, {5*64}, v2")
        a(f"s_add_u32 s{sCnt}, s{sCnt}, 1"); a(f"s_cmp_lt_u32 s{sCnt}, 4")
        for k in range(5):
            a(f"s_waitcnt lgkmcnt({3*(4-k)})")
            a(f"v_mfma_f32_16x16x32_bf16 v[4:7], {V(8+8*k,4)}, {V(12+8*k,4)}, v[4:7]")
        a("s_cbranch_scc1 L_aux_gu")
        a(f"s_lshl_b32 s{sT}, s{sW}, 6"); a(f"s_add_u32 s{sT}, s{sT}, {A_PRE}")
        a("v_and_b32 v3, 48, v0"); a(f"v_add_u32 v3, s{sT}, v3")
        a("ds_write_b128 v3, v[4:7]")
        a("s_waitcnt lgkmcnt(0)")
        a.lab("L_aux_f2")
        a(f"s_and_b32 s{sT}, s{sW}, 3")
        g.tr_addr(1, f"s{sT}", A_D, 9, 10)
        a(f"s_lshr_b32 s{sTmp}, s{sW}, 2"); a(f"s_mul_i32 s{sCnt}, s{sTmp}, {5*4096}"); a(f"v_add_u32 v1, s{sCnt}, v1")
        a("v_and_b32 v3, 48, v0"); a(f"v_add_u32 v2, {A_PRE}, v3")
        a("v_and_b32 v4, 15, v0"); a("v_lshl_add_u32 v5, v4, 8, v3")
        a(f"s_mul_i32 s{sCnt}, s{sF}, 2560"); a(f"s_mul_i32 s{sTmp}, s{sTmp}, 1280"); a(f"s_add_u32 s{sCnt}, s{sCnt}, s{sTmp}")
        a(f"s_lshl_b32 s{sT}, s{sT}, 6"); a(f"s_add_u32 s{sCnt}, s{sCnt}, s{sT}"); a(f"s_add_u32 s{sCnt}, s{sCnt}, {WS_Y}")
        a("s_barrier")
        g.stamp(4)
        for k in range(4): a(f"ds_read_b128 {V(8+4*k,4)}, v2 offset:{64*k}")
        for e in range(5):
            for ab in range(2): a(f"ds_read_b64_tr_b16 {V(40+4*e+2*ab,2)}, v1 offset:{e*4096+ab*2048}")
        a("s_waitcnt lgkmcnt(10)")
        for k in range(8): a(f"v_mul_f32 v{24+k}, {f32(-math.log2(math.e))}, v{8+k}")
        for k in range(8): a(f"v_exp_f32 v{24+k}, v{24+k}")
        for k in range(8): a(f"v_mul_f32 v{8+k}, v{8+k}, v{16+k}")
        for k in range(8): a(f"v_add_f32 v{24+k}, 1.0, v{24+k}")
        for k in range(8): a(f"v_rcp_f32 v{24+k}, v{24+k}")
        for k in range(8): a(f"v_mul_f32 v{24+k}, v{24+k}, v{8+k}")
        for k in range(4): a(f"v_cvt_pk_bf16_f32 v{32+k}, v{24+2*k}, v{25+2*k}")
        a("s_waitcnt lgkmcnt(0)")
        for e in range(5): a(f"v_mfma_f32_16x16x32_bf16 {V(64+4*e,4)}, {V(40+4*e,4)}, v[32:35], 0")
        for e in range(1, 5):
            a(f"v_cmp_eq_u32 vcc, {e}, v4")
            for k in range(4): a(f"v_cndmask_b32_e64 v{64+k}, v{64+k}, v{64+4*e+k}, vcc")
        a("s_mov_b32 exec_lo, 0x001f001f"); a("s_mov_b32 exec_hi, 0x001f001f")
        a(f"buffer_store_dwordx4 v[64:67], v5, {R(rWS)}, s{sCnt} offen sc1")
        a("s_mov_b64 exec, -1")
        a.lab("L_aux_end")
        g.stamp(5)
        g.dump_stamps(7)

    def flush_tail(g):
        for t in g.tail: t()
        g.tail = []

    def build(g):
        g.prologue(); g.lwave(); g.flush_tail(); g.cwave(); g.softmax(); g.stage2(); g.cfin(); g.flush_tail(); g.aux()
        g.a.lab("L_end")
        g.a("s_endpgm")
        body = g.a.finish()
        if g.opt.get('align', 1): body, g.npro, g.nnop = align8(body, KN + '_kernel')
        hdr = open(f"cdna_kernels/{KN}.s.ref").read().split("; Override launch")[0]
        k = KN + "_kernel"
        return hdr + f"""; @launch grid=(256,1,1) block=(512,1,1) lds={LDS_BYTES}
.amdgcn_target "amdgcn-amd-amdhsa--gfx950"
.text
.globl {k}
.p2align 8
.type {k},@function
{k}:
{body}
.section .rodata,"a"
.p2align 6
.amdhsa_kernel {k}
  .amdhsa_next_free_vgpr 256
  .amdhsa_next_free_sgpr 102
  .amdhsa_accum_offset 256
  .amdhsa_group_segment_fixed_size 0
  .amdhsa_kernarg_size 96
  .amdhsa_user_sgpr_count 2
  .amdhsa_user_sgpr_kernarg_segment_ptr 1
  .amdhsa_system_sgpr_workgroup_id_x 1
  .amdhsa_float_denorm_mode_32 3
.end_amdhsa_kernel
"""

if __name__ == "__main__":
    out = sys.argv[1] if len(sys.argv) > 1 else "k2.s"
    kw = {}
    for x in sys.argv[2:]:
        k, v = x.split("="); kw[k] = eval(v)
    g = Gen(**kw)
    open(out, "w").write(g.build())
    print("wrote", out, "pads", g.a.npad, "promoted/nops", getattr(g, "npro", 0), getattr(g, "nnop", 0))
```

```python
import sys, struct, math
sys.path.insert(0, "work")
from asmlib import Asm, align8

KN = "gated_mix__sliding_local_dilated__moe_arch_mod__prompt"
def f32(x): return "0x%08x" % struct.unpack("<I", struct.pack("<f", x))[0]

import os
BLK = int(os.environ.get('BLK', 290816))
WS_OG = 143360
WS_FL = 2*143360
WS_Y = 20*BLK
WS_G = WS_Y + 139264
WS_Y2 = WS_G + 8192
WS_F = WS_G + 16384
WS_K = WS_F + 8192
WS_AR = WS_K + 8192
WS_T = 16 << 20
WS_SIZE = 20 << 20
SLOT = 38912
WOFF = 14336
L_WO = 81920
L_QK = 38912
L_WO2 = 0
L_P = L_WO + 12*4096
L_EP = L_P
L_CNT = L_P + 28672
L_GF = L_CNT + 16
L_OWN = 38912
L_BB = 38912
LDS_BYTES = 163840
POISON = -1
SPIN = 30000
CSC = f32(20**-0.5 * math.log2(math.e))

rX, rW, rWO, rWS, rDBG, rOUT = 28, 32, 36, 40, 44, 48
sW, sX, sJ, sP, sM0, sJB, sCG, sTB, sI0, sCnt, sSlot, sT = 52, 53, 54, 55, 56, 57, 58, 59, 60, 61, 62, 63
def S(n, k=1): return f"s{n}" if k == 1 else f"s[{n}:{n+k-1}]"
def V(n, k=1): return f"v{n}" if k == 1 else f"v[{n}:{n+k-1}]"
def R(n): return S(n, 4)

class Gen:
    def __init__(g, stamps=False, look=8, rot=2, depth=4, **kw):
        g.a = Asm(); g.stamps = stamps; g.look = look; g.rot = rot; g.depth = depth
        g.opt = kw
        g.nlab = 0
        g.tail = []
    def lab(g, base): g.nlab += 1; return f"L_{base}_{g.nlab}"
    def sreg(g, k): return 86 + 2*k if k < 8 else 4 + 2*(k-8)
    def stamp(g, k):
        if g.stamps and (g.stamps is True or k in g.stamps or k == 0): g.a(f"{'s_memrealtime' if g.opt.get('rt') else 's_memtime'} {S(g.sreg(k),2)}")
    def dump_stamps(g, nst):
        if not g.stamps: return
        a = g.a
        a("s_memrealtime s[62:63]")
        a("s_waitcnt lgkmcnt(0)")
        a("v_mov_b32 v1, v253")
        for k in range(nst): a(f"v_writelane_b32 v1, s{g.sreg(k)}, {k}")
        a("v_writelane_b32 v1, s3, 30")
        a("v_writelane_b32 v1, s62, 31")
        a(f"s_lshl_b32 s62, s2, 3"); a(f"s_add_u32 s62, s62, s{sW}"); a("s_lshl_b32 s62, s62, 8"); a(f"s_add_u32 s62, s62, {WS_T}")
        a("v_lshlrev_b32 v2, 2, v0")
        a(f"buffer_store_dword v1, v2, {R(rWS)}, s62 offen")
    def srd_consts(g, r, size):
        g.a(f"s_mov_b32 s{r+2}, {size}"); g.a(f"s_mov_b32 s{r+3}, 0x20000")

    def prologue(g):
        a = g.a
        a("s_load_dwordx16 s[4:19], s[0:1], 0")
        a("s_load_dwordx8 s[20:27], s[0:1], 64")
        if g.stamps:
            a("s_memrealtime s[100:101]")
            g.stamp(0)
        if g.opt.get("cpf0", 1):
            a("s_getpc_b64 s[52:53]")
            a.lab("L_pc0")
            a("s_and_b32 s61, s2, 0xf8")
            a("v_min_u32 v1, 7, v0"); a("v_add_lshl_u32 v1, v1, s61, 7")
            a(f"v_min_u32 v1, L_end-L_pc0, v1")
            a("v_cmp_gt_u32 vcc, 64, v0"); a("s_cbranch_vccz L_nocpf0")
            a("global_load_dword v247, v1, s[52:53]")
            a.lab("L_nocpf0")
        a("v_lshrrev_b32 v1, 6, v0")
        a("s_cmp_ge_u32 s2, 256")
        a("s_cbranch_scc1 L_end")
        a(f"v_readfirstlane_b32 s{sW}, v1")
        a("v_and_b32 v0, 63, v0")
        a(f"s_and_b32 s{sX}, s2, 7")
        a(f"s_lshr_b32 s{sJ}, s2, 3")
        g.srd_consts(rX, 2048*1280); g.srd_consts(rW, 640*3840)
        a(f"s_bfe_u32 s{sP}, s2, 0x10001")
        a(f"s_cmp_ge_u32 s{sJ}, 25")
        a("s_cbranch_scc1 L_aux")
        a(f"s_mul_i32 s{sM0}, s{sJ}, 52"); a(f"s_lshr_b32 s{sM0}, s{sM0}, 8")
        a(f"s_mul_i32 s{sJB}, s{sM0}, 5"); a(f"s_sub_u32 s{sJB}, s{sJ}, s{sJB}")
        a(f"s_and_b32 s{sCG}, s2, 1"); a(f"s_mul_i32 s{sCG}, s{sCG}, 5"); a(f"s_add_u32 s{sCG}, s{sCG}, s{sM0}")
        a(f"s_lshr_b32 s{sTB}, s{sX}, 1"); a(f"s_mul_i32 s{sTB}, s{sTB}, 5"); a(f"s_add_u32 s{sTB}, s{sTB}, s{sJB}")
        a(f"s_and_b32 s{sI0}, s{sX}, 4"); a(f"s_lshl_b32 s{sI0}, s{sI0}, 7")
        a(f"s_mul_i32 s{sCnt}, s{sJB}, 104"); a(f"s_add_u32 s{sI0}, s{sI0}, s{sCnt}"); a(f"s_sub_u32 s{sI0}, s{sI0}, 8")
        a(f"s_cmp_lt_u32 s{sW}, 4")
        a("s_cbranch_scc1 L_cwave")

    def ptrs(g):
        a = g.a
        a("s_waitcnt lgkmcnt(0)")
        a(f"s_mov_b64 {S(rX,2)}, s[4:5]"); a(f"s_mov_b64 {S(rW,2)}, s[6:7]")
        if g.stamps: a("s_mov_b32 s3, s100")
    def ptrs2(g):
        a = g.a
        a(f"s_mov_b64 {S(rWO,2)}, s[8:9]"); a(f"s_mov_b64 {S(rWS,2)}, s[26:27]")
        a(f"s_mov_b64 {S(rDBG,2)}, s[24:25]"); a(f"s_mov_b64 {S(rOUT,2)}, s[22:23]")
        g.srd_consts(rWO, 640*1280); g.srd_consts(rWS, WS_SIZE); g.srd_consts(rDBG, 256); g.srd_consts(rOUT, 2048*1280)

    XR = 224
    vXR = 3
    vSP = 254
    vL16 = 255
    sFL, sCur, sAr, sLoc = 20, 21, 0, 53

    def xres_addr(g):
        a = g.a
        a("v_bfe_u32 v8, v0, 1, 3"); a("v_lshrrev_b32 v9, 5, v0"); a("v_xor_b32 v9, v9, v8"); a("v_lshlrev_b32 v9, 4, v9")
        a("v_bfe_u32 v10, v0, 4, 1"); a("v_lshl_add_u32 v9, v10, 3, v9"); a("v_and_b32 v10, 15, v0"); a("v_lshl_add_u32 v9, v10, 7, v9")
        a(f"s_mul_i32 s{sCnt}, s{sCG}, 86"); a(f"s_lshr_b32 s{sCnt}, s{sCnt}, 8"); a(f"s_mul_i32 s{sCnt}, s{sCnt}, 3"); a(f"s_sub_u32 s{sCnt}, s{sCG}, s{sCnt}")
        a(f"s_sub_u32 s{sSlot}, 3, s{sCnt}"); a(f"s_cmp_eq_u32 s{sCnt}, 0"); a(f"s_cselect_b32 s{sSlot}, 0, s{sSlot}"); a(f"s_mul_i32 s{sSlot}, s{sSlot}, {SLOT}")
        a(f"s_lshl_b32 s{sT}, s{sW}, 12"); a(f"s_add_u32 s{sT}, s{sT}, s{sSlot}")
        a(f"v_add_u32 v{g.vXR}, s{sT}, v9")
    def xres_read(g):
        a = g.a
        for tau, x in ((0, 0), (1, 32), (3, 64), (2, 32)):
            if tau: a(f"v_xor_b32 v{g.vXR}, {x}, v{g.vXR}")
            for q in range(2): a(f"ds_read_b64 {V(g.XR+8*q+2*tau,2)}, v{g.vXR} offset:{2048*q}")
    BI, BI0 = 240, 244
    B1, B2 = 200, 216
    vQ1, vQ2 = 251, 252
    def unit_setup(g, sA):
        a = g.a
        a(f"s_and_b32 s{sCnt}, s{sW}, 1"); a(f"s_mul_i32 s{sCnt}, s{sCnt}, 1536")
        a(f"s_mul_i32 s{sT}, s{sA}, 7168"); a(f"s_lshl1_add_u32 s{sT}, s{sCnt}, s{sT}"); a(f"s_add_u32 s{sT}, s{sT}, {L_P+8}")
        a(f"v_lshlrev_b32 v{g.vL16}, 4, v0")
        a("v_lshrrev_b32 v8, 2, v0"); a("v_bfi_b32 v8, v0, 0, v8"); a("v_and_b32 v8, 8, v8")
        a(f"v_sub_u32 v8, v{g.vL16}, v8"); a(f"v_add_u32 v{g.vSP}, s{sT}, v8")
        a(f"s_mul_i32 s{sT}, s{sA}, 5"); a(f"s_sub_u32 s{sT}, s{sT}, s{sM0}"); a(f"s_add_u32 s{sT}, s{sT}, 4")
        a(f"s_add_u32 s{sCnt}, s{sCnt}, {L_QK}")
        a("v_and_b32 v9, 15, v0"); a(f"v_lshl_add_u32 v10, v9, 3, s{sCnt}")
        a("v_lshrrev_b32 v11, 4, v0"); a(f"v_add_u32 v8, s{sT}, v11")
        a(f"v_lshl_add_u32 v{g.vQ1}, v8, 7, v10"); a("v_lshrrev_b32 v8, 2, v8"); a(f"v_mul_u32_u24 v8, {7168-512}, v8"); a(f"v_add_u32 v{g.vQ1}, v{g.vQ1}, v8")
        a(f"s_add_u32 s{sT}, s{sT}, 4"); a(f"s_lshr_b32 s{sSlot}, s{sT}, 2"); a(f"s_mul_i32 s{sSlot}, s{sSlot}, {7168-512}"); a(f"s_lshl_b32 s{sT}, s{sT}, 7"); a(f"s_add_u32 s{sT}, s{sT}, s{sSlot}")
        a(f"v_add_u32 v{g.vQ2}, s{sT}, v10")
        a(";cut")
        a("v_lshlrev_b32 v8, 2, v11"); a("v_sub_u32 v9, v9, v8")
        a(f"v_mov_b32 v11, {f32(-1e30)}")
        for r in range(4):
            a(f"v_subrev_u32 v10, {r}, v9"); a("v_and_b32 v10, 8, v10")
            a("v_cmp_eq_u32 vcc, 0, v10")
            a(f"v_cndmask_b32_e64 v{g.BI+r}, v11, v10, vcc")
        a(f"s_cmp_lt_i32 s{sI0}, 0"); a(f"s_cselect_b32 s{sT}, 32, 0"); a(f"s_bitcmp1_b32 s{sW}, 0"); a(f"s_cselect_b32 s{sT}, 0, s{sT}")
        a(f"v_cmp_gt_u32 vcc, s{sT}, v0")
        for r in range(4): a(f"v_cndmask_b32_e64 v{g.BI0+r}, v{g.BI+r}, v11, vcc")
    vK = 120
    def unit_late(g):
        v = g.vK
        return [f"v_and_b32 v{v}, 8, v0", f"v_lshlrev_b32 v{v}, 6, v{v}",
                f"v_lshlrev_b32 v{v+2}, 5, v0", f"v_bfi_b32 v{v+2}, v{v+2}, 0, v{v}",
                f"s_bitcmp1_b32 s{sW}, 0", f"s_cselect_b32 s{sT}, -1, 0",
                f"v_and_b32 v{v+1}, s{sT}, v{v}", f"v_and_b32 v{v+3}, s{sT}, v{v+2}",
                f"v_sub_u32 v{v}, v{g.vQ1}, v{v}", f"v_sub_u32 v{v+1}, v{g.vQ1}, v{v+1}",
                f"v_sub_u32 v{v+2}, v{g.vQ2}, v{v+2}", f"v_sub_u32 v{v+3}, v{g.vQ2}, v{v+3}",
                f"s_mov_b32 s{sSlot}, {CSC}", f"s_mov_b32 s{sT}, {CSC}"]
    def fl_addr(g):
        a = g.a
        a(f"s_mul_i32 s{g.sFL}, s{sTB}, {BLK//256}"); a(f"s_add_u32 s{g.sFL}, s{g.sFL}, s{sCG}"); a(f"s_lshl_b32 s{g.sFL}, s{g.sFL}, 8"); a(f"s_add_u32 s{g.sFL}, s{g.sFL}, {WS_FL}")
    def arr_load(g): return [f"s_lshl_b32 s{g.sLoc}, s{sTB}, 8", f"s_add_u32 s{g.sLoc}, s{g.sLoc}, {WS_AR}", f"s_load_dword s{g.sAr}, {S(rWS,2)}, s{g.sLoc}",
                             f"s_add_u32 s{g.sCur}, s{g.sLoc}, 128", f"s_load_dword s{g.sAr+1}, {S(rWS,2)}, s{g.sCur}"]
    def arr_check(g, nm, t0, t1, va, vd):
        a = g.a
        ops = [[f"L_ac_{nm}:", f"s_add_u32 s{t0}, s{g.sAr}, s{g.sAr+1}", f"s_lshr_b32 s{t1}, s{t0}, 4", f"s_and_b32 s{t1}, s{t1}, 0x0f0f0f0f"],
               [f"s_and_b32 s{t0}, s{t0}, 0x0f0f0f0f", f"s_add_u32 s{t0}, s{t0}, s{t1}", f"s_mul_i32 s{t0}, s{t0}, 0x01010101"],
               [f"s_lshr_b32 s{t0}, s{t0}, 24", f"s_cmp_ge_u32 s{t0}, 10", f"s_cbranch_scc0 L_ar_{nm}", f"L_ao_{nm}:"],
               ["s_bitcmp1_b32 s2, 0", f"s_cselect_b32 s{t0}, s{g.sAr+1}, s{g.sAr}", f"s_getreg_b32 s{t1}, hwreg(HW_REG_XCC_ID, 0, 3)"],
               [f"s_lshl_b32 s{t1}, s{t1}, 2", f"s_lshr_b32 s{t0}, s{t0}, s{t1}"],
               [f"s_cmp_eq_u32 s{t0}, 5", f"s_cselect_b32 s{g.sLoc}, {0 if g.opt.get('nolocal') else 1}, 0"]]
        if g.opt.get("noarr"): return [[f"s_mov_b32 s{g.sLoc}, 1"]]
        def t():
            a.lab(f"L_ar_{nm}")
            a(f"s_mov_b32 s{g.sCur}, 0"); a(f"v_mov_b32 v{va}, s{g.sLoc}")
            a.lab(f"L_ar2_{nm}")
            a("s_sleep 4")
            a(f"buffer_load_dword v{vd}, v{va}, {R(rWS)}, 0 offen sc1"); a(f"buffer_load_dword v{vd+1}, v{va}, {R(rWS)}, 0 offen offset:128 sc1")
            a(f"s_add_u32 s{g.sCur}, s{g.sCur}, 1")
            a("s_waitcnt vmcnt(0)")
            a(f"v_readfirstlane_b32 s{g.sAr}, v{vd}"); a(f"v_readfirstlane_b32 s{g.sAr+1}, v{vd+1}")
            a(f"v_mov_b64 {V(vd,2)}, 0")
            a(f"s_cmp_lt_u32 s{g.sCur}, {SPIN}"); a(f"s_cbranch_scc0 L_ao_{nm}")
            for x in ops[0][1:] + ops[1] + ops[2][:2]: a(x)
            a(f"s_cbranch_scc0 L_ar2_{nm}")
            a(f"s_branch L_ao_{nm}")
        g.tail.append(t)
        return ops
    def emit(g, ops):
        for grp in ops:
            for x in (grp if isinstance(grp, list) else [grp]):
                if x.endswith(":"): g.a.lab(x[:-1])
                else: g.a(x)

    def lwave(g):
        a = g.a
        vX, vW, vWO = 12, 16, 43
        sLW, sXo, sWo, sMb, sTmp, sS0, sS1 = 64, 65, 66, 67, 68, 69, 70
        sNeed = 71
        a(f"s_sub_u32 s{sLW}, s{sW}, 4")
        a("v_lshrrev_b32 v1, 3, v0")
        a("v_and_b32 v2, 7, v0")
        a("v_lshrrev_b32 v3, 4, v0")
        a(f"s_and_b32 s{sTmp}, s{sLW}, 1"); a(f"s_lshl_b32 s{sWo}, s{sTmp}, 2")
        a(f"v_xor_b32 v4, v3, v2"); a(f"v_xor_b32 v4, s{sWo}, v4")
        a(f"s_lshl3_add_u32 s{sMb}, s{sLW}, s{sI0}")
        a(f"s_lshl1_add_u32 s{sMb}, s{sMb}, s{sP}"); a(f"s_mul_i32 s{sMb}, s{sMb}, 1280")
        a("v_mul_u32_u24 v5, 2560, v1")
        a(f"v_lshl_add_u32 v5, v4, 4, v5")
        a(f"v_add_u32 v{vX}, s{sMb}, v5")
        a("v_and_b32 v3, 6, v1"); a("v_xor_b32 v4, v3, v2")
        a(f"s_lshl_b32 s{sXo}, s{sCG}, 7")
        a(f"v_lshl_add_u32 v4, v4, 4, s{sXo}")
        a(f"s_lshl_b32 s{sTmp}, s{sTmp}, 4"); a(f"s_and_b32 s{sXo}, s{sLW}, 2"); a(f"s_lshl1_add_u32 s{sTmp}, s{sXo}, s{sTmp}")
        a("v_and_b32 v5, 4, v1"); a(f"v_add3_u32 v5, v5, v1, s{sTmp}")
        a("v_mul_u32_u24 v5, 3840, v5")
        a(f"v_add_u32 v{vW}, v5, v4")
        for m in range(1, 4): a(f"v_add_u32 v{vX+m}, {32*2560*m}, v{vX}")
        a(f"s_lshl_b32 s{sMb}, s{sLW}, 10")
        a(f"s_cmp_ge_u32 s{sLW}, 2"); a("s_cselect_b64 vcc, -1, 0")
        g.ptrs()
        g.stamp(3)
        order = [('x',0),('w',0),('w',1),('x',1),('w',2),('w',3),('x',2),('w',4),('w',5),('x',3)]
        slot = lambda c: (0, 2*SLOT, SLOT)[c % 3]
        def issue(c, j):
            kind, m = order[j]
            if kind == 'x':
                skip = None
                if m == 3:
                    skip = g.lab("skipx")
                    a(f"s_cbranch_vccnz {skip}")
                a(f"s_add_u32 m0, s{sMb}, {slot(c) + m*4096}")
                if m == 0: a(f"s_movk_i32 s{sXo}, {c*128}")
                a(f"buffer_load_dwordx4 v{vX+m}, {R(rX)}, s{sXo} offen lds")
                if skip: a.lab(skip)
            else:
                ks, sec = divmod(m, 3)
                a(f"s_add_u32 m0, s{sMb}, {slot(c) + WOFF + m*4096 - sec*1280}")
                if sec == 0: a(f"s_mov_b32 s{g.sLd}, {c*245760 + ks*122880}")
                a(f"buffer_load_dwordx4 v{vW}, {R(rW)}, s{g.sLd} offen offset:{sec*1280} lds")
        look = g.look
        for c in range(10):
            for j in range(look): issue(c, j)
            if c == 1:
                g.ptrs2()
                a(f"s_lshl_b32 s{sTmp}, s{sLW}, 3"); a(f"v_add_u32 v5, s{sTmp}, v1"); a("v_mul_u32_u24 v5, 1280, v5"); a(f"v_add_u32 v{vWO}, v5, v4")
            if c == 8 and g.opt.get("warm", 0):
                a("s_mov_b64 exec, 0")
                for j in range(3): a(f"s_cmp_eq_u32 s{sLW}, {j}"); a(f"s_cbranch_scc1 L_hop{j}")
                a("s_branch L_hop3"); a.lab("L_hopret"); a("s_mov_b64 exec, -1")
            if c > 0:
                a(f"s_waitcnt vmcnt({look})")
                a("s_barrier")
            for j in range(look, 10): issue(c, j)
            arrc = g.opt.get("arrc", 5)
            if c == arrc - 1: a(f"s_load_dword s85, {S(rDBG,2)}, {63*4}")
            if c == arrc:
                a("s_waitcnt lgkmcnt(0)")
                a("s_cmp_eq_u32 s85, 0"); a("s_cbranch_scc1 L_ll_init")
                a.lab("L_ll_initok")
                a(f"s_cmp_eq_u32 s{sLW}, 3"); a("s_cbranch_scc1 L_ll_arr")
                a.lab("L_ll_na")
                def t():
                    a.lab("L_ll_init")
                    a(f"v_mov_b32 v6, {63*4}"); a(f"s_mov_b32 s{sCnt}, 0")
                    a.lab("L_ll_init2")
                    a(f"buffer_load_dword v7, v6, {R(rDBG)}, 0 offen sc1")
                    a(f"s_add_u32 s{sCnt}, s{sCnt}, 1")
                    a("s_waitcnt vmcnt(0)")
                    a("v_readfirstlane_b32 s85, v7")
                    a(f"s_cmp_lt_u32 s{sCnt}, {SPIN}"); a("s_cbranch_scc0 L_ll_initok")
                    a("s_cmp_eq_u32 s85, 0"); a("s_cbranch_scc0 L_ll_initok")
                    a("s_sleep 4"); a("s_branch L_ll_init2")
                    a.lab("L_ll_arr")
                    a(f"s_getreg_b32 s85, hwreg(HW_REG_XCC_ID, 0, 3)"); a(f"s_lshl_b32 s85, s85, 2"); a(f"s_lshl_b32 s85, 1, s85")
                    a(f"s_and_b32 s{sCnt}, s2, 1"); a(f"s_lshl1_add_u32 s{sCnt}, s{sTB}, s{sCnt}"); a(f"s_lshl_b32 s{sCnt}, s{sCnt}, 7"); a(f"s_add_u32 s{sCnt}, s{sCnt}, {WS_AR}")
                    if not g.opt.get("noarr"): a(f"s_atomic_add s85, {S(rWS,2)}, s{sCnt}")
                    a("s_branch L_ll_na")
                g.tail.append(t)
            if c == 7: g.emit(g.arr_load())
        g.stamp(1)
        a(f"s_add_u32 s{sMb}, s{sMb}, {L_WO}")
        a(f"s_sub_u32 s{sXo}, s{sCG}, s{sM0}"); a(f"s_mul_i32 s{sXo}, s{sXo}, 81920")
        n1 = g.opt.get("wo1", 7)
        for e in range(12):
            if e == n1:
                a(f"s_waitcnt vmcnt({n1})")
                a("s_barrier")
            if e == 10: a(f"s_sub_u32 s{sXo}, 409600, s{sXo}")
            if e % 2 == 0: g.gidx(e//2, sWo, sTmp); a(f"s_mul_i32 s{sWo}, s{sWo}, 81920")
            a(f"s_add_u32 m0, s{sMb}, {e*4096}")
            a(f"s_add_u32 s{sWo}, s{sWo}, {'s%d' % sXo if e % 2 == 0 else 40960}")
            a(f"buffer_load_dwordx4 v{vWO}, {R(rWO)}, s{sWo} offen lds")
        g.stamp(2)
        g.l_setup()
        for j in range(1, 5):
            g.gidx(5+j, sT, sTmp); a(f"s_mul_i32 s{sT}, s{sT}, 81920"); a(f"s_add_u32 s{21+j}, s{sT}, s{sXo}")
        a(f"s_mul_i32 s84, s{sS1}, {5*7168}"); a(f"s_add_u32 s84, s84, {L_QK}")
        a(f"s_and_b32 s{sT}, s{sLW}, 1"); a(f"s_mul_i32 s82, s{sT}, 1536"); a(f"s_lshl_b32 s83, s{sT}, 9"); a(f"s_add_u32 s83, s83, 3584")
        a(f"s_mov_b32 s{sSlot}, {CSC}"); a(f"s_mov_b32 s{sT}, {CSC}")
        a(f"s_mov_b32 s{sCnt}, 0")
        a(f"s_cmp_eq_u32 s{sNeed}, s{sM0}")
        g.stamp(5)
        a("s_cbranch_scc1 L_sdone")
        a.lab("L_spoll")
        a(f"buffer_load_dword v42, v41, {R(rWS)}, 0 offen sc1")
        a(f"s_add_u32 s{sCnt}, s{sCnt}, 1"); a(f"s_cmp_lt_u32 s{sCnt}, {SPIN}")
        a("s_waitcnt vmcnt(0)")
        a("v_cmp_eq_u32 vcc, 0, v42"); a("s_cbranch_scc0 L_sok"); a("s_cbranch_vccnz L_spoll")
        a.lab("L_sok")
        for so, n in ((82, 2), (83, 3)):
            a(f"s_add_u32 m0, s84, s{so}"); a(f"s_add_u32 s{sTmp}, s{sS0}, s{so}")
            for e in range(n): a(f"buffer_load_dwordx4 v45, {R(rWS)}, s{sTmp} offen offset:{1024*e} sc1 lds")
        g.stamp(4)
        a.lab("L_sdone")
        g.cntwait("l", 46, 47)
        if g.opt.get("prio", 1): a("s_setprio 1")
        a("s_waitcnt vmcnt(0)")
        g.stamp(6)
        a("s_branch L_units")

    sLd = 66
    def l_setup(g):
        a = g.a
        sLW, sTmp, sS0, sS1, sNeed = 64, 68, 69, 70, 71
        a(f"s_lshl_b32 s{sT}, s{sLW}, 30"); a(f"s_and_b32 s{sT}, s{sT}, 0x80000000"); a(f"s_sub_u32 s{sTmp}, s{sM0}, 4")
        a("v_bfe_u32 v8, v0, 3, 2"); a(f"v_add_u32 v8, s{sTmp}, v8"); a("v_and_b32 v8, 0x80000000, v8"); a(f"v_xor_b32 v8, s{sT}, v8"); a("v_lshl_or_b32 v45, v0, 4, v8")
        a(f"v_mov_b32 v46, {L_CNT}")
        a(";cut")
        g.fl_addr()
        a(f"s_lshr_b32 s{sS1}, s{sLW}, 1")
        a(f"s_mul_i32 s{sTmp}, s{sS1}, 3")
        g.unit_setup(sTmp)
        a(";cut")
        for r in range(g.B1, g.B1+24, 2): a(f"v_mov_b64 {V(r,2)}, 0")
        a(";cut")
        a(f"s_lshl1_add_u32 s{sS0}, s{sCG}, s{sS1}"); a(f"s_mul_i32 s{sS0}, s{sS0}, 7168"); a(f"s_mul_i32 s{sT}, s{sTB}, {BLK}"); a(f"s_add_u32 s{sS0}, s{sS0}, s{sT}")
        a(f"s_lshl2_add_u32 s{sT}, s{sS1}, s{g.sFL}"); a(f"v_mov_b32 v41, s{sT}")
        a(f"s_lshl_b32 s{sNeed}, s{sS1}, 2")
        a(";cut")
        g.emit(g.unit_late()[:-2])

    AQ, AK, AV = 4, 32, 60
    XA = (88, 128); WB = (116, 156)
    VL, VR = 168, 184
    vXA0, vXA1, vWB, vO = 248, 249, 250, 125
    mSend, mCL = 64, 66
    sXg, sXf, sPL, sPR, sKey, sD = 80, 81, 82, 83, 75, 79

    def cwave(g):
        a = g.a
        a.lab("L_cwave")
        sM, sAL, sAR, sU = 74, 75, 78, 79
        a("v_and_b32 v1, 15, v0")
        a("v_lshrrev_b32 v2, 4, v0")
        for r in range(4): a(f"v_mov_b32 v{88+r}, 0")
        a("v_lshlrev_b32 v12, 7, v0")
        g.ptrs(); g.ptrs2(); g.fl_addr()
        a(f"s_mul_i32 s{sJ}, s{sCG}, 14336"); a(f"s_mul_i32 s{sT}, s{sTB}, {BLK}"); a(f"s_add_u32 s{sJ}, s{sJ}, s{sT}")
        a(f"s_cmp_eq_u32 s{sW}, 0"); a("s_cbranch_scc0 L_ch1")
        a("s_mov_b64 exec, 3")
        a(f"buffer_store_dwordx4 v[88:91], v12, {R(rWS)}, s{g.sFL} offen sc1")
        a("s_branch L_ch3")
        a.lab("L_ch1")
        if g.opt.get("tlb", 1):
            a(f"s_cmp_eq_u32 s{sW}, 3"); a("s_cbranch_scc0 L_ch2" if g.opt.get("mb", 0) else "s_cbranch_scc0 L_ch3")
            a(f"s_max_i32 s{sT}, s{sI0}, 0"); a(f"s_mul_i32 s{sT}, s{sT}, 2560"); a(f"v_mul_u32_u24 v13, {100*2560}, v0")
            a("s_mov_b64 exec, 3")
            a(f"buffer_load_dword v{g.XA[1]}, v13, {R(rOUT)}, s{sT} offen sc1")
        mb = g.opt.get("mb", 0)
        if mb:
            a("s_branch L_ch3")
            a.lab("L_ch2")
            if mb == 1: a(f"s_cmp_eq_u32 s{sW}, 1"); a("s_cbranch_scc0 L_ch3")
            g.wtouch_addr(12, 13, 14)
            a(f"s_lshr_b32 s{sT}, s2, 3"); a(f"s_mul_i32 s{sCnt}, s{sW}, 25"); a(f"s_add_u32 s{sT}, s{sT}, s{sCnt}"); a(f"s_add_u32 s{sT}, s{sT}, {g.opt.get('mb0', 3)-25}")
            a(f"s_mul_i32 s{sT}, s{sT}, {16*3840}"); a(f"v_add_u32 v14, s{sT}, v14")
            a("s_mov_b32 exec_hi, 0x0fffffff")
            a(f"buffer_load_dword v{g.XA[1]}, v14, {R(rW)}, 0 offen")
        a.lab("L_ch3")
        a("s_mov_b64 exec, -1")
        a(f"s_add_u32 s{sM}, s{sW}, 5"); a(f"s_sub_u32 s{sM}, s{sM}, s{sM0}")
        a(f"s_cmp_ge_u32 s{sM}, 5"); a(f"s_cselect_b32 s{sT}, 5, 0"); a(f"s_sub_u32 s{sM}, s{sM}, s{sT}")
        a(f"s_cmp_gt_u32 s{sW}, s{sM0}"); a(f"s_subb_u32 s{g.sPL}, s{sW}, 0")
        a(f"s_cmp_lt_u32 s{sW}, s{sM0}"); a(f"s_addc_u32 s{g.sPR}, s{sW}, 0")
        a(f"s_min_u32 s{g.sPR}, s{g.sPR}, 3")
        a(f"s_mul_i32 s{g.sPL}, s{g.sPL}, 7168"); a(f"s_mul_i32 s{g.sPR}, s{g.sPR}, 7168")
        a(f"s_add_u32 s{g.sPL}, s{g.sPL}, {L_P}"); a(f"s_add_u32 s{g.sPR}, s{g.sPR}, {L_P}")
        a(f"v_cmp_gt_u32 vcc, s{sM}, v2")
        a("v_lshrrev_b32 v12, 2, v1")
        a(f"v_cmp_gt_u32 {S(g.mCL,2)}, s{sM}, v12")
        a(f"s_cmp_eq_u32 s{sW}, 3"); a(f"s_cselect_b64 {S(g.mSend,2)}, -1, 0"); a(f"s_cselect_b32 s{sT}, 2, -1"); a(f"s_cselect_b32 s{sU}, 508, 0")
        a(f"s_xor_b64 {S(g.mSend,2)}, {S(g.mSend,2)}, vcc")
        a(f"s_mul_i32 s{g.sXg}, s{sT}, 7168"); a(f"s_add_u32 s{g.sXg}, s{g.sXg}, s{sJ}")
        a(f"s_add_u32 s{g.sXf}, s{g.sFL}, s{sU}"); a(f"s_sub_u32 s{g.sXf}, s{g.sXf}, 252")
        a(f"s_add_u32 s{sCnt}, s{sW}, 1"); a(f"s_and_b32 s{sCnt}, s{sCnt}, 2"); a(f"s_cselect_b32 s{g.sXf}, 0, s{g.sXf}")
        a(f"s_cmp_eq_u64 {S(g.mSend,2)}, 0"); a(f"s_cselect_b32 s{g.sXf}, 0, s{g.sXf}")
        a(f"s_lshr_b32 s{sU}, s{sW}, 1"); a(f"s_mul_i32 s{sT}, s{sU}, 7168"); a(f"s_add_u32 s{sJ}, s{sJ}, s{sT}")
        a(f"s_and_b32 s{sT}, s{sW}, 1"); a(f"s_lshl_b32 s{sT}, s{sT}, 9"); a(f"s_add_u32 s{sJ}, s{sJ}, s{sT}")
        a(f"s_add_u32 s{sAL}, s{sU}, 1")
        a("s_waitcnt vmcnt(1)")
        g.unit_setup(sAL)
        a(f"s_lshl_b32 s{sT}, s{sW}, 13"); a(f"s_add_u32 s{sT}, s{sT}, {L_P}"); a(f"v_add_u32 v8, s{sT}, v{g.vL16}")
        for j in range(8): a(f"ds_write_b128 v8, v[88:91] offset:{1024*j}")
        a("v_lshrrev_b32 v8, 1, v1"); a("v_xor_b32 v9, v8, v2"); a("v_lshlrev_b32 v9, 4, v9")
        a(f"v_lshl_add_u32 v{g.vXA0}, v1, 7, v9"); a(f"v_xor_b32 v{g.vXA1}, 64, v{g.vXA0}")
        g.tr_addr(g.vWB, f"s{sW}", WOFF)
        g.xres_addr()
        for r in range(g.VL, g.VL+64, 4):
            a(f"v_mfma_f32_16x16x32_bf16 {V(r,4)}, v[88:91], v[88:91], 0")

        def reads(buf, ks):
            out = []
            for sec in range(3):
                for ab in range(2):
                    out.append(f"ds_read_b64_tr_b16 {V(g.WB[buf]+4*sec+2*ab,2)}, v{g.vWB} offset:{(ks*3+sec)*4096+ab*2048}")
            for t in range(7):
                out.append(f"ds_read_b128 {V(g.XA[buf]+4*t,4)}, v{g.vXA0 if ks == 0 else g.vXA1} offset:{t*2048}")
            return out
        first = [True]
        def mf(buf, t, sec):
            acc = V((g.AQ, g.AK, g.AV)[sec]+4*t, 4); x = V(g.XA[buf]+4*t, 4); w = V(g.WB[buf]+4*sec, 4)
            return f"v_mfma_f32_16x16x32_bf16 {acc}, {x if sec == 2 else w}, {w if sec == 2 else x}, {0 if first[0] else acc}"
        def phase(buf, fill):
            mo = g.opt.get("mo", 0)
            if mo == 0: ms = [mf(buf, t, sec) for t in range(7) for sec in range(3)]
            if mo == 1: ms = [mf(buf, t, sec) for sec in range(3) for t in range(7)]
            if mo == 2: ms = [mf(buf, t, sec) for t in range(7) for sec in range(2)] + [mf(buf, t, 2) for t in range(7)]
            if mo == 3: ms = [mf(buf, t, sec if t % 2 == 0 else 1-sec) for t in range(7) for sec in range(2)] + [mf(buf, t, 2) for t in range(7)]
            if g.opt.get("nomf"): ms = [m if i % g.opt["nomf"] else "s_nop 3" for i, m in enumerate(ms)]
            fill = list(fill)
            if g.opt.get("nord"): fill = [[] if isinstance(f, str) and f.startswith("ds_read") else f for f in fill]
            for m in ms:
                a(m)
                if fill:
                    f = fill.pop(0)
                    for x in (f if isinstance(f, list) else [f]):
                        if x.endswith(":"): a.lab(x[:-1])
                        else: a(x)
            assert not fill
            first[0] = False
        a(f"s_cmp_eq_u32 s{sW}, 0"); a("s_cbranch_scc0 L_ch4")
        a(f"v_mov_b32 v1, s{g.sFL}")
        a("s_waitcnt vmcnt(0)")
        a(f"buffer_load_dword v2, v1, {R(rWS)}, 0 offen sc1")
        a("s_branch L_ch5")
        a.lab("L_ch4")
        a("s_waitcnt vmcnt(0)")
        a.lab("L_ch5")
        g.stamp(1)
        a("s_barrier")
        g.stamp(2)
        for r in reads(0, 0): a(r)
        slot = lambda c: (0, 2*SLOT, SLOT)[c % 3]
        for c in range(10):
            if c > 0:
                st = [[("s_memrealtime" if g.opt.get("rt") else "s_memtime") + " s[98:99]"]] if g.stamps is True or g.opt.get("bars") else []
                pre = g.arr_load() if c == 8 else []
                st = st + ([pre[3:]] if pre else []); pre = pre[:3]
                ex = g.arr_check("c", sT, sCnt, 1, g.VL) if c == 9 else []
                phase(1, [["s_barrier"] + pre] + st + reads(0, 0) + ex)
            a("s_waitcnt lgkmcnt(0)")
            book = [[f"s_cmp_eq_u32 s{sCG}, {c}", f"s_cbranch_scc1 L_xres_{c}", f"L_xret_{c}:"]]
            if c < 9:
                d = (slot(c+1) - slot(c)) & 0xffffffff
                book += [f"v_add_u32 v{r}, {d}, v{r}" for r in (g.vXA0, g.vXA1, g.vWB)]
            if c == 4: book.append("s_waitcnt vmcnt(0)")
            if (g.stamps is True or g.opt.get("bars")) and 0 < c < 9: book.append(f"v_writelane_b32 v253, s98, {32+c}")
            if c == 9: break
            book += [[]] * (7 - len(book)) + ["s_waitcnt lgkmcnt(0)"]
            phase(0, reads(1, 1) + book)
        rd = reads(1, 1)
        rd = rd[2:4] + rd[6:] + rd[0:2] + rd[4:6]
        cv = lambda s_, t: [f"v_cvt_pk_bf16_f32 v{s_+4*t+h}, v{s_+4*t+2*h}, v{s_+4*t+2*h+1}" for h in range(2)]
        stK = lambda t, fl="": f"buffer_store_dwordx2 {V(g.AK+4*t,2)}, v1, {R(rWS)}, s{sCnt} offen offset:{t*512} {fl}"
        stQ = lambda t, fl="": f"buffer_store_dwordx2 {V(g.AQ+4*t,2)}, v1, {R(rWS)}, s{g.sXg} offen offset:{t*512} {fl}"
        wK = lambda t: f"ds_write_b64 v2, {V(g.AK+4*t,2)} offset:{3584+t*512}"
        wQ = lambda t: f"ds_write_b64 v2, {V(g.AQ+4*t,2)} offset:{t*512}"
        nq = g.opt.get("nq", 3)
        ms = [mf(0, t, 1) for t in range(7)] + [mf(0, t, 0) for t in range(nq)] + [mf(1, t, 1) for t in range(7)]
        fill = [rd[0:2], rd[2:4], rd[4:5], rd[5:7], rd[7:8], rd[8:10], rd[10:11], rd[11:13]] + book
        fill += [[]] * (6 + nq - len(fill)) + [["s_waitcnt lgkmcnt(4)"]]
        assert len(fill) == 7 + nq
        fill += [[f"s_mul_i32 s{sCnt}, s{sW}, 7168", f"s_add_u32 s{sCnt}, s{sCnt}, {L_QK+7168}", "v_lshlrev_b32 v1, 3, v0"],
                 [f"v_add_u32 v2, s{sCnt}, v1", f"s_cmp_eq_u32 s{g.sLoc}, 0", f"s_cselect_b32 s70, 0, s{g.sXf}"],
                 ["s_cmp_eq_u32 s70, 0", f"s_cselect_b64 vcc, 0, {S(g.mSend,2)}", "v_bfrev_b32 v3, 1"],
                 ["v_cndmask_b32_e64 v1, v3, v1, vcc", f"s_add_u32 s{sCnt}, s{g.sXg}, 3584"], [], [],
                 ["s_waitcnt lgkmcnt(0)", f"s_load_dword s{g.sKey}, {S(rDBG,2)}, {0*4}"]]
        for m in ms:
            a(m); g.emit([fill.pop(0)])
        g.stamp(3)
        nst = [0]
        def stub():
            if not g.opt.get("warm", 0): return
            a.lab(f"L_hop{nst[0]}"); nst[0] += 1
            a("s_cbranch_execz L_hopret")
        def dump(send):
            il = g.opt.get("il", 0) or not send
            ms = [mf(0, t, 0) for t in range(nq, 7)] + [mf(1, t, 0) for t in range(7)]
            ops = []
            for t in range(7): ops += cv(g.AK, t) + ([stK(t)] if send else []) + [wK(t)]
            for n, m in enumerate(ms):
                a(m)
                k1 = (n + 1) * len(ops) // len(ms); k0 = n * len(ops) // len(ms)
                g.emit(ops[k0:k1])
                if not send and n in (5, len(ms)-1): stub()
            def count():
                a(f"v_mov_b32 v{g.AQ+2}, {L_CNT}"); a(f"v_mov_b32 v{g.AQ+3}, 1")
                a("s_mov_b64 exec, 1")
                a(f"ds_add_u32 v{g.AQ+2}, v{g.AQ+3}")
                a("s_mov_b64 exec, -1")
            for t in range(7):
                g.emit(cv(g.AQ, t) + ([stQ(t)] if send else []))
                if il: a(wQ(t)); a(mf(0, t, 2))
                if not send and t == 3: stub()
            if not il:
                for t in range(7): a(wQ(t)); a(mf(0, t, 2))
            count()
        a("s_cbranch_vccz L_nosend")
        if g.opt.get("adj", 1):
            dump(True); a("s_branch L_dumped")
            a.lab("L_nosend"); stub(); dump(False)
            a.lab("L_dumped")
        else:
            dump(True)
            a.lab("L_dumped")
            def t():
                a.lab("L_nosend"); stub(); dump(False); a("s_branch L_dumped")
            g.tail.append(t)
        late = g.unit_late()
        for t in range(7):
            if t == g.opt.get("fpos", 3):
                a("v_mov_b32 v1, 0"); a("v_mov_b32 v2, 1")
                a("s_cmp_eq_u32 s70, 0"); a("s_cbranch_scc1 L_noflag")
                a("s_mov_b64 exec, 1"); a("s_waitcnt vmcnt(0)")
                a(f"buffer_store_dword v2, v1, {R(rWS)}, s70 offen")
                if g.opt.get("chain"): g.stamp(13)
                a.lab("L_noflag")
                a("s_mov_b64 exec, -1")
            a(mf(1, t, 2))
            if t == g.opt.get("cpos", 3): a(f"ds_read_b32 v3, v{g.AQ+2}")
            for _ in range(2):
                if late: a(late.pop(0))
        g.emit(late)
        a(f"s_cmp_lg_u32 s70, s{g.sXf}"); a("s_cbranch_scc1 L_send1")
        a.lab("L_sent")
        def t():
            a.lab("L_send1")
            a("v_lshlrev_b32 v1, 3, v0")
            a(f"s_mov_b64 exec, {S(g.mSend,2)}")
            for t in range(7): a(stK(t, "sc1")); a(stQ(t, "sc1"))
            a("s_mov_b64 exec, 1"); a("v_mov_b32 v1, 0"); a("s_waitcnt vmcnt(0)")
            a(f"buffer_store_dword v{g.AQ+3}, v1, {R(rWS)}, s{g.sXf} offen sc1"); a("s_mov_b64 exec, -1")
            a("s_branch L_sent")
        g.tail.append(t)
        def t():
            for c in range(10):
                a.lab(f"L_xres_{c}"); a(f"s_call_b64 s[26:27], L_xres"); a(f"s_branch L_xret_{c}")
            a.lab("L_xres"); g.xres_read(); a("s_setpc_b64 s[26:27]")
        g.tail.append(t)
        g.stamp(4)
        if g.opt.get("vpos", 1) == 0: g.vcvt()
        a("s_waitcnt lgkmcnt(0)")
        a("v_cmp_gt_u32 vcc, 4, v3"); a("s_cbranch_vccz L_cw_ok")
        g.cntwait("c", g.AQ+2, 3)
        a.lab("L_cw_ok")
        g.stamp(6)

    def flagstore(g, nm, sOff, off=0, wait=True):
        a = g.a
        a("v_mov_b32 v1, 0"); a("v_mov_b32 v3, 1")
        a(f"s_cmp_eq_u32 s{g.sLoc}, 0")
        a("s_mov_b64 exec, 1")
        if wait: a("s_waitcnt vmcnt(0)")
        a(f"s_cbranch_scc1 L_fs_{nm}")
        a(f"buffer_store_dword v3, v1, {R(rWS)}, s{sOff} offen offset:{off}")
        a.lab(f"L_fr_{nm}")
        a("s_mov_b64 exec, -1")
        def t():
            a.lab(f"L_fs_{nm}")
            a(f"buffer_store_dword v3, v1, {R(rWS)}, s{sOff} offen offset:{off} sc1")
            a(f"s_branch L_fr_{nm}")
        g.tail.append(t)

    def wtouch_addr(g, t0, t1, d):
        a = g.a
        a(f"v_mul_u32_u24 v{t0}, 4370, v0"); a(f"v_lshrrev_b32 v{t0}, 16, v{t0}")
        a(f"v_mul_u32_u24 v{t1}, 15, v{t0}"); a(f"v_sub_u32 v{t1}, v0, v{t1}")
        a(f"v_mul_u32_u24 v{d}, 52, v{t1}"); a(f"v_lshrrev_b32 v{d}, 8, v{d}")
        a(f"v_mul_u32_u24 v{d}, 640, v{d}"); a(f"v_lshl_add_u32 v{d}, v{t1}, 7, v{d}")
        a(f"v_mul_u32_u24 v{t0}, {4*3840}, v{t0}")
        a(f"s_bfe_u32 s{sT}, s2, 0x20001"); a(f"s_mul_i32 s{sT}, s{sT}, 6"); a(f"s_and_b32 s{sCnt}, s2, 1")
        a(f"s_add_u32 s{sT}, s{sT}, s{sCnt}"); a(f"s_mul_i32 s{sT}, s{sT}, 640")
        a(f"v_add3_u32 v{d}, s{sT}, v{d}, v{t0}")

    def lbeta(g):
        a = g.a
        a("s_waitcnt lgkmcnt(0)")
        if g.opt.get("chain"): g.stamp(14)
        if g.opt.get("prio", 1): a("s_setprio 0")
        a("s_barrier")

    def vcvt(g):
        a = g.a
        for dst, ex in ((g.VL, f"s_mov_b64 exec, {S(g.mCL,2)}"), (g.VR, "s_not_b64 exec, exec")):
            a(ex)
            for t in range(7):
                for h in range(2): a(f"v_cvt_pk_bf16_f32 v{dst+2+2*t+h}, v{g.AV+4*t+2*h}, v{g.AV+4*t+2*h+1}")
        a("s_mov_b64 exec, -1")

    def cntwait(g, nm, va, vd):
        a = g.a
        a.lab(f"L_cw_{nm}")
        a(f"ds_read_b32 v{vd}, v{va}")
        a("s_waitcnt lgkmcnt(0)")
        a(f"v_cmp_gt_u32 vcc, 4, v{vd}")
        a(f"s_cbranch_vccnz L_cw_{nm}")

    def tr_addr(g, dst, win, base, t0=9, t1=10, hmul=1024):
        a = g.a
        a(f"v_bfe_u32 v{t0}, v0, 3, 2")
        if win != "0": a(f"v_xor_b32 v{t0}, {win}, v{t0}")
        a(f"v_lshlrev_b32 v{t0}, 5, v{t0}")
        a(f"v_and_b32 v{t1}, 3, v0"); a(f"v_lshl_add_u32 v{t0}, v{t1}, 3, v{t0}")
        a(f"v_lshrrev_b32 v{t1}, 2, v0"); a(f"v_lshl_add_u32 v{t0}, v{t1}, 7, v{t0}")
        if hmul == 2048:
            a(f"v_and_b32 v{t1}, 32, v0"); a(f"v_lshl_add_u32 v{t0}, v{t1}, 5, v{t0}")
        a(f"v_add_u32 v{dst}, {base}, v{t0}")

    def poison_max(g, base, n, t, cont=False):
        a = g.a
        k = 0
        if not cont:
            a(f"v_max3_u32 v{t}, v{base}, v{base+1}, v{base+2}"); k = 3
        while k + 1 < n:
            a(f"v_max3_u32 v{t}, v{t}, v{base+k}, v{base+k+1}"); k += 2
        if k < n: a(f"v_max_u32 v{t}, v{t}, v{base+k}")

    def softmax(g):
        a = g.a
        a.lab("L_units")
        A, B, M = 4, 20, 36
        A1, A2, vK = 128, 144, g.vK
        sc = S(sSlot, 2)
        for u in range(4): a(f"ds_read_b64 {V(A2+2*u,2)}, v{vK+2+(u==0)} offset:{3584+u*512}")
        a("s_mov_b32 exec_lo, 0xff0000ff"); a("s_mov_b32 exec_hi, 0")
        for u in range(4): a(f"ds_read_b64 {V(g.B2+2*u,2)}, v{g.vQ2} offset:{u*512}")
        a("s_mov_b32 exec_lo, 0x00ff00ff"); a("s_mov_b32 exec_hi, exec_lo")
        for u in range(4): a(f"ds_read_b64 {V(g.B1+4*u,2)}, v{g.vQ1} offset:{u*512}")
        a("s_not_b64 exec, exec")
        for u in range(4): a(f"ds_read_b64 {V(g.B1+4*u+2,2)}, v{g.vQ1} offset:{u*512}")
        a("s_mov_b64 exec, -1")
        for u in range(4):
            if u == 0: a("s_waitcnt lgkmcnt(8)")
            a(f"v_mfma_f32_16x16x16_bf16 {V(A+4*u,4)}, {V(A2+2*u,2)}, {V(g.B2+2*u,2)}, {V(g.BI0 if u == 0 else g.BI,4)}")
            a(f"ds_read_b64 {V(A1+4*u,2)}, v{vK+(u==0)} offset:{3584+u*512}")
            a(f"ds_read_b64 {V(A1+4*u+2,2)}, v{g.vQ1} offset:{3584+u*512}")
        for u in range(4):
            a(f"s_waitcnt lgkmcnt({6-2*u})")
            a(f"v_mfma_f32_16x16x32_bf16 {V(A+4*u,4)}, {V(A1+4*u,4)}, {V(g.B1+4*u,4)}, {V(A+4*u,4)}")
        g.stamp(8)
        for u in range(4): a(f"v_max3_f32 v{M+u}, v{A+4*u}, v{A+4*u+1}, v{A+4*u+2}")
        for u in range(4): a(f"v_max_f32 v{M+u}, v{M+u}, v{A+4*u+3}")
        def red(op):
            a(f"v_permlane32_swap_b32 v{M}, v{M+1}"); a(f"v_permlane32_swap_b32 v{M+2}, v{M+3}")
            a(f"{op} v{M}, v{M}, v{M+1}"); a(f"{op} v{M+2}, v{M+2}, v{M+3}")
            a(f"v_permlane16_swap_b32 v{M}, v{M+2}")
            a(f"{op} v{M}, v{M}, v{M+2}")
        def bc():
            a(f"v_permlane16_swap_b32 v{M}, v{M+2}")
            a(f"v_mov_b32 v{M+1}, v{M}"); a(f"v_mov_b32 v{M+3}, v{M+2}")
            a(f"v_permlane32_swap_b32 v{M}, v{M+1}"); a(f"v_permlane32_swap_b32 v{M+2}, v{M+3}")
        red("v_max_f32")
        a(f"v_mul_f32 v{M+2}, s{sSlot}, v{M}"); a(f"v_mul_f32 v{M}, s{sSlot}, v{M}")
        bc()
        for k in range(0, 16, 2):
            u = k//4; sel = "op_sel_hi:[1,1,0]" if u % 2 == 0 else "op_sel:[0,0,1] op_sel_hi:[1,1,1]"
            a(f"v_pk_fma_f32 {V(A+k,2)}, {V(A+k,2)}, {sc}, {V(M+(u&2),2)} {sel} neg_lo:[0,0,1] neg_hi:[0,0,1]")
        norm = g.opt.get("norm", 1)
        if norm:
            for k in range(16): a(f"v_exp_f32 v{A+k}, v{A+k}")
            for u in range(4): a(f"v_pk_add_f32 {V(B+2*u,2)}, {V(A+4*u,2)}, {V(A+4*u+2,2)}")
            for u in range(4): a(f"v_add_f32 v{M+u}, v{B+2*u}, v{B+2*u+1}")
            red("v_add_f32")
            a(f"v_rcp_f32 v{M+2}, v{M}"); a(f"v_rcp_f32 v{M}, v{M}")
            bc()
            for u in range(4):
                sel = "op_sel_hi:[1,0]" if u % 2 == 0 else "op_sel:[0,1] op_sel_hi:[1,1]"
                for k in (0, 2): a(f"v_pk_mul_f32 {V(A+4*u+k,2)}, {V(A+4*u+k,2)}, {V(M+(u&2),2)} {sel}")
                for h in range(2): a(f"v_cvt_pk_bf16_f32 v{B+2*u+h}, v{A+4*u+2*h}, v{A+4*u+2*h+1}")
                a(f"ds_write_b64 v{g.vSP}, {V(B+2*u,2)} offset:{u*1024}")
        for u in range(0 if norm else 5):
            if u < 4:
                for k in range(4): a(f"v_exp_f32 v{A+4*u+k}, v{A+4*u+k}")
            if u > 0:
                for h in range(2): a(f"v_cvt_pk_bf16_f32 v{B+2*u-2+h}, v{A+4*u-4+2*h}, v{A+4*u-4+2*h+1}")
                a(f"ds_write_b64 v{g.vSP}, {V(B+2*u-2,2)} offset:{(u-1)*1024}")
        a(f"s_cmp_ge_u32 s{sW}, 4"); a("s_cbranch_scc0 L_cbeta")
        for e in range(12, 20):
            if e == 12 + g.opt.get("wob", 8): g.lbeta()
            a(f"s_sub_u32 m0, s67, {L_WO - L_WO2 - (e-12)*4096}")
            a(f"s_add_u32 s68, s{22 + e//2 - 6}, {40960*(e&1)}")
            a(f"buffer_load_dwordx4 v43, {R(rWO)}, s68 offen lds")
        if g.opt.get("wob", 8) >= 8: g.lbeta()
        a("s_branch L_lbeta")
        a.lab("L_cbeta")
        g.stamp(7)
        PL, PR = 88, 128
        if g.opt.get("vpos", 1) == 1: g.vcvt()
        if not norm:
            a("v_mov_b32 v1, 0x3f803f80")
            a(f"v_cndmask_b32_e64 v{g.BI}, 0, v1, {S(g.mCL,2)}"); a(f"v_cndmask_b32_e64 v{g.BI0}, v1, 0, {S(g.mCL,2)}")
            for r in (g.BI, g.BI0): a(f"v_mov_b32 v{r+1}, v{r}"); a(f"v_mov_b64 {V(r+2,2)}, {V(r,2)}")
        a(f"v_and_b32 v2, 32, v0"); a(f"v_lshl_add_u32 v{g.vO}, v2, 4, v{g.vL16}")
        a(f"v_add_u32 v1, s{g.sPL}, v{g.vL16}"); a(f"v_add_u32 v2, s{g.sPR}, v{g.vL16}")
        a(f"s_add_u32 s{sT}, s{sJ}, 4096"); a(f"s_add_u32 s68, s{sJ}, {WS_OG}"); a(f"s_add_u32 s69, s{sT}, {WS_OG}")
        a("s_waitcnt lgkmcnt(0)")
        if g.opt.get("chain"): g.stamp(14)
        a("s_barrier")
        g.stamp(9)
        for t in range(7):
            a(f"ds_read_b128 {V(PL+4*t,4)}, v1 offset:{t*1024}")
            a(f"ds_read_b128 {V(PR+4*t,4)}, v2 offset:{t*1024}")
        a(f"s_lshr_b32 s70, s{sW}, 1"); a(f"s_mul_i32 s70, s70, {7168-1024}"); a(f"s_lshl_b32 s{sCnt}, s{sW}, 9"); a(f"s_add_u32 s70, s70, s{sCnt}"); a(f"s_add_u32 s70, s70, {L_OWN}")
        a(f"v_add_u32 v83, s70, v{g.vO}")
        a(f"s_lshl_b32 s70, s{sW}, 2"); a(f"s_add_u32 s70, s70, {L_GF}"); a(f"v_mov_b32 v84, s70")
        OP = 60
        SM = 32
        def post(t):
            j, q = divmod(t, 2)
            o = [f"v_rcp_f32 v{SM+4*t}, v{SM+4*t}"]
            o += [f"v_pk_mul_f32 {V(4+4*t+k,2)}, {V(4+4*t+k,2)}, {V(SM+4*t,2)} op_sel_hi:[1,0]" for k in (0, 2)]
            o += [f"v_cvt_pk_bf16_f32 v{OP+2*t+h}, v{4+4*t+2*h}, v{4+4*t+2*h+1}" for h in range(2)]
            return o[3:] if norm else o
        def out(j):
            o = [f"v_permlane32_swap_b32 v{OP+4*j+h}, v{OP+4*j+2+h}" for h in range(2)]
            if j == 3: o.append("s_mov_b32 exec_hi, 0")
            o.append(f"buffer_store_dwordx4 {V(OP+4*j,4)}, v{g.vO}, {R(rWS)}, s{68 if j < 2 else 69} offen offset:{(j%2)*2048} sc1")
            return o
        q = []
        lag = 3 if norm else 2
        for t in range(7):
            a(f"s_waitcnt lgkmcnt({12-2*t})")
            if norm and t == 5: q += out(0)
            if t >= lag: q += post(t-lag)
            if not norm and t in (4, 6): q += out(t//2 - 2)
            ms = [f"v_mfma_f32_16x16x32_bf16 {V(SM+4*t,4)}, {V(g.BI,4)}, {V(PL+4*t,4)}, 0",
                  f"v_mfma_f32_16x16x32_bf16 {V(SM+4*t,4)}, {V(g.BI0,4)}, {V(PR+4*t,4)}, {V(SM+4*t,4)}",
                  f"v_mfma_f32_16x16x32_bf16 {V(4+4*t,4)}, {V(g.VL+2*t,4)}, {V(PL+4*t,4)}, 0",
                  f"v_mfma_f32_16x16x32_bf16 {V(4+4*t,4)}, {V(g.VR+2*t,4)}, {V(PR+4*t,4)}, {V(4+4*t,4)}"]
            for n, m in enumerate(ms[2:] if norm else ms):
                a(m)
                for _ in range(1 if n == 0 else 2):
                    if q: a(q.pop(0))
        p5, p6 = post(5), post(6)
        if norm: g.emit(q + post(4) + out(1) + p5 + p6 + out(2) + out(3))
        else: g.emit(q + p5[:1] + p6[:1] + p5[1:] + p6[1:3] + out(2) + p6[3:] + out(3))
        g.stamp(10)
        for j in (3, 0, 1, 2):
            a(f"ds_write_b128 v83, {V(OP+4*j,4)} offset:{j*2048}")
            if j == 3: a("s_mov_b32 exec_hi, -1")
        a("s_waitcnt lgkmcnt(0)")
        a("s_barrier")
        g.stamp(5)
        a("s_branch L_cfin")
        a.lab("L_lbeta")
        g.s2_setup(); g.s2_setup2()
        g.stamp(9)

    vA, vB, vE = 224, 232, 236
    sO = 72
    sOut = 82
    def s2_setup2(g):
        a = g.a
        sB5, sR = 82, 83
        a(f"s_sub_u32 s{sB5}, s{sCG}, s{sM0}"); a(f"s_mul_i32 s{sB5}, s{sB5}, 14336")
        a(f"s_add_u32 s{sT}, s{sB5}, {WS_OG}")
        a(f"s_sub_u32 s{sCnt}, {WS_OG+5*14336}, s{sB5}")
        for j in range(10):
            g.gidx(j, sR, g.sCur)
            a(f"s_mul_i32 s{sR}, s{sR}, 14336"); a(f"s_add_u32 s{g.sO+j}, s{sT if j < 5 else sCnt}, s{sR}")
    def gidx(g, j, d, t):
        a = g.a
        if g.rot == 1 or j == 0 or (g.rot == 3 and j >= 5):
            a(f"s_add_u32 s{d}, s{sM0}, {j % 5}"); a(f"s_cmp_ge_u32 s{d}, 5"); a(f"s_cselect_b32 s{t}, 5, 0"); a(f"s_sub_u32 s{d}, s{d}, s{t}")
        elif j < 5: a(f"s_cmp_lt_u32 s{sM0}, {j}"); a(f"s_cselect_b32 s{d}, {j}, {j-1}")
        else: a(f"s_mov_b32 s{d}, {j-5}")
    def s2_setup(g):
        a = g.a
        sLW, sGi = 64, 84
        a(f"s_mul_i32 s{sT}, s{sTB}, {BLK}"); a(f"s_lshl_b32 s{sCnt}, s{sLW}, 11"); a(f"s_add_u32 s{sT}, s{sT}, s{sCnt}")
        a(f"v_add_u32 v{g.vA}, s{sT}, v{g.vL16}")
        a(f"s_cmp_eq_u32 s{sLW}, 3"); a(f"s_cselect_b32 s{sT}, 0x80000000, 0"); a(f"s_add_u32 s{sT}, s{sT}, 1024")
        a(f"v_add_u32 v{g.vA+1}, s{sT}, v{g.vA}")
        for q in range(2): a(f"v_add_u32 v{g.vA+2+q}, 7168, v{g.vA+q}")
        g.tr_addr(g.vB, "0", L_WO, 8, 9, hmul=2048)
        for tau in range(1, 4): a(f"v_xor_b32 v{g.vB+tau}, {32*tau}, v{g.vB}")
        a(f"s_lshl_b32 s{sT}, s{sM0}, 8"); a(f"s_sub_u32 s{sT}, s{g.sFL}, s{sT}")
        a("v_and_b32 v8, 3, v0"); a(f"v_cmp_le_u32 vcc, s{sM0}, v8"); a("v_addc_co_u32 v8, vcc, 0, v8, vcc"); a(f"v_lshl_add_u32 v{g.vA+4}, v8, 8, s{sT}")
        a(";cut")
        a(f"s_mul_i32 s{sT}, s{sLW}, 4608"); a(f"s_add_u32 s{sT}, s{sT}, {L_EP}")
        a("v_and_b32 v8, 15, v0"); a("v_mul_u32_u24 v8, 144, v8"); a("v_lshrrev_b32 v9, 4, v0"); a("v_lshl_add_u32 v8, v9, 3, v8"); a(f"v_add_u32 v{g.vE}, s{sT}, v8")
        a("v_mul_u32_u24 v8, 144, v1"); a("v_lshl_add_u32 v8, v2, 4, v8"); a(f"v_add_u32 v{g.vE+1}, s{sT}, v8")
        a(f"s_mul_i32 s{sT}, s{sLW}, 9216"); a(f"s_add_u32 s{sT}, s{sT}, {L_BB}"); a(f"v_add_u32 v{g.vE+2}, s{sT}, v{g.vL16}")
        a("v_mul_u32_u24 v8, 2560, v1"); a(f"v_lshl_add_u32 v{g.vE+3}, v2, 4, v8")
        a(";cut")
        a(f"s_lshl_b32 s{sGi}, s{sLW}, 5"); a(f"s_add_u32 s{sT}, s{sGi}, s{sI0}")
        a(f"s_lshl1_add_u32 s{sT}, s{sT}, s{sP}"); a(f"s_mul_i32 s{sT}, s{sT}, 1280"); a(f"s_lshl_b32 s{sCnt}, s{sCG}, 7"); a(f"s_add_u32 s{sT}, s{sT}, s{sCnt}")
        a(f"s_cmp_eq_u32 s{sJB}, 4"); a(f"s_cselect_b32 s{sCnt}, 0, 8"); a(f"s_add_u32 s{sCnt}, s{sCnt}, 96")
        a(f"s_sub_u32 s{sGi}, s{sGi}, 8")
        for e in range(4):
            a(f"s_cmp_lt_u32 s{sGi}, s{sCnt}"); a(f"s_cselect_b32 s{g.sOut}, s{sT}, 0x80000000")
            a(f"v_add_u32 v{(229,230,231,250)[e]}, s{g.sOut}, v{g.vE+3}")
            if e < 3: a(f"s_add_u32 s{sGi}, s{sGi}, 8"); a(f"s_add_u32 s{sT}, s{sT}, {8*2560}")

    def stage2(g):
        a = g.a
        a.lab("L_s2")
        D = g.depth
        NA = D + 2; NB = g.opt.get("nb", 8)
        AC, AF = 4, 36
        BF = AF + 8*NA
        assert BF + 16*NB <= 224, (BF, NB)
        vA, vB, vE, sO = g.vA, g.vB, g.vE, g.sO
        af = lambda k, q: AF + 8*(k % NA) + 4*q
        bf = lambda k: BF + 16*(k % NB)
        def aload(k): return [f"buffer_load_dwordx4 {V(af(k,q),4)}, v{vA+2*(k%2)+q}, {R(rWS)}, s{sO+k//2} offen sc1" for q in range(2)]
        def breads(k):
            return [[f"ds_read_b64_tr_b16 {V(bf(k)+4*tau+2*ab,2)}, v{(vB if k < 12 else 242)+tau} offset:{(k % 12)*4096+ab*1024}"] for tau in range(4) for ab in range(2)]
        p0 = g.opt.get("p0", 2); p1 = g.opt.get("p1", 5)
        for k in range(p0): g.emit(breads(k))
        a(f"s_mov_b32 s{sCnt}, 0"); a(f"s_add_u32 s{g.sFL}, s{g.sFL}, 128")
        a(f"s_lshl_b32 s{sT}, s{sW}, 11"); a(f"s_add_u32 s{sT}, s{sT}, {L_OWN-8192}"); a(f"v_add_u32 v3, s{sT}, v{g.vL16}")
        g.stamp(10)
        a("s_barrier")
        for k in range(2):
            for q in range(2): a(f"ds_read_b128 {V(af(k,q),4)}, v3 offset:{k*7168+q*1024}")
        a(f"s_lshl_b32 s{sT}, s{sW}, 2"); a(f"s_add_u32 s{sT}, s{sT}, {L_GF-16}"); a(f"v_mov_b32 v3, s{sT}"); a(f"s_mov_b32 s{g.sCur}, 0")
        a("s_waitcnt lgkmcnt(0)")
        kp = 10 - D - 1
        BBk = 20 - NB
        BBr = bf(BBk)
        assert bf(BBk+1) == BBr + 16
        GG = 240
        pend = []
        for k in range(20):
            tailf = []
            if k == 2:
                for kk in range(p0, p1): g.emit(breads(kk))
                a("s_waitcnt vmcnt(0)")
                a("s_barrier")
                if g.opt.get("prio2", 0): a("s_setprio 1")
                g.stamp(11)
                p2 = g.opt.get("p2", 6)
                for kk in range(p1, p2): g.emit(breads(kk))
                a(f"buffer_load_dword v2, v{vA+4}, {R(rWS)}, 0 offen offset:8 sc1")
                for kk in range(p2, NB): g.emit(breads(kk))
                for tau in range(4): a(f"v_subrev_u32 v{242+tau}, {L_WO-L_WO2}, v{vB+tau}")
                a("s_waitcnt vmcnt(0)")
                a("v_cmp_eq_u32 vcc, 0, v2"); a("s_cbranch_vccz L_ook")
                a.lab("L_opoll")
                a(f"buffer_load_dword v2, v{vA+4}, {R(rWS)}, 0 offen offset:8 sc1")
                a(f"s_add_u32 s{sCnt}, s{sCnt}, 1"); a(f"s_cmp_lt_u32 s{sCnt}, {SPIN}")
                a("s_waitcnt vmcnt(0)")
                a("v_cmp_eq_u32 vcc, 0, v2"); a("s_cbranch_scc0 L_ook"); a("s_cbranch_vccnz L_opoll")
                a.lab("L_ook")
                g.stamp(12)
                for j in range(2, 2+D+1):
                    for x in aload(j): a(x)
                    if j == g.opt.get("gap", 3): g.emit(pend + breads(1+NB)); pend = []
                a("s_waitcnt lgkmcnt(15)")
                a(f"s_load_dword s{g.sCur}, {S(rWS,2)}, s{g.sFL} glc")
                a(f"s_waitcnt vmcnt({2*D})")
                g.stamp(7)
            if k == 2 and kp >= 4: tailf += [[f"s_load_dword s{g.sCur}, {S(rWS,2)}, s{g.sFL} glc"]]
            if k == kp:
                tailf += [[f"s_cmp_ge_u32 s{g.sCur}, 5", "s_cbranch_scc0 L_mb0", "L_mb_ret:"]]
                def t():
                    a.lab("L_mb0")
                    a("s_waitcnt lgkmcnt(0)")
                    a(f"s_cmp_ge_u32 s{g.sCur}, 5"); a("s_cbranch_scc1 L_mb_ret")
                    a.lab("L_mb")
                    a(f"s_load_dword s{g.sCur}, {S(rWS,2)}, s{g.sFL} glc")
                    a(f"s_add_u32 s{sCnt}, s{sCnt}, 1"); a(f"s_cmp_lt_u32 s{sCnt}, {SPIN}")
                    a("s_waitcnt lgkmcnt(0)")
                    a("s_cbranch_scc0 L_mb_ret")
                    a(f"s_cmp_ge_u32 s{g.sCur}, 5"); a("s_cbranch_scc0 L_mb")
                    a("s_branch L_mb_ret")
                g.tail.append(t)
            if k >= 2 and k + D + 1 < 20: tailf += [[x] for x in aload(k+D+1)]
            if 1 <= k and k != 2 and k-1+NB < 20: pend += breads(k-1+NB)
            kb = g.opt.get("kb", 17)
            if k == kb - 2: tailf = [["ds_read_b32 v2, v3"]] + tailf
            if k == kb:
                assert not pend
                a("v_cmp_eq_u32 vcc, 0, v2")
                pend += [[], ["s_cbranch_vccnz L_gf", "L_gf_ret:"]] + [[f"ds_read_b128 {V(BBr+4*j,4)}, v{vE+2} offset:{1024*j}"] for j in range(8)] + [[f"ds_read_b64 v[{GG}:{GG+1}], v{vE+2} offset:8192"]]
                def t():
                    a.lab("L_gf")
                    a("ds_read_b32 v2, v3"); a("s_waitcnt lgkmcnt(0)")
                    a("v_cmp_eq_u32 vcc, 0, v2"); a("s_cbranch_vccz L_gf_ret")
                    a("s_sleep 1"); a("s_branch L_gf")
                g.tail.append(t)
            nrd = g.opt.get("nrd", 6)
            if k < 2: nrd = 0
            rd = pend[:nrd]; pend = pend[nrd:]
            slots = [[] for _ in range(8)]
            for j, grp in enumerate(rd): slots[j] += grp
            for j, grp in enumerate(tailf): slots[8-len(tailf)+j] += grp
            n = 0
            for q in range(2):
                for tau in range(4):
                    acc = V(AC+16*q+4*tau, 4)
                    a(f"v_mfma_f32_16x16x32_bf16 {acc}, {V(bf(k)+4*tau,4)}, {V(af(k,q),4)}, {'0' if k == 0 else acc}")
                    for x in slots[n]:
                        if x.endswith(":"): a.lab(x[:-1])
                        else: a(x)
                    n += 1
            if g.stamps is True and k % 2 == 1 and k < 19: a("s_memtime s[26:27]")
            if g.stamps is True and k % 2 == 0 and k > 0: a(f"v_writelane_b32 v253, s26, {48 + k//2}")
            if 2 <= k < 19:
                a(f"s_waitcnt vmcnt({2*min(D, 18-k)})" + (f" lgkmcnt({len([x for x in rd if x and x[0].startswith('ds_')])})" if k + 1 >= NB else ""))
        assert not pend
        g.stamp(13)
        a("s_waitcnt lgkmcnt(0)")
        for q in range(2):
            sel = "op_sel_hi:[1,0,1]" if q == 0 else "op_sel:[0,1,0] op_sel_hi:[1,1,1]"
            for tau in range(4):
                b = BBr + 16*q + 4*tau
                for k in (0, 2): a(f"v_pk_fma_f32 {V(b+k,2)}, {V(AC+16*q+4*tau+k,2)}, {V(GG,2)}, {V(b+k,2)} {sel}")
                for h in range(2): a(f"v_cvt_pk_bf16_f32 v{b+h}, v{b+2*h}, v{b+2*h+1}")
                a(f"ds_write_b64 v{vE}, {V(b,2)} offset:{q*2304+32*tau}")
            for e in range(2): a(f"ds_read_b128 {V(AF+8*q+4*e,4)}, v{vE+1} offset:{q*2304+e*8*144}")
        for e in range(4):
            a(f"s_waitcnt lgkmcnt({(7,6,1,0)[e]})")
            a(f"buffer_store_dwordx4 {V(AF+4*e,4)}, v{(229,230,231,250)[e]}, {R(rOUT)}, 0 offen {g.opt.get('outfl','')}")
        if not g.opt.get("chain"): g.stamp(14)
        if g.stamps:
            a("s_waitcnt vmcnt(0)"); g.stamp(15)
            a(f"v_writelane_b32 v253, s{sCnt}, 29")
        if g.opt.get("amp"):
            r = g.sreg(g.opt.get("ampk", 15))
            a("s_waitcnt lgkmcnt(0)")
            a(f"s_sub_u32 s60, s{r}, s86"); a(f"s_mul_i32 s60, s60, {g.opt['amp']}")
            a.lab("L_amp")
            a("s_sleep 2"); a("s_memtime s[62:63]"); a("s_waitcnt lgkmcnt(0)")
            a("s_sub_u32 s61, s62, s86"); a("s_cmp_lt_u32 s61, s60"); a("s_cbranch_scc1 L_amp")
        g.dump_stamps(16)
        a("s_endpgm")

    def argmax(g, v, sKey, sTmp):
        a = g.a
        a("v_cmp_gt_u32 vcc, 56, v0")
        a(f"v_cndmask_b32_e64 v{v}, 0, v{v}, vcc")
        for d in ("quad_perm:[1,0,3,2]", "quad_perm:[2,3,0,1]", "row_half_mirror", "row_mirror"):
            a(f"v_max_u32_dpp v{v}, v{v}, v{v} {d} row_mask:0xf bank_mask:0xf")
        a(f"v_readlane_b32 s{sKey}, v{v}, 0"); a(f"v_readlane_b32 s{sTmp}, v{v}, 16")
        a(f"s_max_u32 s{sKey}, s{sKey}, s{sTmp}")
        a(f"v_readlane_b32 s{sTmp}, v{v}, 32"); a(f"s_max_u32 s{sKey}, s{sKey}, s{sTmp}")
        a(f"v_readlane_b32 s{sTmp}, v{v}, 48"); a(f"s_max_u32 s{sKey}, s{sKey}, s{sTmp}")
    def keyidx(g, sKey, sIdx):
        g.a(f"s_andn2_b32 s{sIdx}, 0x7ff, s{sKey}")

    def bf16r(g, r):
        g.a(f"v_cvt_pk_bf16_f32 v{r}, v{r}, v{r}"); g.a(f"v_and_b32 v{r}, 0xffff0000, v{r}")
    def sigmoid(g, d, s):
        a = g.a
        a(f"v_mul_f32 v{d}, {f32(-math.log2(math.e))}, v{s}")
        a(f"v_exp_f32 v{d}, v{d}")
        a(f"v_add_f32 v{d}, 1.0, v{d}")
        a(f"v_rcp_f32 v{d}, v{d}")

    def cfin(g):
        a = g.a
        a.lab("L_cfin")
        sKey, sD = g.sKey, g.sD
        Y, BB = 128, 88
        a(f"s_cmp_eq_u32 s{g.sKey}, 0"); a("s_cbranch_scc1 L_keypoll")
        a.lab("L_keyok")
        def t():
            a.lab("L_keypoll")
            a(f"v_mov_b32 v1, {0*4}"); a(f"s_mov_b32 s{sCnt}, 0")
            a.lab("L_keypoll2")
            a(f"buffer_load_dword v2, v1, {R(rDBG)}, 0 offen sc1")
            a(f"s_add_u32 s{sCnt}, s{sCnt}, 1")
            a("s_waitcnt vmcnt(0)")
            a(f"v_readfirstlane_b32 s{g.sKey}, v2")
            a(f"s_cmp_lt_u32 s{sCnt}, {SPIN}"); a("s_cbranch_scc0 L_keyok")
            a(f"s_cmp_eq_u32 s{g.sKey}, 0"); a("s_cbranch_scc0 L_keyok")
            a("s_sleep 4"); a("s_branch L_keypoll2")
        g.tail.append(t)
        a("v_and_b32 v77, 15, v0"); a("v_lshlrev_b32 v1, 2, v77")
        a(f"s_lshl_b32 s{g.sD}, s{sW}, 5"); a(f"s_add_u32 s{g.sD}, s{g.sD}, s{sI0}")
        a(f"s_lshl_b32 s67, s{sP}, 10"); a(f"s_add_u32 s67, s67, s{g.sD}"); a(f"s_lshl_b32 s67, s67, 2"); a(f"s_add_u32 s67, s67, {WS_G}")
        for q in range(2):
            a(f"v_add3_u32 v2, s{g.sD}, v77, {16*q}"); a("v_and_b32 v2, 0x400, v2"); a(f"v_lshl_or_b32 v{78+q}, v2, 21, v1")
            a(f"buffer_load_dword v{86+q}, v{78+q}, {R(rWS)}, s67 offen offset:{64*q} sc1")
        a("s_mov_b32 s71, s68")
        a("v_min_u32 v82, 27, v0"); a("v_and_b32 v2, 28, v82"); a("v_add_u32 v82, v82, v2"); a("v_lshlrev_b32 v82, 7, v82")
        a(f"s_and_b32 s{sT}, s2, 1"); a(f"s_xor_b32 s{sT}, s{sT}, 1"); a(f"s_mul_i32 s{sT}, s{sT}, 1280"); a(f"s_mul_i32 s68, s{sTB}, {BLK}"); a(f"s_add_u32 s68, s68, s{sT}")
        a(f"s_add_u32 s68, s68, s{rWS}"); a(f"s_addc_u32 s69, s{rWS+1}, 0"); a("s_mov_b32 s70, 1")
        a(f"s_cmp_eq_u32 s{sW}, 0")
        a("s_waitcnt vmcnt(2)")
        if g.opt.get("self", 0): a(f"buffer_load_dword v76, v82, {R(rWS)}, s71 offen sc1")
        if not g.opt.get("chain"): g.stamp(13)
        a("s_barrier")
        g.stamp(12)
        a("s_cbranch_scc0 L_nosig2")
        g.flagstore("o", g.sFL, 8, wait=False)
        a.lab("L_nosig2")
        a(f"s_cmp_eq_u32 s{sW}, 1"); a("s_cbranch_scc0 L_nosig3")
        for j in range(5): a(f"s_atomic_add s70, s[68:69], {WS_FL+128+256*j}")
        a.lab("L_nosig3")
        g.keyidx(g.sKey, 65)
        a(f"s_lshr_b32 s{sT}, s65, 1"); a(f"s_sub_u32 s{g.sD}, s{sT}, s{g.sD}")
        a(f"s_and_b32 s{sT}, s65, 1"); a(f"s_cmp_eq_u32 s{sT}, s{sP}"); a(f"s_cselect_b32 s{g.sD}, s{g.sD}, 64")
        for k in range(16):
            a(f"v_lshlrev_b32 v{BB+2*k}, 16, v{g.XR+k}")
            a(f"v_and_b32 v{BB+2*k+1}, 0xffff0000, v{g.XR+k}")
        a(f"s_mov_b32 s{sCnt}, 0")
        a("s_waitcnt vmcnt(0)")
        a.lab("L_gchk")
        a("v_max_u32 v2, v86, v87"); a(f"v_cmp_eq_u32 vcc, {POISON}, v2"); a("s_cbranch_vccnz L_gpoll")
        a.lab("L_gok")
        a(f"s_mul_i32 s{sT}, s{sW}, 9216"); a(f"s_add_u32 s{sT}, s{sT}, {L_BB}"); a(f"v_add_u32 v85, s{sT}, v{g.vL16}")
        a("v_sub_f32 v2, 1.0, v86"); a("v_sub_f32 v3, 1.0, v87")
        a("ds_write_b64 v85, v[86:87] offset:8192")
        for k in range(32): a(f"v_mul_f32 v{BB+k}, v{2+k//16}, v{BB+k}")
        a(f"s_cmp_lt_u32 s{sD}, 32"); a("s_cbranch_scc1 L_y")
        a.lab("L_yret")
        for j in range(8): a(f"ds_write_b128 v85, {V(BB+4*j,4)} offset:{1024*j}")
        a("ds_write_b32 v84, v84")
        g.stamp(11)
        a("s_waitcnt lgkmcnt(0)")
        g.dump_stamps(15)
        a("s_endpgm")
        a.lab("L_gpoll")
        for q in range(2): a(f"buffer_load_dword v{86+q}, v{78+q}, {R(rWS)}, s67 offen offset:{64*q} sc1")
        a(f"s_add_u32 s{sCnt}, s{sCnt}, 1"); a(f"s_cmp_lt_u32 s{sCnt}, {SPIN}")
        a("s_waitcnt vmcnt(0)")
        a("s_cbranch_scc1 L_gchk")
        a("s_branch L_gok")
        a.lab("L_y")
        a("v_and_b32 v1, 48, v0"); a(f"s_lshl_b32 s{sT}, s{sCG}, 8"); a(f"s_add_u32 s{sT}, s{sT}, {WS_Y2}")
        a(f"s_mov_b32 s{sCnt}, 0")
        a.lab("L_ypoll")
        for tau in range(4): a(f"buffer_load_dwordx4 {V(Y+8+4*tau,4)}, v1, {R(rWS)}, s{sT} offen offset:{64*tau} sc1")
        a(f"s_add_u32 s{sCnt}, s{sCnt}, 1"); a(f"s_cmp_lt_u32 s{sCnt}, {SPIN}")
        a("s_waitcnt vmcnt(0)")
        g.poison_max(Y+8, 16, 6)
        a(f"v_cmp_eq_u32 vcc, {POISON}, v6")
        a("s_cbranch_scc0 L_yok"); a("s_cbranch_vccz L_yok"); a("s_sleep 3"); a("s_branch L_ypoll")
        a.lab("L_yok")
        a(f"s_and_b32 s{sT}, s{sD}, 15"); a(f"v_cmp_eq_u32 vcc, s{sT}, v77")
        a(f"s_cmp_lt_u32 s{sD}, 16")
        a("s_mov_b64 exec, vcc")
        a("s_cbranch_scc0 L_y1")
        for q in range(2):
            if q: a.lab("L_y1")
            for k in range(16): a(f"v_fmac_f32 v{BB+16*q+k}, v{2+q}, v{Y+8+k}")
            a("s_mov_b64 exec, -1")
            a("s_branch L_yret")

    def aux(g):
        a = g.a
        a.lab("L_aux")
        if g.opt.get("noaux"): a("s_endpgm")
        sA, sF, sHalf, sTmp, sU0 = 56, 57, 58, 59, 60
        r1, r2, rD = 64, 68, 72
        rWR, rGW = 76, 80
        rC = 64
        A_D = 81920
        A_WR, A_GW = 122880, 124928
        A_XS = 126976
        A_PRE = 129024
        A_MAX = 129536
        NCLR = 1
        a(f"s_sub_u32 s{sA}, s{sJ}, 25")
        a(f"s_lshr_b32 s{sF}, s{sA}, 1"); a(f"s_lshl3_add_u32 s{sF}, s{sF}, s{sX}")
        a(f"s_and_b32 s{sT}, s{sA}, 1"); a(f"s_lshl1_add_u32 s{sF}, s{sF}, s{sT}")
        a(f"s_add_u32 s{sT}, s{sX}, 48"); a(f"s_cmp_eq_u32 s{sA}, 6"); a(f"s_cselect_b32 s{sF}, s{sT}, s{sF}")
        a("v_lshrrev_b32 v1, 3, v0"); a("v_and_b32 v2, 7, v0")
        a(f"s_cmp_ge_u32 s{sW}, 5"); a("s_cbranch_scc1 L_aux_hi")
        a(f"s_lshr_b32 s{sU0}, s{sX}, 2"); a(f"s_and_b32 s{sT}, s{sX}, 1"); a(f"s_lshl1_add_u32 s{sU0}, s{sU0}, s{sT}")
        a(f"s_mul_i32 s{sTmp}, s{sA}, 5"); a(f"s_add_u32 s{sTmp}, s{sTmp}, s{sW}")
        a(f"s_lshl_b32 s{sU0}, s{sU0}, 8"); a(f"s_lshl3_add_u32 s{sU0}, s{sTmp}, s{sU0}")
        a(f"v_add_u32 v3, s{sU0}, v1")
        a(f"v_lshl_add_u32 v4, v3, 1, s{sP}")
        a("v_mul_u32_u24 v5, 1280, v4"); a("v_lshl_add_u32 v5, v2, 4, v5")
        a(f"s_cmp_lt_u32 s{sTmp}, 32"); a(f"s_cselect_b32 s{sT}, 0, 0x80000000")
        a(f"v_or_b32 v5, s{sT}, v5")
        g.ptrs()
        XD, WD = 8, 48
        for n in range(10):
            c = (n + g.opt.get("ax0", 0)) % 10
            a(f"buffer_load_dwordx4 {V(XD+4*c,4)}, v5, {R(rX)}, 0 offen offset:{128*c}")
            if n % 2 == 1 and n < 9: a("s_barrier")
        g.ptrs2()
        a(f"v_mov_b32 v136, {63*4}")
        a("v_lshlrev_b32 v6, 4, v2")
        a(f"v_add_u32 v6, {A_WR}, v6")
        a("s_barrier")
        a(f"v_mov_b32 v7, {A_MAX}")
        a(f"s_cmp_lt_u32 s{sTmp}, 32"); a("s_cbranch_scc1 L_aux_rg")
        a(f"s_mov_b64 {S(rC,2)}, {S(rWS,2)}"); g.srd_consts(rC, WS_Y + 54*2560)
        for k in range(4): a(f"v_mov_b32 v{132+k}, {POISON}")
        a(f"s_mul_i32 s{sT}, s{sX}, 3"); a(f"s_add_u32 s{sT}, s{sT}, s{sW}"); a(f"s_mul_i32 s{sT}, s{sT}, {6*1024}"); a(f"s_add_u32 s{sT}, s{sT}, {WS_Y-2*6*1024}")
        a(f"v_lshl_add_u32 v5, v0, 4, s{sT}"); a("v_add_u32 v6, 3072, v5")
        for k in range(6): a(f"buffer_store_dwordx4 v[132:135], v{5+k//3}, {R(rC)}, 0 offen offset:{1024*(k%3)} sc1")
        a("v_mov_b32 v137, 0")
        a("s_branch L_aux_rgdone")
        a.lab("L_aux_rg")
        a(f"buffer_load_dword v137, v136, {R(rDBG)}, 0 offen sc1")
        g.stamp(6)
        for c in range(10):
            a(f"ds_read_b128 {V(WD+8*c,4)}, v6 offset:{128*c}")
            a(f"ds_read_b128 {V(WD+8*c+4,4)}, v6 offset:{2048+128*c}")
        for k in range(4): a(f"v_mov_b32 v{128+k}, 0")
        a(f"s_waitcnt vmcnt(1) lgkmcnt(0)")
        for c in range(10):
            for k in range(4):
                a(f"v_dot2c_f32_bf16 v{128+(k&1)}, v{XD+4*c+k}, v{WD+8*c+k}")
                a(f"v_dot2c_f32_bf16 v{130+(k&1)}, v{XD+4*c+k}, v{WD+8*c+4+k}")
        a("v_add_f32 v128, v128, v129"); a("v_add_f32 v130, v130, v131")
        for d in ("quad_perm:[1,0,3,2]", "quad_perm:[2,3,0,1]", "row_half_mirror"):
            a(f"v_add_f32_dpp v128, v128, v128 {d} row_mask:0xf bank_mask:0xf")
            a(f"v_add_f32_dpp v130, v130, v130 {d} row_mask:0xf bank_mask:0xf")
        g.bf16r(130); g.sigmoid(130, 130); g.bf16r(130)
        g.bf16r(128)
        a("v_ashrrev_i32 v129, 31, v128"); a("v_or_b32 v129, 0x80000000, v129"); a("v_xor_b32 v128, v128, v129")
        a("v_and_b32 v128, 0xffff0000, v128"); a("v_sub_u32 v129, 0xffff, v4"); a("v_or_b32 v128, v128, v129")
        a.lab("L_aux_rgdone")
        a(f"s_lshl_b32 s{sT}, s{sP}, 12"); a(f"s_add_u32 s{sT}, s{sT}, {WS_G}")
        a("v_lshlrev_b32 v3, 2, v3")
        a(f"s_mov_b32 s{sCnt}, 0")
        a("s_waitcnt vmcnt(0)")
        a.lab("L_aux_init")
        a("v_cmp_eq_u32 vcc, 0, v137"); a("s_cbranch_vccz L_aux_initok")
        a(f"buffer_load_dword v137, v136, {R(rDBG)}, 0 offen sc1")
        a(f"s_add_u32 s{sCnt}, s{sCnt}, 1"); a(f"s_cmp_lt_u32 s{sCnt}, {SPIN}")
        a("s_waitcnt vmcnt(0)")
        a("s_cbranch_scc1 L_aux_init")
        a.lab("L_aux_initok")
        a(f"s_cmp_lt_u32 s{sTmp}, 32"); a("s_cbranch_scc0 L_aux_norg")
        a("s_mov_b32 exec_lo, 0x01010101"); a("s_mov_b32 exec_hi, 0x01010101")
        a("ds_max_u32 v7, v128")
        a(f"buffer_store_dword v130, v3, {R(rWS)}, s{sT} offen sc1")
        a.lab("L_aux_norg")
        a.lab("L_aux_arr")
        a("s_mov_b64 exec, 1")
        a("v_mov_b32 v129, 1")
        a("s_waitcnt lgkmcnt(0)")
        a("ds_add_rtn_u32 v131, v7, v129 offset:4")
        a("ds_read_b32 v128, v7")
        a(f"s_lshl3_add_u32 s{sT}, s{sA}, s{sX}"); a(f"s_lshl_b32 s{sT}, s{sT}, 7"); a(f"s_add_u32 s{sT}, s{sT}, {WS_F}")
        a("s_waitcnt lgkmcnt(0)")
        a("v_cmp_eq_u32 vcc, 4, v131"); a(f"v_readfirstlane_b32 s{sCnt}, v128"); a("s_cbranch_vccz L_aux_nopub")
        a(f"s_atomic_add s{sCnt}, {S(rWS,2)}, s{sT}")
        a("s_waitcnt lgkmcnt(0)")
        a.lab("L_aux_nopub")
        a("s_mov_b64 exec, -1")
        g.stamp(1)
        a(f"s_cmp_ge_u32 s{sF}, 54"); a("s_cbranch_scc1 L_aux_end")
        a(f"s_cmp_eq_u32 s{sW}, 4"); a("s_cbranch_scc0 L_aux_f1")
        a(f"s_lshl_b32 s{sT}, s{sF}, 7"); a(f"s_add_u32 s{sT}, s{sT}, {WS_K}")
        a(f"s_mov_b32 s{sCnt}, 0")
        a.lab("L_aux_key")
        a(f"s_load_dword s84, {S(rWS,2)}, s{sT} glc")
        a(f"s_add_u32 s{sCnt}, s{sCnt}, 1")
        a("s_waitcnt lgkmcnt(0)")
        a(f"s_cmp_lt_u32 s{sCnt}, {SPIN}"); a("s_cselect_b32 s84, s84, 1")
        a("s_cmp_eq_u32 s84, 0"); a("s_cbranch_scc1 L_aux_key")
        g.keyidx(84, 85)
        a("s_mul_i32 s85, s85, 1280")
        a("v_lshl_add_u32 v1, v0, 4, s85")
        a(f"s_mov_b32 m0, {A_XS}")
        a(f"buffer_load_dwordx4 v1, {R(rX)}, 0 offen lds")
        a(f"buffer_load_dwordx4 v1, {R(rX)}, 0 offen offset:1024 lds")
        g.stamp(2)
        a("v_mov_b32 v2, s84")
        a("s_waitcnt vmcnt(0)")
        a("ds_write_b32 v7, v2 offset:8")
        a("s_waitcnt lgkmcnt(0)")
        a("s_barrier")
        a("s_branch L_aux_f2")
        a.lab("L_aux_hi")
        sV = 84
        a(f"s_sub_u32 s{sV}, s{sW}, 5")
        a(f"s_cmp_eq_u32 s{sV}, 0"); a("s_cbranch_scc0 L_aux_w67")
        a("v_mul_u32_u24 v3, 4370, v0"); a("v_lshrrev_b32 v3, 16, v3")
        a("v_mul_u32_u24 v4, 15, v3"); a("v_sub_u32 v4, v0, v4")
        a("v_mul_u32_u24 v5, 52, v4"); a("v_lshrrev_b32 v5, 8, v5")
        a("v_mul_u32_u24 v5, 640, v5"); a("v_lshl_add_u32 v5, v4, 7, v5")
        a(f"v_mul_u32_u24 v3, {4*3840}, v3")
        a(f"s_lshr_b32 s{sT}, s{sX}, 1"); a(f"s_lshl4_add_u32 s{sT}, s{sA}, s{sT}"); a(f"s_mul_i32 s{sT}, s{sT}, 6"); a(f"s_and_b32 s{sTmp}, s{sX}, 1")
        a(f"s_add_u32 s{sT}, s{sT}, s{sTmp}"); a(f"s_mul_i32 s{sT}, s{sT}, 640")
        a(f"v_add3_u32 v5, s{sT}, v5, v3")
        a("v_cmp_gt_u32 vcc, 60, v0"); a("v_bfrev_b32 v6, 1"); a("v_cndmask_b32_e64 v5, v6, v5, vcc")
        g.ptrs()
        mb = g.opt.get("mb", 0)
        m0_ = g.opt.get("aw0", 0)
        for n in range(6):
            nn = n - g.opt.get("awd", 0)
            if nn >= 0 and m0_ + 7*nn < 40:
                a(f"s_mov_b32 s{sT}, {(m0_ + 7*nn)*16*3840}")
                a(f"buffer_load_dword v{10+n}, v5, {R(rW)}, s{sT} offen")
            if n >= 1: a("s_barrier")
        g.ptrs2()
        a("s_branch L_aux_hi2")
        a.lab("L_aux_w67")
        a("v_lshlrev_b32 v6, 4, v0")
        a(f"v_mov_b32 v7, {A_MAX}"); a("v_mov_b32 v8, 0"); a("v_mov_b32 v9, 0")
        a("ds_write_b64 v7, v[8:9]"); a("ds_write_b64 v7, v[8:9] offset:8")
        for r in (rWR, rGW): g.srd_consts(r, 1280)
        if g.opt.get("codepf", 0):
            a(f"s_sub_u32 s{sTmp}, s{sA}, 2"); a(f"s_cmp_ge_u32 s{sTmp}, 4"); a("s_cbranch_scc1 L_aux_nocpf"); a(f"s_cmp_eq_u32 s{sV}, 2"); a("s_cbranch_scc0 L_aux_nocpf")
            a("s_getpc_b64 s[88:89]" if not g.stamps else "s_getpc_b64 s[98:99]")
            pc = 88 if not g.stamps else 98
            a.lab("L_pc")
            a(f"s_sub_u32 s{pc}, s{pc}, L_pc-{KN}_kernel"); a(f"s_subb_u32 s{pc+1}, s{pc+1}, 0")
            a(f"s_lshl_b32 s{sT}, s{sTmp}, 13")
            a(f"v_lshl_add_u32 v3, v0, 7, s{sT}")
            a(f"v_min_u32 v3, L_end-{KN}_kernel, v3")
            a(f"global_load_dword v10, v3, s[{pc}:{pc+1}]")
            a.lab("L_aux_nocpf")
        g.ptrs(); g.ptrs2()
        a(f"s_mov_b64 {S(rWR,2)}, s[12:13]"); a(f"s_mov_b64 {S(rGW,2)}, s[20:21]")
        a(f"s_cmp_eq_u32 s{sV}, 1"); a("s_cbranch_scc0 L_aux_w7")
        a(f"s_mov_b32 m0, {A_WR}")
        a(f"buffer_load_dwordx4 v6, {R(rWR)}, 0 offen lds"); a(f"buffer_load_dwordx4 v6, {R(rWR)}, 0 offen offset:1024 lds")
        a(f"s_mov_b32 m0, {A_GW}")
        a(f"buffer_load_dwordx4 v6, {R(rGW)}, 0 offen lds"); a(f"buffer_load_dwordx4 v6, {R(rGW)}, 0 offen offset:1024 lds")
        a.lab("L_aux_w7")
        a("v_lshlrev_b32 v3, 7, v0")
        a(f"s_lshl3_add_u32 s{sTmp}, s2, s{sW}"); a(f"s_cmp_eq_u32 s{sTmp}, {255*8+7}"); a("s_cbranch_scc0 L_aux_nn0")
        for k in range(4): a(f"v_mov_b32 v{12+k}, {POISON}")
        for off in (WS_AR, WS_F, WS_K):
            a(f"s_mov_b32 s{sT}, {off}"); a(f"buffer_store_dword v8, v3, {R(rWS)}, s{sT} offen sc1")
        for k in range(11):
            if k % 4 == 0: a(f"s_mov_b32 s{sT}, {WS_G+1024*k}")
            a(f"buffer_store_dwordx4 v[12:15], v6, {R(rWS)}, s{sT} offen offset:{1024*(k%4)} sc1")
        a.lab("L_aux_nn0")
        a("s_barrier")
        a(f"s_cmp_eq_u32 s{sTmp}, {255*8+7}"); a("s_cbranch_scc0 L_aux_nn1")
        a("s_waitcnt vmcnt(0)")
        a(f"s_mov_b32 s85, 1"); a(f"s_atomic_add s85, {S(rDBG,2)}, {63*4}")
        g.stamp(1)
        a.lab("L_aux_nn1")
        for c in range(3): a("s_barrier")
        a("s_waitcnt vmcnt(0)")
        a("s_barrier")
        a("v_min_u32 v4, 59, v0"); a("v_mul_u32_u24 v5, 52, v4"); a("v_lshrrev_b32 v5, 8, v5"); a(f"v_mul_u32_u24 v5, {4*1280-640}, v5"); a("v_lshl_add_u32 v4, v4, 7, v5")
        a(f"s_lshl1_add_u32 s{sT}, s{sA}, s{sV}"); a(f"s_sub_u32 s{sT}, s{sT}, 1"); a(f"s_mul_i32 s{sT}, s{sT}, 96"); a(f"s_add_u32 s{sT}, s{sT}, s{sX}"); a(f"s_mul_i32 s{sT}, s{sT}, 640")
        a(f"v_add_u32 v4, s{sT}, v4")
        if g.opt.get("wot", 2) == 0:
            a(f"s_lshl3_add_u32 s{sT}, s{sA}, s{sX}"); a(f"s_lshl1_add_u32 s{sT}, s{sT}, s{sV}"); a(f"s_sub_u32 s{sT}, s{sT}, 1"); a(f"s_lshl_b32 s{sT}, s{sT}, 13"); a(f"v_add_u32 v4, s{sT}, v3")
        if g.opt.get("wot", 2) < 2: a(f"buffer_load_dword v10, v4, {R(rWO)}, 0 offen")
        a(f"s_cmp_eq_u32 s{sTmp}, {255*8+7}"); a("s_cbranch_scc0 L_aux_hi2")
        a(f"s_mov_b32 s{sCnt}, 0"); a(f"s_mov_b32 s{sT}, {WS_F}")
        a.lab("L_aux_col")
        a(f"buffer_load_dword v11, v3, {R(rWS)}, s{sT} offen sc1")
        a(f"s_add_u32 s{sCnt}, s{sCnt}, 1")
        a("s_waitcnt vmcnt(0)")
        a("v_cmp_eq_u32 vcc, 0, v11")
        a("s_and_b32 vcc_hi, vcc_hi, 0x00ffffff")
        a(f"s_cmp_lt_u32 s{sCnt}, {SPIN}"); a("s_cselect_b64 vcc, vcc, 0")
        a("s_cmp_eq_u64 vcc, 0"); a("s_cbranch_scc0 L_aux_col")
        g.argmax(11, sCnt, sT)
        a(f"v_mov_b32 v11, s{sCnt}"); a(f"s_mov_b32 s{sT}, {WS_K}")
        a(f"buffer_store_dword v11, v3, {R(rWS)}, s{sT} offen sc1")
        a(f"s_atomic_add s{sCnt}, {S(rDBG,2)}, {0*4}")
        a("s_waitcnt lgkmcnt(0)")
        a.lab("L_aux_hi2")
        a("v_mov_b32 v11, v4")
        l2 = g.opt.get("l2", 0)
        if l2:
            g.wtouch_addr(12, 13, 14)
            a(f"s_bfe_u32 s{sT}, s2, 0x20001"); a(f"s_add_u32 s{sCnt}, s{sT}, s{sV}"); a(f"s_add_u32 s{sCnt}, s{sCnt}, 1"); a(f"s_and_b32 s{sCnt}, s{sCnt}, 3")
            a(f"s_sub_u32 s{sT}, s{sCnt}, s{sT}"); a(f"s_lshl4_add_u32 s{sT}, s{sA}, s{sT}"); a(f"s_add_u32 s{sT}, s{sT}, {64*l2}"); a(f"s_mul_i32 s{sT}, s{sT}, 3840")
            a(f"v_add_u32 v14, s{sT}, v14"); a("v_cmp_gt_u32 vcc, 60, v0"); a("v_bfrev_b32 v12, 1"); a("v_cndmask_b32_e64 v14, v12, v14, vcc")
            a(f"s_and_b32 s{sT}, s{sX}, 5"); a(f"s_xor_b32 s{sT}, s{sT}, 1"); a(f"s_lshr_b32 s{sCnt}, s{sT}, 2"); a(f"s_and_b32 s{sT}, s{sT}, 1"); a(f"s_lshl1_add_u32 s{sT}, s{sCnt}, s{sT}")
            a(f"s_lshl_b32 s{sT}, s{sT}, 9"); a(f"s_add_u32 s{sT}, s{sT}, s{sP}"); a(f"s_mul_i32 s{sT}, s{sT}, 1280")
            a("v_mul_u32_u24 v15, 2560, v0"); a(f"v_add_u32 v15, s{sT}, v15")
            def xt(n):
                if 21*n >= 4*(10-l2): return
                sk = g.lab("xt")
                a(f"s_mul_i32 s{sCnt}, s{sA}, 3"); a(f"s_add_u32 s{sCnt}, s{sCnt}, s{sV}"); a(f"s_add_u32 s{sCnt}, s{sCnt}, {21*n + 4*l2}")
                a(f"s_cmp_lt_u32 s{sCnt}, 40"); a(f"s_cbranch_scc0 {sk}")
                a(f"s_and_b32 s{sT}, s{sCnt}, 3"); a(f"s_mul_i32 s{sT}, s{sT}, {64*2560}"); a(f"s_lshr_b32 s{sCnt}, s{sCnt}, 2"); a(f"s_lshl_b32 s{sCnt}, s{sCnt}, 7"); a(f"s_add_u32 s{sT}, s{sT}, s{sCnt}")
                a(f"buffer_load_dword v10, v15, {R(rX)}, s{sT} offen")
                a.lab(sk)
                a("s_waitcnt vmcnt(1)")
            for n in range(-(-(40 - 4*l2) // 7)):
                a(f"buffer_load_dword v10, v14, {R(rW)}, 0 offen")
                a(f"v_add_u32 v14, {7*16*3840}, v14")
                a("s_waitcnt vmcnt(1)")
                if n in (0, 2): xt(n // 2)
        def inbox():
            a("v_lshlrev_b32 v6, 7, v0")
            a(f"s_mul_i32 s{sCnt}, s{sA}, 3"); a(f"s_sub_u32 s{sCnt}, s{sV}, s{sCnt}"); a(f"s_add_u32 s{sCnt}, s{sCnt}, 18")
            lp = g.lab("ib"); a.lab(lp)
            a(f"s_mul_i32 s{sT}, s{sCnt}, 57"); a(f"s_lshr_b32 s{sT}, s{sT}, 9")
            a(f"s_mul_i32 s{sTmp}, s{sT}, {BLK-9*8192}"); a(f"s_lshl_b32 s{sT}, s{sCnt}, 13"); a(f"s_add_u32 s{sTmp}, s{sTmp}, s{sT}")
            a(f"s_lshr_b32 s{sT}, s{sX}, 1"); a(f"s_mul_i32 s{sT}, s{sT}, {5*BLK}"); a(f"s_add_u32 s{sTmp}, s{sTmp}, s{sT}")
            a(f"s_and_b32 s{sT}, s{sX}, 1"); a(f"s_mul_i32 s{sT}, s{sT}, 71680"); a(f"s_add_u32 s{sTmp}, s{sTmp}, s{sT}")
            a(f"buffer_load_dword v10, v6, {R(rWS)}, s{sTmp} offen sc1")
            a("s_waitcnt vmcnt(1)")
            a(f"s_add_u32 s{sCnt}, s{sCnt}, 21"); a(f"s_cmp_lt_u32 s{sCnt}, 45"); a(f"s_cbranch_scc1 {lp}")
        if g.opt.get("ibm", 1):
            def inbox():
                a(f"s_mul_i32 s{sCnt}, s{sA}, 3"); a(f"s_add_u32 s{sCnt}, s{sCnt}, s{sV}")
                lp = g.lab("ib"); a.lab(lp)
                a(f"s_and_b32 s{sT}, s{sCnt}, 7"); a(f"s_add_u32 s{sT}, s{sT}, 1")
                a(f"s_lshr_b32 s{sTmp}, s{sT}, 1"); a(f"s_sub_u32 s{sTmp}, s{sTmp}, 4")
                a("v_and_b32 v6, 3, v0"); a(f"v_add_u32 v6, s{sTmp}, v6"); a(f"s_lshl_b32 s{sTmp}, s{sT}, 31"); a(f"v_xor_b32 v6, s{sTmp}, v6"); a("v_and_b32 v6, 0x80000000, v6")
                a("v_min_u32 v7, 55, v0"); a("v_lshl_or_b32 v6, v7, 7, v6")
                a(f"s_mul_i32 s{sTmp}, s{sT}, 7168"); a(f"s_lshr_b32 s{sT}, s{sCnt}, 3"); a(f"s_mul_i32 s{sT}, s{sT}, {BLK}"); a(f"s_add_u32 s{sTmp}, s{sTmp}, s{sT}")
                a(f"s_lshr_b32 s{sT}, s{sX}, 1"); a(f"s_mul_i32 s{sT}, s{sT}, {5*BLK}"); a(f"s_add_u32 s{sTmp}, s{sTmp}, s{sT}")
                a(f"s_and_b32 s{sT}, s{sX}, 1"); a(f"s_mul_i32 s{sT}, s{sT}, 71680"); a(f"s_add_u32 s{sTmp}, s{sTmp}, s{sT}")
                a(f"buffer_load_dword v10, v6, {R(rWS)}, s{sTmp} offen sc1")
                a(f"s_add_u32 s{sCnt}, s{sCnt}, 21"); a(f"s_cmp_lt_u32 s{sCnt}, 40"); a(f"s_cbranch_scc1 {lp}")
        ib = g.opt.get("ib", 2)
        if ib == 1: inbox()
        if ib == 2:
            a(f"s_cmp_ge_u32 s{sF}, 54"); a("s_cbranch_scc0 L_aux_hi3")
            inbox()
            a.lab("L_aux_hi3")
        a(f"s_cmp_ge_u32 s{sF}, 54"); a("s_cbranch_scc1 L_aux_end")
        if g.opt.get("fdelay"): a(f"s_sleep {g.opt['fdelay']}")
        a(f"s_and_b32 s{sHalf}, s{sF}, 1")
        for r in (r1, r2, rD): g.srd_consts(r, 640*3456)
        a(f"s_cmp_eq_u32 s{sHalf}, 0")
        a(f"s_cselect_b64 {S(r1,2)}, s[14:15], s[16:17]"); a(f"s_cselect_b64 {S(r2,2)}, s[16:17], s[14:15]")
        a(f"s_mov_b64 {S(rD,2)}, s[18:19]")
        a("v_lshrrev_b32 v3, 2, v0"); a("v_mul_u32_u24 v3, 3456, v3")
        a("v_and_b32 v4, 2, v1"); a("v_and_b32 v5, 3, v0"); a("v_xor_b32 v4, v4, v5")
        a("v_lshl_add_u32 v3, v4, 4, v3")
        a(f"s_lshl_b32 s{sT}, s{sF}, 6"); a(f"v_add_u32 v3, s{sT}, v3")
        if g.opt.get("noffn"):
            for r in (r1, r2, rD): a(f"s_mov_b32 s{r+2}, 0")
        for mi, rr in enumerate((r1, r2)):
            lp = g.lab("fm")
            a(f"s_xor_b32 s{sT}, s{sHalf}, {mi}"); a(f"s_mul_i32 s{sTmp}, s{sT}, 40960")
            a(f"s_mov_b32 s{sCnt}, s{sV}")
            a.lab(lp)
            a(f"s_lshl_b32 s{sT}, s{sCnt}, 10"); a(f"s_add_u32 m0, s{sT}, s{sTmp}")
            a(f"s_mul_i32 s{sT}, s{sCnt}, {16*3456}")
            a(f"buffer_load_dwordx4 v3, {R(rr)}, s{sT} offen {g.opt.get('ffl','')} lds")
            a(f"s_waitcnt vmcnt({g.opt.get('fthr', 5)})")
            a(f"s_add_u32 s{sCnt}, s{sCnt}, 3"); a(f"s_cmp_lt_u32 s{sCnt}, 40"); a(f"s_cbranch_scc1 {lp}")
            if ib == 2 and mi == 0: inbox()
            if g.opt.get("wol2", 0) == mi + 1:
                a("v_min_u32 v12, 59, v0"); a("v_mul_u32_u24 v13, 52, v12"); a("v_lshrrev_b32 v13, 8, v13"); a("v_mul_u32_u24 v13, 640, v13"); a("v_lshl_add_u32 v12, v12, 7, v13")
                a(f"s_mul_i32 s{sT}, s{sA}, 3"); a(f"s_add_u32 s{sT}, s{sT}, s{sV}"); a(f"s_mul_i32 s{sT}, s{sT}, 24"); a(f"s_and_b32 s{sCnt}, s{sX}, 1"); a(f"s_add_u32 s{sT}, s{sT}, s{sCnt}"); a(f"s_mul_i32 s{sT}, s{sT}, 640")
                a(f"v_add_u32 v12, s{sT}, v12")
                for n in range(3):
                    a(f"buffer_load_dword v10, v12, {R(rWO)}, 0 offen"); a(f"v_add_u32 v12, {21*12*1280}, v12"); a("s_waitcnt vmcnt(1)")
            if g.opt.get("wot", 2) == 2 and mi == 0:
                a(f"s_cmp_eq_u32 s{sV}, 0"); a("s_cbranch_scc1 L_aux_nwo"); a(f"buffer_load_dword v10, v11, {R(rWO)}, 0 offen"); a.lab("L_aux_nwo")
        a("v_and_b32 v4, 6, v1"); a("v_xor_b32 v4, v4, v2"); a("v_lshlrev_b32 v4, 4, v4")
        a("v_mul_u32_u24 v5, 1280, v1")
        a(f"s_mul_i32 s{sT}, s{sF}, {32*1280}"); a(f"v_add3_u32 v4, s{sT}, v4, v5")
        a(f"s_mov_b32 s{sCnt}, s{sV}")
        def dn(lim):
            lp = g.lab("fd")
            a.lab(lp)
            a(f"s_lshl_b32 s{sT}, s{sCnt}, 10"); a(f"s_add_u32 m0, s{sT}, {A_D}")
            a(f"s_and_b32 s{sT}, s{sCnt}, 3"); a(f"s_mul_i32 s{sT}, s{sT}, {8*1280}"); a(f"s_lshr_b32 s{sTmp}, s{sCnt}, 2"); a(f"s_lshl_b32 s{sTmp}, s{sTmp}, 7"); a(f"s_add_u32 s{sT}, s{sT}, s{sTmp}")
            a(f"buffer_load_dwordx4 v4, {R(rD)}, s{sT} offen lds")
            a(f"s_add_u32 s{sCnt}, s{sCnt}, 3"); a(f"s_cmp_lt_u32 s{sCnt}, {lim}"); a(f"s_cbranch_scc1 {lp}")
        dn(40)
        a("s_waitcnt vmcnt(13)")
        g.stamp(2)
        a("s_barrier")
        a("s_waitcnt vmcnt(0)")
        a("s_branch L_aux_f2")
        a.lab("L_aux_f1")
        a(f"s_and_b32 s{sT}, s{sW}, 1")
        a("v_bfe_u32 v1, v0, 4, 1"); a(f"v_xor_b32 v1, s{sT}, v1"); a("v_lshlrev_b32 v1, 5, v1")
        a("v_and_b32 v2, 3, v0"); a("v_lshl_add_u32 v1, v2, 3, v1")
        a("v_lshrrev_b32 v2, 2, v0"); a("v_lshl_add_u32 v1, v2, 6, v1")
        a(f"s_lshr_b32 s{sT}, s{sW}, 1"); a(f"s_mul_i32 s{sT}, s{sT}, 40960"); a(f"v_add_u32 v1, s{sT}, v1")
        a("v_lshrrev_b32 v2, 4, v0"); a("v_lshlrev_b32 v2, 3, v2"); a(f"v_add_u32 v2, {A_XS}, v2")
        a.lab("L_aux_xs")
        a("s_sleep 2")
        a("ds_read_b32 v3, v7 offset:8"); a("s_waitcnt lgkmcnt(0)")
        a("v_cmp_eq_u32 vcc, 0, v3"); a("s_cbranch_vccnz L_aux_xs")
        for ks in range(20): a(f"ds_read2_b64 {V(12+8*ks,4)}, v2 offset0:{8*ks} offset1:{8*ks+4}")
        a("s_barrier")
        g.stamp(3)
        for ks in range(26):
            if ks < 20:
                a(f"ds_read_b64_tr_b16 {V(8+8*ks,2)}, v1 offset:{ks*2048}")
                a(f"ds_read_b64_tr_b16 {V(10+8*ks,2)}, v1 offset:{ks*2048+1024}")
            if ks >= 6:
                a(f"s_waitcnt lgkmcnt({2*min(6, 25-ks)})")
                a(f"v_mfma_f32_16x16x32_bf16 v[4:7], {V(8+8*(ks-6),4)}, {V(12+8*(ks-6),4)}, {'0' if ks == 6 else 'v[4:7]'}")
        a(f"s_lshl_b32 s{sT}, s{sW}, 6"); a(f"s_add_u32 s{sT}, s{sT}, {A_PRE}")
        a("v_and_b32 v3, 48, v0"); a(f"v_add_u32 v3, s{sT}, v3")
        a("ds_write_b128 v3, v[4:7]")
        a("s_waitcnt lgkmcnt(0)")
        a.lab("L_aux_f2")
        a(f"s_and_b32 s{sT}, s{sW}, 3")
        g.tr_addr(1, f"s{sT}", A_D, 9, 10)
        a(f"s_lshr_b32 s{sTmp}, s{sW}, 2"); a(f"s_mul_i32 s{sCnt}, s{sTmp}, {5*4096}"); a(f"v_add_u32 v1, s{sCnt}, v1")
        a("v_and_b32 v3, 48, v0"); a(f"v_add_u32 v2, {A_PRE}, v3")
        a("v_and_b32 v4, 15, v0"); a("v_lshl_add_u32 v5, v4, 8, v3")
        a(f"s_mul_i32 s{sCnt}, s{sF}, 2560"); a(f"s_mul_i32 s{sTmp}, s{sTmp}, 1280"); a(f"s_add_u32 s{sCnt}, s{sCnt}, s{sTmp}")
        a(f"s_lshl_b32 s{sT}, s{sT}, 6"); a(f"s_add_u32 s{sCnt}, s{sCnt}, s{sT}"); a(f"s_add_u32 s{sCnt}, s{sCnt}, {WS_Y}")
        a("s_barrier")
        g.stamp(4)
        for k in range(4): a(f"ds_read_b128 {V(8+4*k,4)}, v2 offset:{64*k}")
        for e in range(5):
            for ab in range(2): a(f"ds_read_b64_tr_b16 {V(40+4*e+2*ab,2)}, v1 offset:{e*4096+ab*2048}")
        a("s_waitcnt lgkmcnt(10)")
        for k in range(8): a(f"v_mul_f32 v{24+k}, {f32(-math.log2(math.e))}, v{8+k}")
        for k in range(8): a(f"v_exp_f32 v{24+k}, v{24+k}")
        for k in range(8): a(f"v_mul_f32 v{8+k}, v{8+k}, v{16+k}")
        for k in range(8): a(f"v_add_f32 v{24+k}, 1.0, v{24+k}")
        for k in range(8): a(f"v_rcp_f32 v{24+k}, v{24+k}")
        for k in range(8): a(f"v_mul_f32 v{24+k}, v{24+k}, v{8+k}")
        for k in range(4): a(f"v_cvt_pk_bf16_f32 v{32+k}, v{24+2*k}, v{25+2*k}")
        a("s_waitcnt lgkmcnt(0)")
        for e in range(5): a(f"v_mfma_f32_16x16x32_bf16 {V(64+4*e,4)}, {V(40+4*e,4)}, v[32:35], 0")
        for e in range(1, 5):
            a(f"v_cmp_eq_u32 vcc, {e}, v4")
            for k in range(4): a(f"v_cndmask_b32_e64 v{64+k}, v{64+k}, v{64+4*e+k}, vcc")
        a("s_mov_b32 exec_lo, 0x001f001f"); a("s_mov_b32 exec_hi, 0x001f001f")
        a(f"buffer_store_dwordx4 v[64:67], v5, {R(rWS)}, s{sCnt} offen sc1")
        a("s_mov_b64 exec, -1")
        g.stamp(5)
        a(f"s_sub_u32 s{sF}, s{sF}, 32"); a(f"s_cmp_lt_u32 s{sF}, 10"); a("s_cbranch_scc0 L_aux_end")
        Y = 72
        a("v_lshrrev_b32 v1, 4, v0"); a(f"s_lshl_b32 s{sT}, s{sW}, 3"); a(f"v_add_u32 v1, s{sT}, v1")
        a("v_mul_u32_u24 v2, 2560, v1"); a("v_lshl_add_u32 v2, v4, 4, v2")
        a(f"s_lshl_b32 s{sT}, s{sF}, 8"); a(f"s_add_u32 s{sT}, s{sT}, {WS_Y}"); a(f"v_add_u32 v2, s{sT}, v2"); a(f"v_add_u32 v3, {4*2560}, v2")
        a(f"s_mov_b64 {S(rC,2)}, {S(rWS,2)}"); g.srd_consts(rC, WS_Y + 54*2560)
        a(f"s_lshl_b32 s{sT}, s{sW}, 10"); a(f"v_lshl_add_u32 v7, v0, 4, s{sT}")
        a(f"s_mov_b32 s{sCnt}, 0")
        a.lab("L_yr")
        for e in range(2): a(f"buffer_load_dwordx4 {V(Y+4*e,4)}, v{2+e}, {R(rC)}, 0 offen sc1")
        a(f"s_add_u32 s{sCnt}, s{sCnt}, 1"); a(f"s_cmp_lt_u32 s{sCnt}, {SPIN}")
        a("s_waitcnt vmcnt(0)")
        g.poison_max(Y, 8, 6)
        a(f"v_cmp_eq_u32 vcc, {POISON}, v6")
        a("s_cbranch_scc0 L_yrok"); a("s_cbranch_vccnz L_yr")
        a.lab("L_yrok")
        for k in (0, 2): a(f"v_pk_add_f32 {V(Y+k,2)}, {V(Y+k,2)}, {V(Y+4+k,2)}")
        a(f"ds_write_b128 v7, {V(Y,4)}")
        a(f"s_and_b32 s{sT}, s84, 0xffff0000"); a("s_cmp_lt_i32 s84, 0")
        a(f"s_cselect_b32 s{sCnt}, 0, 0x7fff0000")
        a(f"s_xor_b32 s{sT}, s{sT}, s{sCnt}"); a(f"s_xor_b32 s{sT}, s{sT}, 0x80000000")
        a(f"v_mov_b32 v5, s{sT}")
        g.sigmoid(5, 5); g.bf16r(5)
        a("v_lshlrev_b32 v1, 4, v0")
        a(f"s_lshl_b32 s{sT}, s{sF}, 8"); a(f"s_add_u32 s{sT}, s{sT}, {WS_Y2}")
        a(f"s_cmp_eq_u32 s{sW}, 4")
        a("s_waitcnt lgkmcnt(0)")
        a("s_barrier")
        a("s_cbranch_scc0 L_aux_end")
        for e in range(7): a(f"ds_read_b128 {V(Y+4*e,4)}, v1 offset:{1024*e}")
        for e in range(1, 7):
            a(f"s_waitcnt lgkmcnt({6-e})")
            for k in (0, 2): a(f"v_pk_add_f32 {V(Y+k,2)}, {V(Y+k,2)}, {V(Y+4*e+k,2)}")
        for pl in ("16", "32"):
            for k in range(4): a(f"v_mov_b32 v{Y+4+k}, v{Y+k}")
            for k in range(4): a(f"v_permlane{pl}_swap_b32 v{Y+k}, v{Y+4+k}")
            for k in range(4): a(f"v_add_f32 v{Y+k}, v{Y+k}, v{Y+4+k}")
        for k in range(4):
            g.bf16r(Y+k); a(f"v_mul_f32 v{Y+k}, v{Y+k}, v5"); g.bf16r(Y+k)
        a("s_mov_b64 exec, 0xffff")
        a(f"buffer_store_dwordx4 {V(Y,4)}, v1, {R(rWS)}, s{sT} offen sc1")
        a("s_mov_b64 exec, -1")
        g.stamp(7)
        a.lab("L_aux_end")
        g.dump_stamps(8)

    def flush_tail(g):
        for t in g.tail: t()
        g.tail = []

    def build(g):
        g.prologue(); g.lwave(); g.flush_tail(); g.cwave(); g.softmax(); g.stage2(); g.cfin(); g.flush_tail(); g.aux()
        g.a.lab("L_end")
        g.a("s_endpgm")
        body = g.a.finish()
        if g.opt.get('align', 1): body, g.npro, g.nnop = align8(body, KN + '_kernel')
        hdr = open(f"cdna_kernels/{KN}.s.ref").read().split("; Override launch")[0]
        k = KN + "_kernel"
        return hdr + f"""; @launch grid=(256,1,1) block=(512,1,1) lds={LDS_BYTES}
.amdgcn_target "amdgcn-amd-amdhsa--gfx950"
.text
.globl {k}
.p2align 8
.type {k},@function
{k}:
{body}
.section .rodata,"a"
.p2align 6
.amdhsa_kernel {k}
  .amdhsa_next_free_vgpr 256
  .amdhsa_next_free_sgpr 102
  .amdhsa_accum_offset 256
  .amdhsa_group_segment_fixed_size 0
  .amdhsa_kernarg_size 96
  .amdhsa_user_sgpr_count 2
  .amdhsa_user_sgpr_kernarg_segment_ptr 1
  .amdhsa_system_sgpr_workgroup_id_x 1
  .amdhsa_float_denorm_mode_32 3
.end_amdhsa_kernel
"""

if __name__ == "__main__":
    out = sys.argv[1] if len(sys.argv) > 1 else "k2.s"
    kw = {}
    for x in sys.argv[2:]:
        k, v = x.split("="); kw[k] = eval(v)
    g = Gen(**kw)
    open(out, "w").write(g.build())
    print("wrote", out, "pads", g.a.npad, "promoted/nops", getattr(g, "npro", 0), getattr(g, "nnop", 0))
```

```python
import sys, struct, math
sys.path.insert(0, "work")
from asmlib import Asm, align8

KN = "gated_mix__sliding_local_dilated__moe_arch_mod__prompt"
def f32(x): return "0x%08x" % struct.unpack("<I", struct.pack("<f", x))[0]

import os
BLK = int(os.environ.get('BLK', 290816))
WS_OG = 143360
WS_FL = 2*143360
WS_Y = 20*BLK
WS_G = WS_Y + 139264
WS_Y2 = WS_G + 8192
WS_F = WS_G + 16384
WS_K = WS_F + 8192
WS_AR = WS_K + 8192
WS_T = 16 << 20
WS_SIZE = 20 << 20
SLOT = 38912
WOFF = 14336
L_WO = 81920
L_QK = 38912
L_WO2 = 0
L_P = L_WO + 12*4096
L_EP = L_P
L_CNT = L_P + 28672
L_GF = L_CNT + 16
L_OWN = 38912
L_BB = 38912
LDS_BYTES = 163840
POISON = -1
SPIN = 30000
CSC = f32(20**-0.5 * math.log2(math.e))

rX, rW, rWO, rWS, rDBG, rOUT = 28, 32, 36, 40, 44, 48
sW, sX, sJ, sP, sM0, sJB, sCG, sTB, sI0, sCnt, sSlot, sT = 52, 53, 54, 55, 56, 57, 58, 59, 60, 61, 62, 63
def S(n, k=1): return f"s{n}" if k == 1 else f"s[{n}:{n+k-1}]"
def V(n, k=1): return f"v{n}" if k == 1 else f"v[{n}:{n+k-1}]"
def R(n): return S(n, 4)

class Gen:
    def __init__(g, stamps=False, look=8, rot=2, depth=5, **kw):
        g.a = Asm(); g.stamps = stamps; g.look = look; g.rot = rot; g.depth = depth
        g.opt = kw
        g.nlab = 0
        g.tail = []
    def lab(g, base): g.nlab += 1; return f"L_{base}_{g.nlab}"
    def sreg(g, k): return 86 + 2*k if k < 8 else 4 + 2*(k-8)
    def stamp(g, k):
        if g.stamps and (g.stamps is True or k in g.stamps or k == 0): g.a(f"{'s_memrealtime' if g.opt.get('rt') else 's_memtime'} {S(g.sreg(k),2)}")
    def dump_stamps(g, nst):
        if not g.stamps: return
        a = g.a
        a("s_memrealtime s[62:63]")
        a("s_waitcnt lgkmcnt(0)")
        a("v_mov_b32 v1, v253")
        for k in range(nst): a(f"v_writelane_b32 v1, s{g.sreg(k)}, {k}")
        a("v_writelane_b32 v1, s3, 30")
        a("v_writelane_b32 v1, s62, 31")
        a(f"s_lshl_b32 s62, s2, 3"); a(f"s_add_u32 s62, s62, s{sW}"); a("s_lshl_b32 s62, s62, 8"); a(f"s_add_u32 s62, s62, {WS_T}")
        a("v_lshlrev_b32 v2, 2, v0")
        a(f"buffer_store_dword v1, v2, {R(rWS)}, s62 offen")
    def srd_consts(g, r, size):
        g.a(f"s_mov_b32 s{r+2}, {size}"); g.a(f"s_mov_b32 s{r+3}, 0x20000")

    def prologue(g):
        a = g.a
        a("s_load_dwordx16 s[4:19], s[0:1], 0")
        a("s_load_dwordx8 s[20:27], s[0:1], 64")
        if g.stamps:
            a("s_memrealtime s[100:101]")
            g.stamp(0)
        if g.opt.get("cpf0", 1):
            a("s_getpc_b64 s[52:53]")
            a.lab("L_pc0")
            a("s_and_b32 s61, s2, 0xf8")
            a("v_min_u32 v1, 7, v0"); a("v_add_lshl_u32 v1, v1, s61, 7")
            a(f"v_min_u32 v1, L_end-L_pc0, v1")
            a("v_cmp_gt_u32 vcc, 64, v0"); a("s_cbranch_vccz L_nocpf0")
            a("global_load_dword v247, v1, s[52:53]")
            a.lab("L_nocpf0")
        a("v_lshrrev_b32 v1, 6, v0")
        a("s_cmp_ge_u32 s2, 256")
        a("s_cbranch_scc1 L_end")
        a(f"v_readfirstlane_b32 s{sW}, v1")
        a("v_and_b32 v0, 63, v0")
        a(f"s_and_b32 s{sX}, s2, 7")
        a(f"s_lshr_b32 s{sJ}, s2, 3")
        g.srd_consts(rX, 2048*1280); g.srd_consts(rW, 640*3840)
        a(f"s_bfe_u32 s{sP}, s2, 0x10001")
        a(f"s_cmp_ge_u32 s{sJ}, 25")
        a("s_cbranch_scc1 L_aux")
        a(f"s_mul_i32 s{sM0}, s{sJ}, 52"); a(f"s_lshr_b32 s{sM0}, s{sM0}, 8")
        a(f"s_mul_i32 s{sJB}, s{sM0}, 5"); a(f"s_sub_u32 s{sJB}, s{sJ}, s{sJB}")
        a(f"s_and_b32 s{sCG}, s2, 1"); a(f"s_mul_i32 s{sCG}, s{sCG}, 5"); a(f"s_add_u32 s{sCG}, s{sCG}, s{sM0}")
        a(f"s_lshr_b32 s{sTB}, s{sX}, 1"); a(f"s_mul_i32 s{sTB}, s{sTB}, 5"); a(f"s_add_u32 s{sTB}, s{sTB}, s{sJB}")
        a(f"s_and_b32 s{sI0}, s{sX}, 4"); a(f"s_lshl_b32 s{sI0}, s{sI0}, 7")
        a(f"s_mul_i32 s{sCnt}, s{sJB}, 104"); a(f"s_add_u32 s{sI0}, s{sI0}, s{sCnt}"); a(f"s_sub_u32 s{sI0}, s{sI0}, 8")
        a(f"s_cmp_lt_u32 s{sW}, 4")
        a("s_cbranch_scc1 L_cwave")

    def ptrs(g):
        a = g.a
        a("s_waitcnt lgkmcnt(0)")
        a(f"s_mov_b64 {S(rX,2)}, s[4:5]"); a(f"s_mov_b64 {S(rW,2)}, s[6:7]")
        if g.stamps: a("s_mov_b32 s3, s100")
    def ptrs2(g):
        a = g.a
        a(f"s_mov_b64 {S(rWO,2)}, s[8:9]"); a(f"s_mov_b64 {S(rWS,2)}, s[26:27]")
        a(f"s_mov_b64 {S(rDBG,2)}, s[24:25]"); a(f"s_mov_b64 {S(rOUT,2)}, s[22:23]")
        g.srd_consts(rWO, 640*1280); g.srd_consts(rWS, WS_SIZE); g.srd_consts(rDBG, 256); g.srd_consts(rOUT, 2048*1280)

    XR = 224
    vXR = 3
    vSP = 254
    vL16 = 255
    sFL, sCur, sAr, sLoc = 20, 21, 0, 53

    def xres_addr(g):
        a = g.a
        a("v_bfe_u32 v8, v0, 1, 3"); a("v_lshrrev_b32 v9, 5, v0"); a("v_xor_b32 v9, v9, v8"); a("v_lshlrev_b32 v9, 4, v9")
        a("v_bfe_u32 v10, v0, 4, 1"); a("v_lshl_add_u32 v9, v10, 3, v9"); a("v_and_b32 v10, 15, v0"); a("v_lshl_add_u32 v9, v10, 7, v9")
        a(f"s_mul_i32 s{sCnt}, s{sCG}, 86"); a(f"s_lshr_b32 s{sCnt}, s{sCnt}, 8"); a(f"s_mul_i32 s{sCnt}, s{sCnt}, 3"); a(f"s_sub_u32 s{sCnt}, s{sCG}, s{sCnt}")
        a(f"s_sub_u32 s{sSlot}, 3, s{sCnt}"); a(f"s_cmp_eq_u32 s{sCnt}, 0"); a(f"s_cselect_b32 s{sSlot}, 0, s{sSlot}"); a(f"s_mul_i32 s{sSlot}, s{sSlot}, {SLOT}")
        a(f"s_lshl_b32 s{sT}, s{sW}, 12"); a(f"s_add_u32 s{sT}, s{sT}, s{sSlot}")
        a(f"v_add_u32 v{g.vXR}, s{sT}, v9")
    def xres_read(g):
        a = g.a
        for tau, x in ((0, 0), (1, 32), (3, 64), (2, 32)):
            if tau: a(f"v_xor_b32 v{g.vXR}, {x}, v{g.vXR}")
            for q in range(2): a(f"ds_read_b64 {V(g.XR+8*q+2*tau,2)}, v{g.vXR} offset:{2048*q}")
    BI, BI0 = 240, 244
    B1, B2 = 200, 216
    vQ1, vQ2 = 251, 252
    def unit_setup(g, sA):
        a = g.a
        a(f"s_and_b32 s{sCnt}, s{sW}, 1"); a(f"s_mul_i32 s{sCnt}, s{sCnt}, 1536")
        a(f"s_mul_i32 s{sT}, s{sA}, 7168"); a(f"s_lshl1_add_u32 s{sT}, s{sCnt}, s{sT}"); a(f"s_add_u32 s{sT}, s{sT}, {L_P+8}")
        a(f"v_lshlrev_b32 v{g.vL16}, 4, v0")
        a("v_lshrrev_b32 v8, 2, v0"); a("v_bfi_b32 v8, v0, 0, v8"); a("v_and_b32 v8, 8, v8")
        a(f"v_sub_u32 v8, v{g.vL16}, v8"); a(f"v_add_u32 v{g.vSP}, s{sT}, v8")
        a(f"s_mul_i32 s{sT}, s{sA}, 5"); a(f"s_sub_u32 s{sT}, s{sT}, s{sM0}"); a(f"s_add_u32 s{sT}, s{sT}, 4")
        a(f"s_add_u32 s{sCnt}, s{sCnt}, {L_QK}")
        a("v_and_b32 v9, 15, v0"); a(f"v_lshl_add_u32 v10, v9, 3, s{sCnt}")
        a("v_lshrrev_b32 v11, 4, v0"); a(f"v_add_u32 v8, s{sT}, v11")
        a(f"v_lshl_add_u32 v{g.vQ1}, v8, 7, v10"); a("v_lshrrev_b32 v8, 2, v8"); a(f"v_mul_u32_u24 v8, {7168-512}, v8"); a(f"v_add_u32 v{g.vQ1}, v{g.vQ1}, v8")
        a(f"s_add_u32 s{sT}, s{sT}, 4"); a(f"s_lshr_b32 s{sSlot}, s{sT}, 2"); a(f"s_mul_i32 s{sSlot}, s{sSlot}, {7168-512}"); a(f"s_lshl_b32 s{sT}, s{sT}, 7"); a(f"s_add_u32 s{sT}, s{sT}, s{sSlot}")
        a(f"v_add_u32 v{g.vQ2}, s{sT}, v10")
        a(";cut")
        a("v_lshlrev_b32 v8, 2, v11"); a("v_sub_u32 v9, v9, v8")
        a(f"v_mov_b32 v11, {f32(-1e30)}")
        for r in range(4):
            a(f"v_subrev_u32 v10, {r}, v9"); a("v_and_b32 v10, 8, v10")
            a("v_cmp_eq_u32 vcc, 0, v10")
            a(f"v_cndmask_b32_e64 v{g.BI+r}, v11, v10, vcc")
        a(f"s_cmp_lt_i32 s{sI0}, 0"); a(f"s_cselect_b32 s{sT}, 32, 0"); a(f"s_bitcmp1_b32 s{sW}, 0"); a(f"s_cselect_b32 s{sT}, 0, s{sT}")
        a(f"v_cmp_gt_u32 vcc, s{sT}, v0")
        for r in range(4): a(f"v_cndmask_b32_e64 v{g.BI0+r}, v{g.BI+r}, v11, vcc")
    vK = 120
    def unit_late(g):
        v = g.vK
        return [f"v_and_b32 v{v}, 8, v0", f"v_lshlrev_b32 v{v}, 6, v{v}",
                f"v_lshlrev_b32 v{v+2}, 5, v0", f"v_bfi_b32 v{v+2}, v{v+2}, 0, v{v}",
                f"s_bitcmp1_b32 s{sW}, 0", f"s_cselect_b32 s{sT}, -1, 0",
                f"v_and_b32 v{v+1}, s{sT}, v{v}", f"v_and_b32 v{v+3}, s{sT}, v{v+2}",
                f"v_sub_u32 v{v}, v{g.vQ1}, v{v}", f"v_sub_u32 v{v+1}, v{g.vQ1}, v{v+1}",
                f"v_sub_u32 v{v+2}, v{g.vQ2}, v{v+2}", f"v_sub_u32 v{v+3}, v{g.vQ2}, v{v+3}",
                f"s_mov_b32 s{sSlot}, {CSC}", f"s_mov_b32 s{sT}, {CSC}"]
    def fl_addr(g):
        a = g.a
        a(f"s_mul_i32 s{g.sFL}, s{sTB}, {BLK//256}"); a(f"s_add_u32 s{g.sFL}, s{g.sFL}, s{sCG}"); a(f"s_lshl_b32 s{g.sFL}, s{g.sFL}, 8"); a(f"s_add_u32 s{g.sFL}, s{g.sFL}, {WS_FL}")
    def arr_load(g): return [f"s_lshl_b32 s{g.sLoc}, s{sTB}, 8", f"s_add_u32 s{g.sLoc}, s{g.sLoc}, {WS_AR}", f"s_load_dword s{g.sAr}, {S(rWS,2)}, s{g.sLoc}",
                             f"s_add_u32 s{g.sCur}, s{g.sLoc}, 128", f"s_load_dword s{g.sAr+1}, {S(rWS,2)}, s{g.sCur}"]
    def arr_check(g, nm, t0, t1, va, vd):
        a = g.a
        ops = [[f"L_ac_{nm}:", f"s_add_u32 s{t0}, s{g.sAr}, s{g.sAr+1}", f"s_lshr_b32 s{t1}, s{t0}, 4", f"s_and_b32 s{t1}, s{t1}, 0x0f0f0f0f"],
               [f"s_and_b32 s{t0}, s{t0}, 0x0f0f0f0f", f"s_add_u32 s{t0}, s{t0}, s{t1}", f"s_mul_i32 s{t0}, s{t0}, 0x01010101"],
               [f"s_lshr_b32 s{t0}, s{t0}, 24", f"s_cmp_ge_u32 s{t0}, 10", f"s_cbranch_scc0 L_ar_{nm}", f"L_ao_{nm}:"],
               ["s_bitcmp1_b32 s2, 0", f"s_cselect_b32 s{t0}, s{g.sAr+1}, s{g.sAr}", f"s_getreg_b32 s{t1}, hwreg(HW_REG_XCC_ID, 0, 3)"],
               [f"s_lshl_b32 s{t1}, s{t1}, 2", f"s_lshr_b32 s{t0}, s{t0}, s{t1}"],
               [f"s_cmp_eq_u32 s{t0}, 5", f"s_cselect_b32 s{g.sLoc}, {0 if g.opt.get('nolocal') else 1}, 0"]]
        if g.opt.get("noarr"): return [[f"s_mov_b32 s{g.sLoc}, 1"]]
        def t():
            a.lab(f"L_ar_{nm}")
            a(f"s_mov_b32 s{g.sCur}, 0"); a(f"v_mov_b32 v{va}, s{g.sLoc}")
            a.lab(f"L_ar2_{nm}")
            a("s_sleep 4")
            a(f"buffer_load_dword v{vd}, v{va}, {R(rWS)}, 0 offen sc1"); a(f"buffer_load_dword v{vd+1}, v{va}, {R(rWS)}, 0 offen offset:128 sc1")
            a(f"s_add_u32 s{g.sCur}, s{g.sCur}, 1")
            a("s_waitcnt vmcnt(0)")
            a(f"v_readfirstlane_b32 s{g.sAr}, v{vd}"); a(f"v_readfirstlane_b32 s{g.sAr+1}, v{vd+1}")
            a(f"v_mov_b64 {V(vd,2)}, 0")
            a(f"s_cmp_lt_u32 s{g.sCur}, {SPIN}"); a(f"s_cbranch_scc0 L_ao_{nm}")
            for x in ops[0][1:] + ops[1] + ops[2][:2]: a(x)
            a(f"s_cbranch_scc0 L_ar2_{nm}")
            a(f"s_branch L_ao_{nm}")
        g.tail.append(t)
        return ops
    def emit(g, ops):
        for grp in ops:
            for x in (grp if isinstance(grp, list) else [grp]):
                if x.endswith(":"): g.a.lab(x[:-1])
                else: g.a(x)

    def lwave(g):
        a = g.a
        vX, vW, vWO = 12, 16, 43
        sLW, sXo, sWo, sMb, sTmp, sS0, sS1 = 64, 65, 66, 67, 68, 69, 70
        sNeed = 71
        a(f"s_sub_u32 s{sLW}, s{sW}, 4")
        a("v_lshrrev_b32 v1, 3, v0")
        a("v_and_b32 v2, 7, v0")
        a("v_lshrrev_b32 v3, 4, v0")
        a(f"s_and_b32 s{sTmp}, s{sLW}, 1"); a(f"s_lshl_b32 s{sWo}, s{sTmp}, 2")
        a(f"v_xor_b32 v4, v3, v2"); a(f"v_xor_b32 v4, s{sWo}, v4")
        a(f"s_lshl3_add_u32 s{sMb}, s{sLW}, s{sI0}")
        a(f"s_lshl1_add_u32 s{sMb}, s{sMb}, s{sP}"); a(f"s_mul_i32 s{sMb}, s{sMb}, 1280")
        a("v_mul_u32_u24 v5, 2560, v1")
        a(f"v_lshl_add_u32 v5, v4, 4, v5")
        a(f"v_add_u32 v{vX}, s{sMb}, v5")
        a("v_and_b32 v3, 6, v1"); a("v_xor_b32 v4, v3, v2")
        a(f"s_lshl_b32 s{sXo}, s{sCG}, 7")
        a(f"v_lshl_add_u32 v4, v4, 4, s{sXo}")
        a(f"s_lshl_b32 s{sTmp}, s{sTmp}, 4"); a(f"s_and_b32 s{sXo}, s{sLW}, 2"); a(f"s_lshl1_add_u32 s{sTmp}, s{sXo}, s{sTmp}")
        a("v_and_b32 v5, 4, v1"); a(f"v_add3_u32 v5, v5, v1, s{sTmp}")
        a("v_mul_u32_u24 v5, 3840, v5")
        a(f"v_add_u32 v{vW}, v5, v4")
        for m in range(1, 4): a(f"v_add_u32 v{vX+m}, {32*2560*m}, v{vX}")
        a(f"s_lshl_b32 s{sMb}, s{sLW}, 10")
        a(f"s_cmp_ge_u32 s{sLW}, 2"); a("s_cselect_b64 vcc, -1, 0")
        g.ptrs()
        g.stamp(3)
        order9 = [('x',0),('w',1),('x',1),('x',3),('w',0),('x',2),('w',4),('w',3),('w',2),('w',5)]
        order = [('x',0),('w',0),('w',1),('x',1),('w',2),('w',3),('x',2),('w',4),('w',5),('x',3)]
        slot = lambda c: (0, 2*SLOT, SLOT)[c % 3]
        def issue(c, j):
            split = c == 9 and g.opt.get("split", 0)
            kind, m = (order9 if split else order)[j]
            if kind == 'x':
                skip = None
                if m == 3:
                    skip = g.lab("skipx")
                    a(f"s_cbranch_vccnz {skip}")
                a(f"s_add_u32 m0, s{sMb}, {slot(c) + m*4096}")
                if m == 0: a(f"s_movk_i32 s{sXo}, {c*128}")
                a(f"buffer_load_dwordx4 v{vX+m}, {R(rX)}, s{sXo} offen lds")
                if skip: a.lab(skip)
            else:
                ks, sec = divmod(m, 3)
                a(f"s_add_u32 m0, s{sMb}, {slot(c) + WOFF + m*4096 - sec*1280}")
                if sec == 0 or split: a(f"s_mov_b32 s{g.sLd}, {c*245760 + ks*122880}")
                a(f"buffer_load_dwordx4 v{vW}, {R(rW)}, s{g.sLd} offen offset:{sec*1280} lds")
        look = g.look
        def pre():
            g.ptrs2()
            a(f"s_lshl_b32 s{sTmp}, s{sLW}, 3"); a(f"v_add_u32 v5, s{sTmp}, v1"); a("v_mul_u32_u24 v5, 1280, v5"); a(f"v_add_u32 v{vWO}, v5, v4")
            a(f"s_getreg_b32 s84, hwreg(HW_REG_XCC_ID, 0, 3)"); a(f"s_lshl_b32 s84, s84, 2"); a(f"s_lshl_b32 s84, 1, s84")
            a(f"s_and_b32 s83, s2, 1"); a(f"s_lshl1_add_u32 s83, s{sTB}, s83"); a(f"s_lshl_b32 s83, s83, 7"); a(f"s_add_u32 s83, s83, {WS_AR}")
            g.emit([x for x in g.arr_load() if not x.startswith("s_load")])
        for c in range(10):
            for j in range(look): issue(c, j)
            if c == g.opt.get("lpre", 0): pre()
            arrc = g.opt.get("arrc", 6)
            if c == arrc - 1: a(f"s_load_dword s85, {S(rDBG,2)}, {63*4}")
            if c == arrc:
                a("s_waitcnt lgkmcnt(0)")
                a("s_cmp_eq_u32 s85, 0"); a("s_cbranch_scc1 L_ll_init")
                a.lab("L_ll_initok")
                a(f"s_cmp_eq_u32 s{sLW}, 3"); a("s_cbranch_scc0 L_ll_na")
                if not g.opt.get("noarr"): a(f"s_atomic_add s84, {S(rWS,2)}, s83")
                a.lab("L_ll_na")
                def t():
                    a.lab("L_ll_init")
                    a(f"v_mov_b32 v6, {63*4}"); a(f"s_mov_b32 s{sCnt}, 0")
                    a.lab("L_ll_init2")
                    a(f"buffer_load_dword v7, v6, {R(rDBG)}, 0 offen sc1")
                    a(f"s_add_u32 s{sCnt}, s{sCnt}, 1")
                    a("s_waitcnt vmcnt(0)")
                    a("v_readfirstlane_b32 s85, v7")
                    a(f"s_cmp_lt_u32 s{sCnt}, {SPIN}"); a("s_cbranch_scc0 L_ll_initok")
                    a("s_cmp_eq_u32 s85, 0"); a("s_cbranch_scc0 L_ll_initok")
                    a("s_sleep 4"); a("s_branch L_ll_init2")
                g.tail.append(t)
            if c == 9: g.emit([x for x in g.arr_load() if x.startswith("s_load")])
            if c == 8 and g.opt.get("warm", 0):
                a("s_mov_b64 exec, 0")
                for j in range(3): a(f"s_cmp_eq_u32 s{sLW}, {j}"); a(f"s_cbranch_scc1 L_hop{j}")
                a("s_branch L_hop3"); a.lab("L_hopret"); a("s_mov_b64 exec, -1")
            if c > 0:
                a(f"s_waitcnt vmcnt({look - (1 if c == 9 and g.opt.get('split', 0) else 0)})")
                a("s_barrier")
            for j in range(look, 10): issue(c, j)
        g.stamp(1)
        a(f"s_add_u32 s{sMb}, s{sMb}, {L_WO}")
        a(f"s_sub_u32 s{sXo}, s{sCG}, s{sM0}"); a(f"s_mul_i32 s{sXo}, s{sXo}, 81920")
        n1 = g.opt.get("wo1", 7)
        for e in range(12):
            if e == g.opt.get("wo0", 3) and g.opt.get("split", 0):
                a(f"s_waitcnt vmcnt({e + 4})")
                a("s_barrier")
            if e == n1:
                a(f"s_waitcnt vmcnt({n1})")
                a("s_barrier")
            if e == 10: a(f"s_sub_u32 s{sXo}, 409600, s{sXo}")
            if e % 2 == 0: g.gidx(e//2, sWo, sTmp); a(f"s_mul_i32 s{sWo}, s{sWo}, 81920")
            a(f"s_add_u32 m0, s{sMb}, {e*4096}")
            a(f"s_add_u32 s{sWo}, s{sWo}, {'s%d' % sXo if e % 2 == 0 else 40960}")
            a(f"buffer_load_dwordx4 v{vWO}, {R(rWO)}, s{sWo} offen lds")
        g.stamp(2)
        g.l_setup()
        for j in range(1, 5 if not g.opt.get("woc", 0) else 0):
            g.gidx(5+j, sT, sTmp); a(f"s_mul_i32 s{sT}, s{sT}, 81920"); a(f"s_add_u32 s{21+j}, s{sT}, s{sXo}")
        a(f"s_mul_i32 s84, s{sS1}, {5*7168}"); a(f"s_add_u32 s84, s84, {L_QK}")
        a(f"s_and_b32 s{sT}, s{sLW}, 1"); a(f"s_mul_i32 s82, s{sT}, 1536"); a(f"s_lshl_b32 s83, s{sT}, 9"); a(f"s_add_u32 s83, s83, 3584")
        a(f"s_mov_b32 s{sSlot}, {CSC}"); a(f"s_mov_b32 s{sT}, {CSC}")
        a(f"s_mov_b32 s{sCnt}, 0")
        a(f"s_cmp_eq_u32 s{sNeed}, s{sM0}")
        g.stamp(5)
        a("s_cbranch_scc1 L_sdone")
        a.lab("L_spoll")
        a(f"buffer_load_dword v42, v41, {R(rWS)}, 0 offen sc1")
        a(f"s_add_u32 s{sCnt}, s{sCnt}, 1"); a(f"s_cmp_lt_u32 s{sCnt}, {SPIN}")
        a("s_waitcnt vmcnt(0)")
        a("v_cmp_eq_u32 vcc, 0, v42"); a("s_cbranch_scc0 L_sok"); a("s_cbranch_vccnz L_spoll")
        a.lab("L_sok")
        for so, n in ((82, 2), (83, 3)):
            a(f"s_add_u32 m0, s84, s{so}"); a(f"s_add_u32 s{sTmp}, s{sS0}, s{so}")
            for e in range(n): a(f"buffer_load_dwordx4 v45, {R(rWS)}, s{sTmp} offen offset:{1024*e} sc1 lds")
        g.stamp(4)
        a.lab("L_sdone")
        g.cntwait("l", 46, 47)
        if g.opt.get("prio", 1): a("s_setprio 1")
        a("s_waitcnt vmcnt(0)")
        g.stamp(6)
        a("s_branch L_units")

    sLd = 66
    def l_setup(g):
        a = g.a
        sLW, sTmp, sS0, sS1, sNeed = 64, 68, 69, 70, 71
        a(f"s_lshl_b32 s{sT}, s{sLW}, 30"); a(f"s_and_b32 s{sT}, s{sT}, 0x80000000"); a(f"s_sub_u32 s{sTmp}, s{sM0}, 4")
        a("v_bfe_u32 v8, v0, 3, 2"); a(f"v_add_u32 v8, s{sTmp}, v8"); a("v_and_b32 v8, 0x80000000, v8"); a(f"v_xor_b32 v8, s{sT}, v8"); a("v_lshl_or_b32 v45, v0, 4, v8")
        a(f"v_mov_b32 v46, {L_CNT}")
        a(";cut")
        g.fl_addr()
        a(f"s_lshr_b32 s{sS1}, s{sLW}, 1")
        a(f"s_mul_i32 s{sTmp}, s{sS1}, 3")
        g.unit_setup(sTmp)
        a(";cut")
        for r in range(g.B1, g.B1+24, 2): a(f"v_mov_b64 {V(r,2)}, 0")
        a(";cut")
        a(f"s_lshl1_add_u32 s{sS0}, s{sCG}, s{sS1}"); a(f"s_mul_i32 s{sS0}, s{sS0}, 7168"); a(f"s_mul_i32 s{sT}, s{sTB}, {BLK}"); a(f"s_add_u32 s{sS0}, s{sS0}, s{sT}")
        a(f"s_lshl2_add_u32 s{sT}, s{sS1}, s{g.sFL}"); a(f"v_mov_b32 v41, s{sT}")
        a(f"s_lshl_b32 s{sNeed}, s{sS1}, 2")
        a(";cut")
        g.emit(g.unit_late()[:-2])

    AQ, AK, AV = 4, 32, 60
    XA = (88, 128); WB = (116, 156)
    VL, VR = 168, 184
    vXA0, vXA1, vWB, vO = 248, 249, 250, 125
    mSend, mCL = 64, 66
    sXg, sXf, sPL, sPR, sKey, sD = 80, 81, 82, 83, 75, 79

    def cwave(g):
        a = g.a
        a.lab("L_cwave")
        sM, sAL, sAR, sU = 74, 75, 78, 79
        a("v_and_b32 v1, 15, v0")
        a("v_lshrrev_b32 v2, 4, v0")
        for r in range(4): a(f"v_mov_b32 v{88+r}, 0")
        a("v_lshlrev_b32 v12, 7, v0")
        g.ptrs(); g.ptrs2(); g.fl_addr()
        a(f"s_mul_i32 s{sJ}, s{sCG}, 14336"); a(f"s_mul_i32 s{sT}, s{sTB}, {BLK}"); a(f"s_add_u32 s{sJ}, s{sJ}, s{sT}")
        a(f"s_cmp_eq_u32 s{sW}, 0"); a("s_cbranch_scc0 L_ch1")
        a("s_mov_b64 exec, 3")
        a(f"buffer_store_dwordx4 v[88:91], v12, {R(rWS)}, s{g.sFL} offen sc1")
        a("s_branch L_ch3")
        a.lab("L_ch1")
        if g.opt.get("tlb", 1):
            a(f"s_cmp_eq_u32 s{sW}, 3"); a("s_cbranch_scc0 L_ch2" if g.opt.get("mb", 0) else "s_cbranch_scc0 L_ch3")
            a(f"s_max_i32 s{sT}, s{sI0}, 0"); a(f"s_mul_i32 s{sT}, s{sT}, 2560"); a(f"v_mul_u32_u24 v13, {100*2560}, v0")
            a("s_mov_b64 exec, 3")
            a(f"buffer_load_dword v{g.XA[1]}, v13, {R(rOUT)}, s{sT} offen sc1")
        mb = g.opt.get("mb", 0)
        if mb:
            a("s_branch L_ch3")
            a.lab("L_ch2")
            if mb == 1: a(f"s_cmp_eq_u32 s{sW}, 1"); a("s_cbranch_scc0 L_ch3")
            g.wtouch_addr(12, 13, 14)
            a(f"s_lshr_b32 s{sT}, s2, 3"); a(f"s_mul_i32 s{sCnt}, s{sW}, 25"); a(f"s_add_u32 s{sT}, s{sT}, s{sCnt}"); a(f"s_add_u32 s{sT}, s{sT}, {g.opt.get('mb0', 3)-25}")
            a(f"s_mul_i32 s{sT}, s{sT}, {16*3840}"); a(f"v_add_u32 v14, s{sT}, v14")
            a("s_mov_b32 exec_hi, 0x0fffffff")
            a(f"buffer_load_dword v{g.XA[1]}, v14, {R(rW)}, 0 offen")
        a.lab("L_ch3")
        a("s_mov_b64 exec, -1")
        a(f"s_add_u32 s{sM}, s{sW}, 5"); a(f"s_sub_u32 s{sM}, s{sM}, s{sM0}")
        a(f"s_cmp_ge_u32 s{sM}, 5"); a(f"s_cselect_b32 s{sT}, 5, 0"); a(f"s_sub_u32 s{sM}, s{sM}, s{sT}")
        a(f"s_cmp_gt_u32 s{sW}, s{sM0}"); a(f"s_subb_u32 s{g.sPL}, s{sW}, 0")
        a(f"s_cmp_lt_u32 s{sW}, s{sM0}"); a(f"s_addc_u32 s{g.sPR}, s{sW}, 0")
        a(f"s_min_u32 s{g.sPR}, s{g.sPR}, 3")
        a(f"s_mul_i32 s{g.sPL}, s{g.sPL}, 7168"); a(f"s_mul_i32 s{g.sPR}, s{g.sPR}, 7168")
        a(f"s_add_u32 s{g.sPL}, s{g.sPL}, {L_P}"); a(f"s_add_u32 s{g.sPR}, s{g.sPR}, {L_P}")
        a(f"v_cmp_gt_u32 vcc, s{sM}, v2")
        a("v_lshrrev_b32 v12, 2, v1")
        a(f"v_cmp_gt_u32 {S(g.mCL,2)}, s{sM}, v12")
        a(f"s_cmp_eq_u32 s{sW}, 3"); a(f"s_cselect_b64 {S(g.mSend,2)}, -1, 0"); a(f"s_cselect_b32 s{sT}, 2, -1"); a(f"s_cselect_b32 s{sU}, 508, 0")
        a(f"s_xor_b64 {S(g.mSend,2)}, {S(g.mSend,2)}, vcc")
        a(f"s_mul_i32 s{g.sXg}, s{sT}, 7168"); a(f"s_add_u32 s{g.sXg}, s{g.sXg}, s{sJ}")
        a(f"s_add_u32 s{g.sXf}, s{g.sFL}, s{sU}"); a(f"s_sub_u32 s{g.sXf}, s{g.sXf}, 252")
        a(f"s_add_u32 s{sCnt}, s{sW}, 1"); a(f"s_and_b32 s{sCnt}, s{sCnt}, 2"); a(f"s_cselect_b32 s{g.sXf}, 0, s{g.sXf}")
        a(f"s_cmp_eq_u64 {S(g.mSend,2)}, 0"); a(f"s_cselect_b32 s{g.sXf}, 0, s{g.sXf}")
        a(f"s_lshr_b32 s{sU}, s{sW}, 1"); a(f"s_mul_i32 s{sT}, s{sU}, 7168"); a(f"s_add_u32 s{sJ}, s{sJ}, s{sT}")
        a(f"s_and_b32 s{sT}, s{sW}, 1"); a(f"s_lshl_b32 s{sT}, s{sT}, 9"); a(f"s_add_u32 s{sJ}, s{sJ}, s{sT}")
        a(f"s_add_u32 s{sAL}, s{sU}, 1")
        a("s_waitcnt vmcnt(1)")
        g.unit_setup(sAL)
        a(f"s_lshl_b32 s{sT}, s{sW}, 13"); a(f"s_add_u32 s{sT}, s{sT}, {L_P}"); a(f"v_add_u32 v8, s{sT}, v{g.vL16}")
        for j in range(8): a(f"ds_write_b128 v8, v[88:91] offset:{1024*j}")
        a(f"s_mul_i32 s77, s{sW}, {8*1280}"); a(f"s_lshl_b32 s{sT}, s{sCG}, 7"); a(f"s_add_u32 s77, s77, s{sT}")
        a("s_bitcmp1_b32 s2, 0"); a(f"s_cselect_b32 s{sT}, 0, 409600"); a(f"s_add_u32 s77, s77, s{sT}"); a("s_add_u32 s77, s77, 40960")
        a(f"s_lshl_b32 s76, s{sW}, 10")
        a("v_lshrrev_b32 v8, 1, v1"); a("v_xor_b32 v9, v8, v2"); a("v_lshlrev_b32 v9, 4, v9")
        a(f"v_lshl_add_u32 v{g.vXA0}, v1, 7, v9"); a(f"v_xor_b32 v{g.vXA1}, 64, v{g.vXA0}")
        g.tr_addr(g.vWB, f"s{sW}", WOFF)
        g.xres_addr()
        for r in range(g.VL, g.VL+64, 4):
            a(f"v_mfma_f32_16x16x32_bf16 {V(r,4)}, v[88:91], v[88:91], 0")

        def reads(buf, ks):
            out = []
            for sec in range(3):
                for ab in range(2):
                    out.append(f"ds_read_b64_tr_b16 {V(g.WB[buf]+4*sec+2*ab,2)}, v{g.vWB} offset:{(ks*3+sec)*4096+ab*2048}")
            for t in range(7):
                out.append(f"ds_read_b128 {V(g.XA[buf]+4*t,4)}, v{g.vXA0 if ks == 0 else g.vXA1} offset:{t*2048}")
            return out
        first = [True]
        def mf(buf, t, sec):
            acc = V((g.AQ, g.AK, g.AV)[sec]+4*t, 4); x = V(g.XA[buf]+4*t, 4); w = V(g.WB[buf]+4*sec, 4)
            return f"v_mfma_f32_16x16x32_bf16 {acc}, {x if sec == 2 else w}, {w if sec == 2 else x}, {0 if first[0] else acc}"
        def phase(buf, fill):
            mo = g.opt.get("mo", 0)
            if mo == 0: ms = [mf(buf, t, sec) for t in range(7) for sec in range(3)]
            if mo == 1: ms = [mf(buf, t, sec) for sec in range(3) for t in range(7)]
            if mo == 2: ms = [mf(buf, t, sec) for t in range(7) for sec in range(2)] + [mf(buf, t, 2) for t in range(7)]
            if mo == 3: ms = [mf(buf, t, sec if t % 2 == 0 else 1-sec) for t in range(7) for sec in range(2)] + [mf(buf, t, 2) for t in range(7)]
            if g.opt.get("nomf"): ms = [m if i % g.opt["nomf"] else "s_nop 3" for i, m in enumerate(ms)]
            fill = list(fill)
            if g.opt.get("nord"): fill = [[] if isinstance(f, str) and f.startswith("ds_read") else f for f in fill]
            for m in ms:
                a(m)
                if fill:
                    f = fill.pop(0)
                    for x in (f if isinstance(f, list) else [f]):
                        if x.endswith(":"): a.lab(x[:-1])
                        else: a(x)
            assert not fill
            first[0] = False
        a(f"s_cmp_eq_u32 s{sW}, 0"); a("s_cbranch_scc0 L_ch4")
        a(f"v_mov_b32 v1, s{g.sFL}")
        a("s_waitcnt vmcnt(0)")
        a(f"buffer_load_dword v2, v1, {R(rWS)}, 0 offen sc1")
        a("s_branch L_ch5")
        a.lab("L_ch4")
        a("s_waitcnt vmcnt(0)")
        a.lab("L_ch5")
        g.stamp(1)
        a("s_barrier")
        g.stamp(2)
        for r in reads(0, 0): a(r)
        slot = lambda c: (0, 2*SLOT, SLOT)[c % 3]
        for c in range(10):
            if c > 0:
                st = [[("s_memrealtime" if g.opt.get("rt") else "s_memtime") + " s[98:99]"]] if g.stamps is True or g.opt.get("bars") else []
                bp = g.opt.get("bp9", 0) if c == 9 else g.opt.get("bp", 0)
                pre = [x for x in g.arr_load() if not x.startswith("s_load")] if c == 8 else []
                ex = [pre] if pre else (g.arr_check("c", sT, sCnt, 1, g.VL) if c == 9 else [])
                rd = reads(0, 0)
                if c == 9 and g.opt.get("split", 0): rd = rd[2:4] + rd[6:] + rd[0:2]
                head = ex[:bp] + [[]] * (bp - len(ex)); ex = ex[bp:]
                room = 21 - bp - 1 - len(ex) - g.opt.get("bgap", 3 if bp else 0)
                grp = [rd[n*len(rd)//min(room, len(rd)):(n+1)*len(rd)//min(room, len(rd))] for n in range(min(room, len(rd)))]
                phase(1, head + [["s_barrier"] + (st[0] if st else [])] + grp + ex)
            a("s_waitcnt lgkmcnt(0)")
            book = [[f"s_cmp_eq_u32 s{sCG}, {c}", f"s_cbranch_scc1 L_xres_{c}", f"L_xret_{c}:"]]
            if c < 9:
                d = (slot(c+1) - slot(c)) & 0xffffffff
                book += [f"v_add_u32 v{r}, {d}, v{r}" for r in (g.vXA0, g.vXA1, g.vWB)]
            if c == 4: book.append("s_waitcnt vmcnt(0)")
            if (g.stamps is True or g.opt.get("bars")) and 0 < c < 9: book.append(f"v_writelane_b32 v253, s98, {32+c}")
            if c == 9: break
            book += [[]] * (7 - len(book)) + ["s_waitcnt lgkmcnt(0)"]
            rd = reads(1, 1)
            if c == 8:
                for n, x in enumerate([x for x in g.arr_load() if x.startswith("s_load")]): rd[n] = [rd[n], x]
            phase(0, rd + book)
        rd = reads(1, 1)
        rd = rd[2:4] + rd[6:] + rd[0:2] + rd[4:6]
        cv = lambda s_, t: [f"v_cvt_pk_bf16_f32 v{s_+4*t+h}, v{s_+4*t+2*h}, v{s_+4*t+2*h+1}" for h in range(2)]
        stK = lambda t, fl="": f"buffer_store_dwordx2 {V(g.AK+4*t,2)}, v1, {R(rWS)}, s{sCnt} offen offset:{t*512} {fl}"
        stQ = lambda t, fl="": f"buffer_store_dwordx2 {V(g.AQ+4*t,2)}, v1, {R(rWS)}, s{g.sXg} offen offset:{t*512} {fl}"
        wK = lambda t: f"ds_write_b64 v2, {V(g.AK+4*t,2)} offset:{3584+t*512}"
        wQ = lambda t: f"ds_write_b64 v2, {V(g.AQ+4*t,2)} offset:{t*512}"
        nq = g.opt.get("nq", 3)
        ms = [mf(0, t, 1) for t in range(7)] + [mf(0, t, 0) for t in range(nq)] + [mf(1, t, 1) for t in range(7)]
        fill = [rd[0:2], rd[2:4], rd[4:5], rd[5:7], rd[7:8], rd[8:10], rd[10:11], rd[11:13]] + book
        if g.opt.get("split", 0):
            nq = g.opt.get("nq", 6)
            ms = [mf(0, t, 1) for t in range(7)] + [mf(0, t, 0) for t in range(nq)] + [mf(1, t, 1) for t in range(7)]
            b9 = g.opt.get("b9", 5)
            fill = [rd[2:4], rd[4:6], rd[6:8], rd[8:9]] + book
            fill += [[]] * (b9 - len(fill)) + [["s_barrier"] + rd[0:2], rd[9:11], reads(0, 0)[4:6], rd[11:13]]
        fill += [[]] * (6 + nq - len(fill)) + [[f"s_waitcnt lgkmcnt({6 if g.opt.get('split', 0) else 4})"]]
        assert len(fill) == 7 + nq
        fill += [[f"s_mul_i32 s{sCnt}, s{sW}, 7168", f"s_add_u32 s{sCnt}, s{sCnt}, {L_QK+7168}", "v_lshlrev_b32 v1, 3, v0"],
                 [f"v_add_u32 v2, s{sCnt}, v1", f"s_cmp_eq_u32 s{g.sLoc}, 0", f"s_cselect_b32 s70, 0, s{g.sXf}"],
                 ["s_cmp_eq_u32 s70, 0", f"s_cselect_b64 vcc, 0, {S(g.mSend,2)}", "v_bfrev_b32 v3, 1"],
                 ["v_cndmask_b32_e64 v1, v3, v1, vcc", f"s_add_u32 s{sCnt}, s{g.sXg}, 3584"], [], [],
                 ["s_waitcnt lgkmcnt(0)", f"s_load_dword s{g.sKey}, {S(rDBG,2)}, {0*4}"]]
        for m in ms:
            a(m); g.emit([fill.pop(0)])
        g.stamp(3)
        nst = [0]
        def stub():
            if not g.opt.get("warm", 0): return
            a.lab(f"L_hop{nst[0]}"); nst[0] += 1
            a("s_cbranch_execz L_hopret")
        def dump(send):
            il = g.opt.get("il", 0) or not send
            ms = [mf(0, t, 0) for t in range(nq, 7)] + [mf(1, t, 0) for t in range(7)]
            ops = []
            for t in range(7): ops += cv(g.AK, t) + ([stK(t)] if send else []) + [wK(t)]
            for n, m in enumerate(ms):
                a(m)
                k1 = (n + 1) * len(ops) // len(ms); k0 = n * len(ops) // len(ms)
                g.emit(ops[k0:k1])
                if not send and n in (5, len(ms)-1): stub()
            def count():
                a(f"v_mov_b32 v{g.AQ+2}, {L_CNT}"); a(f"v_mov_b32 v{g.AQ+3}, 1")
                a("s_mov_b64 exec, 1")
                a(f"ds_add_u32 v{g.AQ+2}, v{g.AQ+3}")
                a("s_mov_b64 exec, -1")
            for t in range(7):
                g.emit(cv(g.AQ, t) + ([stQ(t)] if send else []))
                if il: a(wQ(t)); a(mf(0, t, 2))
                if not send and t == 3: stub()
            if not il:
                for t in range(7): a(wQ(t)); a(mf(0, t, 2))
            count()
        a("s_cbranch_vccz L_nosend")
        if g.opt.get("adj", 1):
            dump(True); a("s_branch L_dumped")
            a.lab("L_nosend"); stub(); dump(False)
            a.lab("L_dumped")
        else:
            dump(True)
            a.lab("L_dumped")
            def t():
                a.lab("L_nosend"); stub(); dump(False); a("s_branch L_dumped")
            g.tail.append(t)
        late = g.unit_late()
        for t in range(7):
            if t == g.opt.get("fpos", 3):
                a("v_mov_b32 v1, 0"); a("v_mov_b32 v2, 1")
                a("s_cmp_eq_u32 s70, 0"); a("s_cbranch_scc1 L_noflag")
                a("s_mov_b64 exec, 1"); a("s_waitcnt vmcnt(0)")
                a(f"buffer_store_dword v2, v1, {R(rWS)}, s70 offen")
                if g.opt.get("chain"): g.stamp(13)
                a.lab("L_noflag")
                a("s_mov_b64 exec, -1")
            a(mf(1, t, 2))
            if t == g.opt.get("cpos", 3): a(f"ds_read_b32 v3, v{g.AQ+2}")
            for _ in range(2):
                if late: a(late.pop(0))
        g.emit(late)
        a(f"s_cmp_lg_u32 s70, s{g.sXf}"); a("s_cbranch_scc1 L_send1")
        a.lab("L_sent")
        def t():
            a.lab("L_send1")
            a("v_lshlrev_b32 v1, 3, v0")
            a(f"s_mov_b64 exec, {S(g.mSend,2)}")
            for t in range(7): a(stK(t, "sc1")); a(stQ(t, "sc1"))
            a("s_mov_b64 exec, 1"); a("v_mov_b32 v1, 0"); a("s_waitcnt vmcnt(0)")
            a(f"buffer_store_dword v{g.AQ+3}, v1, {R(rWS)}, s{g.sXf} offen sc1"); a("s_mov_b64 exec, -1")
            a("s_branch L_sent")
        g.tail.append(t)
        def t():
            for c in range(10):
                a.lab(f"L_xres_{c}"); a(f"s_call_b64 s[26:27], L_xres"); a(f"s_branch L_xret_{c}")
            a.lab("L_xres"); g.xres_read(); a("s_setpc_b64 s[26:27]")
        g.tail.append(t)
        g.stamp(4)
        if g.opt.get("vpos", 1) == 0: g.vcvt()
        a("s_waitcnt lgkmcnt(0)")
        a("v_cmp_gt_u32 vcc, 4, v3"); a("s_cbranch_vccz L_cw_ok")
        g.cntwait("c", g.AQ+2, 3)
        a.lab("L_cw_ok")
        g.stamp(6)

    def flagstore(g, nm, sOff, off=0, wait=True):
        a = g.a
        a("v_mov_b32 v1, 0"); a("v_mov_b32 v3, 1")
        a(f"s_cmp_eq_u32 s{g.sLoc}, 0")
        a("s_mov_b64 exec, 1")
        if wait: a("s_waitcnt vmcnt(0)")
        a(f"s_cbranch_scc1 L_fs_{nm}")
        a(f"buffer_store_dword v3, v1, {R(rWS)}, s{sOff} offen offset:{off}")
        a.lab(f"L_fr_{nm}")
        a("s_mov_b64 exec, -1")
        def t():
            a.lab(f"L_fs_{nm}")
            a(f"buffer_store_dword v3, v1, {R(rWS)}, s{sOff} offen offset:{off} sc1")
            a(f"s_branch L_fr_{nm}")
        g.tail.append(t)

    def wtouch_addr(g, t0, t1, d):
        a = g.a
        a(f"v_mul_u32_u24 v{t0}, 4370, v0"); a(f"v_lshrrev_b32 v{t0}, 16, v{t0}")
        a(f"v_mul_u32_u24 v{t1}, 15, v{t0}"); a(f"v_sub_u32 v{t1}, v0, v{t1}")
        a(f"v_mul_u32_u24 v{d}, 52, v{t1}"); a(f"v_lshrrev_b32 v{d}, 8, v{d}")
        a(f"v_mul_u32_u24 v{d}, 640, v{d}"); a(f"v_lshl_add_u32 v{d}, v{t1}, 7, v{d}")
        a(f"v_mul_u32_u24 v{t0}, {4*3840}, v{t0}")
        a(f"s_bfe_u32 s{sT}, s2, 0x20001"); a(f"s_mul_i32 s{sT}, s{sT}, 6"); a(f"s_and_b32 s{sCnt}, s2, 1")
        a(f"s_add_u32 s{sT}, s{sT}, s{sCnt}"); a(f"s_mul_i32 s{sT}, s{sT}, 640")
        a(f"v_add3_u32 v{d}, s{sT}, v{d}, v{t0}")

    def lbeta(g):
        a = g.a
        a("s_waitcnt lgkmcnt(0)")
        if g.opt.get("chain"): g.stamp(14)
        if g.opt.get("prio", 1): a("s_setprio 0")
        a("s_barrier")

    def vcvt(g):
        a = g.a
        for dst, ex in ((g.VL, f"s_mov_b64 exec, {S(g.mCL,2)}"), (g.VR, "s_not_b64 exec, exec")):
            a(ex)
            for t in range(7):
                for h in range(2): a(f"v_cvt_pk_bf16_f32 v{dst+2+2*t+h}, v{g.AV+4*t+2*h}, v{g.AV+4*t+2*h+1}")
        a("s_mov_b64 exec, -1")

    def cntwait(g, nm, va, vd):
        a = g.a
        a.lab(f"L_cw_{nm}")
        a(f"ds_read_b32 v{vd}, v{va}")
        a("s_waitcnt lgkmcnt(0)")
        a(f"v_cmp_gt_u32 vcc, 4, v{vd}")
        a(f"s_cbranch_vccnz L_cw_{nm}")

    def tr_addr(g, dst, win, base, t0=9, t1=10, hmul=1024):
        a = g.a
        a(f"v_bfe_u32 v{t0}, v0, 3, 2")
        if win != "0": a(f"v_xor_b32 v{t0}, {win}, v{t0}")
        a(f"v_lshlrev_b32 v{t0}, 5, v{t0}")
        a(f"v_and_b32 v{t1}, 3, v0"); a(f"v_lshl_add_u32 v{t0}, v{t1}, 3, v{t0}")
        a(f"v_lshrrev_b32 v{t1}, 2, v0"); a(f"v_lshl_add_u32 v{t0}, v{t1}, 7, v{t0}")
        if hmul == 2048:
            a(f"v_and_b32 v{t1}, 32, v0"); a(f"v_lshl_add_u32 v{t0}, v{t1}, 5, v{t0}")
        a(f"v_add_u32 v{dst}, {base}, v{t0}")

    def poison_max(g, base, n, t, cont=False):
        a = g.a
        k = 0
        if not cont:
            a(f"v_max3_u32 v{t}, v{base}, v{base+1}, v{base+2}"); k = 3
        while k + 1 < n:
            a(f"v_max3_u32 v{t}, v{t}, v{base+k}, v{base+k+1}"); k += 2
        if k < n: a(f"v_max_u32 v{t}, v{t}, v{base+k}")

    def softmax(g):
        a = g.a
        a.lab("L_units")
        A, B, M = 4, 20, 36
        A1, A2, vK = 128, 144, g.vK
        sc = S(sSlot, 2)
        for u in range(4): a(f"ds_read_b64 {V(A2+2*u,2)}, v{vK+2+(u==0)} offset:{3584+u*512}")
        a("s_mov_b32 exec_lo, 0xff0000ff"); a("s_mov_b32 exec_hi, 0")
        for u in range(4): a(f"ds_read_b64 {V(g.B2+2*u,2)}, v{g.vQ2} offset:{u*512}")
        a("s_mov_b32 exec_lo, 0x00ff00ff"); a("s_mov_b32 exec_hi, exec_lo")
        for u in range(4): a(f"ds_read_b64 {V(g.B1+4*u,2)}, v{g.vQ1} offset:{u*512}")
        a("s_not_b64 exec, exec")
        for u in range(4): a(f"ds_read_b64 {V(g.B1+4*u+2,2)}, v{g.vQ1} offset:{u*512}")
        a("s_mov_b64 exec, -1")
        for u in range(4):
            if u == 0: a("s_waitcnt lgkmcnt(8)")
            a(f"v_mfma_f32_16x16x16_bf16 {V(A+4*u,4)}, {V(A2+2*u,2)}, {V(g.B2+2*u,2)}, {V(g.BI0 if u == 0 else g.BI,4)}")
            a(f"ds_read_b64 {V(A1+4*u,2)}, v{vK+(u==0)} offset:{3584+u*512}")
            a(f"ds_read_b64 {V(A1+4*u+2,2)}, v{g.vQ1} offset:{3584+u*512}")
        for u in range(4):
            a(f"s_waitcnt lgkmcnt({6-2*u})")
            a(f"v_mfma_f32_16x16x32_bf16 {V(A+4*u,4)}, {V(A1+4*u,4)}, {V(g.B1+4*u,4)}, {V(A+4*u,4)}")
        g.stamp(8)
        for u in range(4): a(f"v_max3_f32 v{M+u}, v{A+4*u}, v{A+4*u+1}, v{A+4*u+2}")
        for u in range(4): a(f"v_max_f32 v{M+u}, v{M+u}, v{A+4*u+3}")
        def red(op):
            a(f"v_permlane32_swap_b32 v{M}, v{M+1}"); a(f"v_permlane32_swap_b32 v{M+2}, v{M+3}")
            a(f"{op} v{M}, v{M}, v{M+1}"); a(f"{op} v{M+2}, v{M+2}, v{M+3}")
            a(f"v_permlane16_swap_b32 v{M}, v{M+2}")
            a(f"{op} v{M}, v{M}, v{M+2}")
        def bc():
            a(f"v_permlane16_swap_b32 v{M}, v{M+2}")
            a(f"v_mov_b32 v{M+1}, v{M}"); a(f"v_mov_b32 v{M+3}, v{M+2}")
            a(f"v_permlane32_swap_b32 v{M}, v{M+1}"); a(f"v_permlane32_swap_b32 v{M+2}, v{M+3}")
        red("v_max_f32")
        a(f"v_mul_f32 v{M+2}, s{sSlot}, v{M}"); a(f"v_mul_f32 v{M}, s{sSlot}, v{M}")
        bc()
        for k in range(0, 16, 2):
            u = k//4; sel = "op_sel_hi:[1,1,0]" if u % 2 == 0 else "op_sel:[0,0,1] op_sel_hi:[1,1,1]"
            a(f"v_pk_fma_f32 {V(A+k,2)}, {V(A+k,2)}, {sc}, {V(M+(u&2),2)} {sel} neg_lo:[0,0,1] neg_hi:[0,0,1]")
        norm = g.opt.get("norm", 1)
        if norm:
            for k in range(16): a(f"v_exp_f32 v{A+k}, v{A+k}")
            for u in range(4): a(f"v_pk_add_f32 {V(B+2*u,2)}, {V(A+4*u,2)}, {V(A+4*u+2,2)}")
            for u in range(4): a(f"v_add_f32 v{M+u}, v{B+2*u}, v{B+2*u+1}")
            red("v_add_f32")
            a(f"v_rcp_f32 v{M+2}, v{M}"); a(f"v_rcp_f32 v{M}, v{M}")
            bc()
            for u in range(4):
                sel = "op_sel_hi:[1,0]" if u % 2 == 0 else "op_sel:[0,1] op_sel_hi:[1,1]"
                for k in (0, 2): a(f"v_pk_mul_f32 {V(A+4*u+k,2)}, {V(A+4*u+k,2)}, {V(M+(u&2),2)} {sel}")
                for h in range(2): a(f"v_cvt_pk_bf16_f32 v{B+2*u+h}, v{A+4*u+2*h}, v{A+4*u+2*h+1}")
                a(f"ds_write_b64 v{g.vSP}, {V(B+2*u,2)} offset:{u*1024}")
        for u in range(0 if norm else 5):
            if u < 4:
                for k in range(4): a(f"v_exp_f32 v{A+4*u+k}, v{A+4*u+k}")
            if u > 0:
                for h in range(2): a(f"v_cvt_pk_bf16_f32 v{B+2*u-2+h}, v{A+4*u-4+2*h}, v{A+4*u-4+2*h+1}")
                a(f"ds_write_b64 v{g.vSP}, {V(B+2*u-2,2)} offset:{(u-1)*1024}")
        a(f"s_cmp_ge_u32 s{sW}, 4"); a("s_cbranch_scc0 L_cbeta")
        for e in range(12, 20 if not g.opt.get("woc", 0) else 0):
            if e == 12 + g.opt.get("wob", 8): g.lbeta()
            a(f"s_sub_u32 m0, s67, {L_WO - L_WO2 - (e-12)*4096}")
            a(f"s_add_u32 s68, s{22 + e//2 - 6}, {40960*(e&1)}")
            a(f"buffer_load_dwordx4 v43, {R(rWO)}, s68 offen lds")
        if g.opt.get("wob", 8) >= 8: g.lbeta()
        a("s_branch L_lbeta")
        a.lab("L_cbeta")
        g.stamp(7)
        PL, PR = 88, 128
        if g.opt.get("woc", 0):
            assert g.rot == 2
            a("v_lshrrev_b32 v1, 3, v0"); a("v_and_b32 v2, 6, v1"); a("v_xor_b32 v2, v2, v0"); a("v_and_b32 v2, 7, v2")
            a("v_mul_u32_u24 v1, 1280, v1"); a("v_lshl_add_u32 v3, v2, 4, v1")
            for e in range(12, 20):
                a(f"s_add_u32 m0, s76, {L_WO2 + (e-12)*4096}")
                a(f"s_add_u32 s77, s77, 40960")
                a(f"buffer_load_dwordx4 v3, {R(rWO)}, s77 offen lds")
        if g.opt.get("vpos", 1) == 1: g.vcvt()
        if not norm:
            a("v_mov_b32 v1, 0x3f803f80")
            a(f"v_cndmask_b32_e64 v{g.BI}, 0, v1, {S(g.mCL,2)}"); a(f"v_cndmask_b32_e64 v{g.BI0}, v1, 0, {S(g.mCL,2)}")
            for r in (g.BI, g.BI0): a(f"v_mov_b32 v{r+1}, v{r}"); a(f"v_mov_b64 {V(r+2,2)}, {V(r,2)}")
        a(f"v_and_b32 v2, 32, v0"); a(f"v_lshl_add_u32 v{g.vO}, v2, 4, v{g.vL16}")
        a(f"v_add_u32 v1, s{g.sPL}, v{g.vL16}"); a(f"v_add_u32 v2, s{g.sPR}, v{g.vL16}")
        a(f"s_add_u32 s{sT}, s{sJ}, 4096"); a(f"s_add_u32 s68, s{sJ}, {WS_OG}"); a(f"s_add_u32 s69, s{sT}, {WS_OG}")
        a("s_waitcnt lgkmcnt(0)")
        if g.opt.get("chain"): g.stamp(14)
        a("s_barrier")
        g.stamp(9)
        for t in range(7):
            a(f"ds_read_b128 {V(PL+4*t,4)}, v1 offset:{t*1024}")
            a(f"ds_read_b128 {V(PR+4*t,4)}, v2 offset:{t*1024}")
        a(f"s_lshr_b32 s70, s{sW}, 1"); a(f"s_mul_i32 s70, s70, {7168-1024}"); a(f"s_lshl_b32 s{sCnt}, s{sW}, 9"); a(f"s_add_u32 s70, s70, s{sCnt}"); a(f"s_add_u32 s70, s70, {L_OWN}")
        a(f"v_add_u32 v83, s70, v{g.vO}")
        a(f"s_lshl_b32 s70, s{sW}, 2"); a(f"s_add_u32 s70, s70, {L_GF}"); a(f"v_mov_b32 v84, s70")
        OP = 60
        SM = 32
        def post(t):
            j, q = divmod(t, 2)
            o = [f"v_rcp_f32 v{SM+4*t}, v{SM+4*t}"]
            o += [f"v_pk_mul_f32 {V(4+4*t+k,2)}, {V(4+4*t+k,2)}, {V(SM+4*t,2)} op_sel_hi:[1,0]" for k in (0, 2)]
            o += [f"v_cvt_pk_bf16_f32 v{OP+2*t+h}, v{4+4*t+2*h}, v{4+4*t+2*h+1}" for h in range(2)]
            return o[3:] if norm else o
        def out(j):
            o = [f"v_permlane32_swap_b32 v{OP+4*j+h}, v{OP+4*j+2+h}" for h in range(2)]
            if j == 3: o.append("s_mov_b32 exec_hi, 0")
            o.append(f"buffer_store_dwordx4 {V(OP+4*j,4)}, v{g.vO}, {R(rWS)}, s{68 if j < 2 else 69} offen offset:{(j%2)*2048} sc1")
            return o
        q = []
        lag = 3 if norm else 2
        for t in range(7):
            a(f"s_waitcnt lgkmcnt({12-2*t})")
            if norm and t == 5: q += out(0)
            if t >= lag: q += post(t-lag)
            if not norm and t in (4, 6): q += out(t//2 - 2)
            ms = [f"v_mfma_f32_16x16x32_bf16 {V(SM+4*t,4)}, {V(g.BI,4)}, {V(PL+4*t,4)}, 0",
                  f"v_mfma_f32_16x16x32_bf16 {V(SM+4*t,4)}, {V(g.BI0,4)}, {V(PR+4*t,4)}, {V(SM+4*t,4)}",
                  f"v_mfma_f32_16x16x32_bf16 {V(4+4*t,4)}, {V(g.VL+2*t,4)}, {V(PL+4*t,4)}, 0",
                  f"v_mfma_f32_16x16x32_bf16 {V(4+4*t,4)}, {V(g.VR+2*t,4)}, {V(PR+4*t,4)}, {V(4+4*t,4)}"]
            for n, m in enumerate(ms[2:] if norm else ms):
                a(m)
                for _ in range(1 if n == 0 else 2):
                    if q: a(q.pop(0))
        p5, p6 = post(5), post(6)
        if norm: g.emit(q + post(4) + out(1) + p5 + p6 + out(2) + out(3))
        else: g.emit(q + p5[:1] + p6[:1] + p5[1:] + p6[1:3] + out(2) + p6[3:] + out(3))
        g.stamp(10)
        for j in (3, 0, 1, 2):
            a(f"ds_write_b128 v83, {V(OP+4*j,4)} offset:{j*2048}")
            if j == 3: a("s_mov_b32 exec_hi, -1")
        a("s_waitcnt lgkmcnt(0)")
        a("s_barrier")
        g.stamp(5)
        a("s_branch L_cfin")
        a.lab("L_lbeta")
        g.s2_setup(); g.s2_setup2()
        g.stamp(9)

    vA, vB, vE = 224, 232, 236
    sO = 72
    sOut = 82
    def s2_setup2(g):
        a = g.a
        sB5, sR = 82, 83
        a(f"s_sub_u32 s{sB5}, s{sCG}, s{sM0}"); a(f"s_mul_i32 s{sB5}, s{sB5}, 14336")
        a(f"s_add_u32 s{sT}, s{sB5}, {WS_OG}")
        a(f"s_sub_u32 s{sCnt}, {WS_OG+5*14336}, s{sB5}")
        for j in range(10):
            g.gidx(j, sR, g.sCur)
            a(f"s_mul_i32 s{sR}, s{sR}, 14336"); a(f"s_add_u32 s{g.sO+j}, s{sT if j < 5 else sCnt}, s{sR}")
    def gidx(g, j, d, t):
        a = g.a
        if g.rot == 1 or j == 0 or (g.rot == 3 and j >= 5):
            a(f"s_add_u32 s{d}, s{sM0}, {j % 5}"); a(f"s_cmp_ge_u32 s{d}, 5"); a(f"s_cselect_b32 s{t}, 5, 0"); a(f"s_sub_u32 s{d}, s{d}, s{t}")
        elif j < 5: a(f"s_cmp_lt_u32 s{sM0}, {j}"); a(f"s_cselect_b32 s{d}, {j}, {j-1}")
        else: a(f"s_mov_b32 s{d}, {j-5}")
    def s2_setup(g):
        a = g.a
        sLW, sGi = 64, 84
        a(f"s_mul_i32 s{sT}, s{sTB}, {BLK}"); a(f"s_lshl_b32 s{sCnt}, s{sLW}, 11"); a(f"s_add_u32 s{sT}, s{sT}, s{sCnt}")
        a(f"v_add_u32 v{g.vA}, s{sT}, v{g.vL16}")
        a(f"s_cmp_eq_u32 s{sLW}, 3"); a(f"s_cselect_b32 s{sT}, 0x80000000, 0"); a(f"s_add_u32 s{sT}, s{sT}, 1024")
        a(f"v_add_u32 v{g.vA+1}, s{sT}, v{g.vA}")
        for q in range(2): a(f"v_add_u32 v{g.vA+2+q}, 7168, v{g.vA+q}")
        g.tr_addr(g.vB, "0", L_WO, 8, 9, hmul=2048)
        for tau in range(1, 4): a(f"v_xor_b32 v{g.vB+tau}, {32*tau}, v{g.vB}")
        a(f"s_lshl_b32 s{sT}, s{sM0}, 8"); a(f"s_sub_u32 s{sT}, s{g.sFL}, s{sT}")
        a("v_and_b32 v8, 3, v0"); a(f"v_cmp_le_u32 vcc, s{sM0}, v8"); a("v_addc_co_u32 v8, vcc, 0, v8, vcc"); a(f"v_lshl_add_u32 v{g.vA+4}, v8, 8, s{sT}")
        a(";cut")
        a(f"s_mul_i32 s{sT}, s{sLW}, 4608"); a(f"s_add_u32 s{sT}, s{sT}, {L_EP}")
        a("v_and_b32 v8, 15, v0"); a("v_mul_u32_u24 v8, 144, v8"); a("v_lshrrev_b32 v9, 4, v0"); a("v_lshl_add_u32 v8, v9, 3, v8"); a(f"v_add_u32 v{g.vE}, s{sT}, v8")
        a("v_mul_u32_u24 v8, 144, v1"); a("v_lshl_add_u32 v8, v2, 4, v8"); a(f"v_add_u32 v{g.vE+1}, s{sT}, v8")
        a(f"s_mul_i32 s{sT}, s{sLW}, 9216"); a(f"s_add_u32 s{sT}, s{sT}, {L_BB}"); a(f"v_add_u32 v{g.vE+2}, s{sT}, v{g.vL16}")
        a("v_mul_u32_u24 v8, 2560, v1"); a(f"v_lshl_add_u32 v{g.vE+3}, v2, 4, v8")
        a(";cut")
        a(f"s_lshl_b32 s{sGi}, s{sLW}, 5"); a(f"s_add_u32 s{sT}, s{sGi}, s{sI0}")
        a(f"s_lshl1_add_u32 s{sT}, s{sT}, s{sP}"); a(f"s_mul_i32 s{sT}, s{sT}, 1280"); a(f"s_lshl_b32 s{sCnt}, s{sCG}, 7"); a(f"s_add_u32 s{sT}, s{sT}, s{sCnt}")
        a(f"s_cmp_eq_u32 s{sJB}, 4"); a(f"s_cselect_b32 s{sCnt}, 0, 8"); a(f"s_add_u32 s{sCnt}, s{sCnt}, 96")
        a(f"s_sub_u32 s{sGi}, s{sGi}, 8")
        for e in range(4):
            a(f"s_cmp_lt_u32 s{sGi}, s{sCnt}"); a(f"s_cselect_b32 s{g.sOut}, s{sT}, 0x80000000")
            a(f"v_add_u32 v{(229,230,231,250)[e]}, s{g.sOut}, v{g.vE+3}")
            if e < 3: a(f"s_add_u32 s{sGi}, s{sGi}, 8"); a(f"s_add_u32 s{sT}, s{sT}, {8*2560}")

    def stage2(g):
        a = g.a
        a.lab("L_s2")
        D = g.depth
        NA = D + 2; NB = g.opt.get("nb", 8)
        AC, AF = 4, 36
        BF = AF + 8*NA
        assert BF + 16*NB <= 224, (BF, NB)
        vA, vB, vE, sO = g.vA, g.vB, g.vE, g.sO
        af = lambda k, q: AF + 8*(k % NA) + 4*q
        bf = lambda k: BF + 16*(k % NB)
        def aload(k): return [f"buffer_load_dwordx4 {V(af(k,q),4)}, v{vA+2*(k%2)+q}, {R(rWS)}, s{sO+k//2} offen sc1" for q in range(2)]
        def breads(k):
            return [[f"ds_read_b64_tr_b16 {V(bf(k)+4*tau+2*ab,2)}, v{(vB if k < 12 else 242)+tau} offset:{(k % 12)*4096+ab*1024}"] for tau in range(4) for ab in range(2)]
        p0 = g.opt.get("p0", 2); p1 = g.opt.get("p1", 3)
        for k in range(p0): g.emit(breads(k))
        a(f"s_mov_b32 s{sCnt}, 0"); a(f"s_add_u32 s{g.sFL}, s{g.sFL}, 128")
        a(f"s_lshl_b32 s{sT}, s{sW}, 11"); a(f"s_add_u32 s{sT}, s{sT}, {L_OWN-8192}"); a(f"v_add_u32 v3, s{sT}, v{g.vL16}")
        g.stamp(10)
        a("s_barrier")
        for k in range(2):
            for q in range(2): a(f"ds_read_b128 {V(af(k,q),4)}, v3 offset:{k*7168+q*1024}")
        a(f"s_lshl_b32 s{sT}, s{sW}, 2"); a(f"s_add_u32 s{sT}, s{sT}, {L_GF-16}"); a(f"v_mov_b32 v3, s{sT}"); a(f"s_mov_b32 s{g.sCur}, 0")
        a("s_waitcnt lgkmcnt(0)")
        kp = 10 - D - 1
        BBk = 20 - NB
        BBr = bf(BBk)
        assert bf(BBk+1) == BBr + 16
        GG = 240
        pend = []
        for k in range(20):
            tailf = []
            if k == 2:
                for kk in range(p0, p1): g.emit(breads(kk))
                a("s_waitcnt vmcnt(0)")
                a("s_barrier")
                if g.opt.get("prio2", 1): a("s_setprio 1")
                g.stamp(11)
                p2 = g.opt.get("p2", 5)
                for kk in range(p1, p2): g.emit(breads(kk))
                a(f"buffer_load_dword v2, v{vA+4}, {R(rWS)}, 0 offen offset:8 sc1")
                for kk in range(p2, NB): g.emit(breads(kk))
                for tau in range(4): a(f"v_subrev_u32 v{242+tau}, {L_WO-L_WO2}, v{vB+tau}")
                a("s_waitcnt vmcnt(0)")
                a("v_cmp_eq_u32 vcc, 0, v2"); a("s_cbranch_vccz L_ook")
                a.lab("L_opoll")
                a(f"buffer_load_dword v2, v{vA+4}, {R(rWS)}, 0 offen offset:8 sc1")
                a(f"s_add_u32 s{sCnt}, s{sCnt}, 1"); a(f"s_cmp_lt_u32 s{sCnt}, {SPIN}")
                a("s_waitcnt vmcnt(0)")
                a("v_cmp_eq_u32 vcc, 0, v2"); a("s_cbranch_scc0 L_ook"); a("s_cbranch_vccnz L_opoll")
                a.lab("L_ook")
                g.stamp(12)
                for j in range(2, 2+D+1):
                    for x in aload(j): a(x)
                    if j == g.opt.get("gap", 3): g.emit(pend + breads(1+NB)); pend = []
                a("s_waitcnt lgkmcnt(15)")
                a(f"s_load_dword s{g.sCur}, {S(rWS,2)}, s{g.sFL} glc")
                a(f"s_waitcnt vmcnt({2*D})")
                g.stamp(7)
            if k == 2 and kp >= 4: tailf += [[f"s_load_dword s{g.sCur}, {S(rWS,2)}, s{g.sFL} glc"]]
            if k == kp:
                tailf += [[f"s_cmp_ge_u32 s{g.sCur}, 5", "s_cbranch_scc0 L_mb0", "L_mb_ret:"]]
                def t():
                    a.lab("L_mb0")
                    a("s_waitcnt lgkmcnt(0)")
                    a(f"s_cmp_ge_u32 s{g.sCur}, 5"); a("s_cbranch_scc1 L_mb_ret")
                    a.lab("L_mb")
                    a(f"s_load_dword s{g.sCur}, {S(rWS,2)}, s{g.sFL} glc")
                    a(f"s_add_u32 s{sCnt}, s{sCnt}, 1"); a(f"s_cmp_lt_u32 s{sCnt}, {SPIN}")
                    a("s_waitcnt lgkmcnt(0)")
                    a("s_cbranch_scc0 L_mb_ret")
                    a(f"s_cmp_ge_u32 s{g.sCur}, 5"); a("s_cbranch_scc0 L_mb")
                    a("s_branch L_mb_ret")
                g.tail.append(t)
            if k >= 2 and k + D + 1 < 20: tailf += [[x] for x in aload(k+D+1)]
            if 1 <= k and k != 2 and k-1+NB < 20: pend += breads(k-1+NB)
            kb = g.opt.get("kb", 17)
            if k == kb - 2: tailf = [["ds_read_b32 v2, v3"]] + tailf
            if k == kb:
                assert not pend
                a("v_cmp_eq_u32 vcc, 0, v2")
                pend += [[], ["s_cbranch_vccnz L_gf", "L_gf_ret:"]] + [[f"ds_read_b128 {V(BBr+4*j,4)}, v{vE+2} offset:{1024*j}"] for j in range(8)] + [[f"ds_read_b64 v[{GG}:{GG+1}], v{vE+2} offset:8192"]]
                def t():
                    a.lab("L_gf")
                    a("ds_read_b32 v2, v3"); a("s_waitcnt lgkmcnt(0)")
                    a("v_cmp_eq_u32 vcc, 0, v2"); a("s_cbranch_vccz L_gf_ret")
                    a("s_sleep 1"); a("s_branch L_gf")
                g.tail.append(t)
            nrd = g.opt.get("nrd", 6)
            if k < 2: nrd = 0
            rd = pend[:nrd]; pend = pend[nrd:]
            slots = [[] for _ in range(8)]
            for j, grp in enumerate(rd): slots[j if not (k == 18 and g.opt.get("epi", 0)) else min(j, 3)] += grp
            for j, grp in enumerate(tailf): slots[8-len(tailf)+j] += grp
            n = 0
            if k == 19 and g.opt.get("epi", 0): break
            for q in range(2):
                if k == 18 and q == 1 and g.opt.get("epi", 0): break
                for tau in range(4):
                    acc = V(AC+16*q+4*tau, 4)
                    a(f"v_mfma_f32_16x16x32_bf16 {acc}, {V(bf(k)+4*tau,4)}, {V(af(k,q),4)}, {'0' if k == 0 else acc}")
                    for x in slots[n]:
                        if x.endswith(":"): a.lab(x[:-1])
                        else: a(x)
                    n += 1
            if g.opt.get("kst"):
                if k > 0: a(f"v_writelane_b32 v253, s{(26, 0)[(k-1) % 2]}, {32 + k - 1}")
                a(f"s_memtime {('s[26:27]', 's[0:1]')[k % 2]}")
            if 2 <= k < 19:
                a(f"s_waitcnt vmcnt({2*min(D, 18-k)})" + (f" lgkmcnt({len([x for x in rd if x and x[0].startswith('ds_')])})" if k + 1 >= NB else ""))
        assert not pend
        def epi(q):
            sel = "op_sel_hi:[1,0,1]" if q == 0 else "op_sel:[0,1,0] op_sel_hi:[1,1,1]"
            o = []
            for tau in range(4):
                b = BBr + 16*q + 4*tau
                o += [f"v_pk_fma_f32 {V(b+k,2)}, {V(AC+16*q+4*tau+k,2)}, {V(GG,2)}, {V(b+k,2)} {sel}" for k in (0, 2)]
                o += [f"v_cvt_pk_bf16_f32 v{b+h}, v{b+2*h}, v{b+2*h+1}" for h in range(2)]
                o += [f"ds_write_b64 v{vE}, {V(b,2)} offset:{q*2304+32*tau}"]
            o += [f"ds_read_b128 {V(af(16,0)+8*q+4*e,4)}, v{vE+1} offset:{q*2304+e*8*144}" for e in range(2)]
            return o
        mm = lambda k, q, tau: f"v_mfma_f32_16x16x32_bf16 {V(AC+16*q+4*tau,4)}, {V(bf(k)+4*tau,4)}, {V(af(k,q),4)}, {V(AC+16*q+4*tau,4)}"
        o = epi(0)
        if g.opt.get("epi", 0):
            for tau in range(4): a(mm(19, 0, tau))
            for n in range(8):
                a(mm(18 + n//4, 1, n % 4))
                if n == 2: a("s_waitcnt lgkmcnt(0)")
                if n >= 3:
                    for _ in range(2 if n < 7 else 0): a(o.pop(0))
        else: a("s_waitcnt lgkmcnt(0)")
        g.stamp(13)
        g.emit(o + epi(1))
        assert af(17, 0) == af(16, 0) + 8
        for e in range(4):
            a(f"s_waitcnt lgkmcnt({(7,6,1,0)[e]})")
            a(f"buffer_store_dwordx4 {V(af(16,0)+4*e,4)}, v{(229,230,231,250)[e]}, {R(rOUT)}, 0 offen {g.opt.get('outfl','')}")
        if not g.opt.get("chain"): g.stamp(14)
        if g.stamps:
            a("s_waitcnt vmcnt(0)"); g.stamp(15)
            a(f"v_writelane_b32 v253, s{sCnt}, 29")
        if g.opt.get("amp"):
            r = g.sreg(g.opt.get("ampk", 15))
            a("s_waitcnt lgkmcnt(0)")
            a(f"s_sub_u32 s60, s{r}, s86"); a(f"s_mul_i32 s60, s60, {g.opt['amp']}")
            a.lab("L_amp")
            a("s_sleep 2"); a("s_memtime s[62:63]"); a("s_waitcnt lgkmcnt(0)")
            a("s_sub_u32 s61, s62, s86"); a("s_cmp_lt_u32 s61, s60"); a("s_cbranch_scc1 L_amp")
        g.dump_stamps(16)
        a("s_endpgm")

    def argmax(g, v, sKey, sTmp):
        a = g.a
        a("v_cmp_gt_u32 vcc, 56, v0")
        a(f"v_cndmask_b32_e64 v{v}, 0, v{v}, vcc")
        for d in ("quad_perm:[1,0,3,2]", "quad_perm:[2,3,0,1]", "row_half_mirror", "row_mirror"):
            a(f"v_max_u32_dpp v{v}, v{v}, v{v} {d} row_mask:0xf bank_mask:0xf")
        a(f"v_readlane_b32 s{sKey}, v{v}, 0"); a(f"v_readlane_b32 s{sTmp}, v{v}, 16")
        a(f"s_max_u32 s{sKey}, s{sKey}, s{sTmp}")
        a(f"v_readlane_b32 s{sTmp}, v{v}, 32"); a(f"s_max_u32 s{sKey}, s{sKey}, s{sTmp}")
        a(f"v_readlane_b32 s{sTmp}, v{v}, 48"); a(f"s_max_u32 s{sKey}, s{sKey}, s{sTmp}")
    def keyidx(g, sKey, sIdx):
        g.a(f"s_andn2_b32 s{sIdx}, 0x7ff, s{sKey}")

    def bf16r(g, r):
        g.a(f"v_cvt_pk_bf16_f32 v{r}, v{r}, v{r}"); g.a(f"v_and_b32 v{r}, 0xffff0000, v{r}")
    def sigmoid(g, d, s):
        a = g.a
        a(f"v_mul_f32 v{d}, {f32(-math.log2(math.e))}, v{s}")
        a(f"v_exp_f32 v{d}, v{d}")
        a(f"v_add_f32 v{d}, 1.0, v{d}")
        a(f"v_rcp_f32 v{d}, v{d}")

    def cfin(g):
        a = g.a
        a.lab("L_cfin")
        sKey, sD = g.sKey, g.sD
        Y, BB = 128, 88
        a(f"s_cmp_eq_u32 s{g.sKey}, 0"); a("s_cbranch_scc1 L_keypoll")
        a.lab("L_keyok")
        def t():
            a.lab("L_keypoll")
            a(f"v_mov_b32 v1, {0*4}"); a(f"s_mov_b32 s{sCnt}, 0")
            a.lab("L_keypoll2")
            a(f"buffer_load_dword v2, v1, {R(rDBG)}, 0 offen sc1")
            a(f"s_add_u32 s{sCnt}, s{sCnt}, 1")
            a("s_waitcnt vmcnt(0)")
            a(f"v_readfirstlane_b32 s{g.sKey}, v2")
            a(f"s_cmp_lt_u32 s{sCnt}, {SPIN}"); a("s_cbranch_scc0 L_keyok")
            a(f"s_cmp_eq_u32 s{g.sKey}, 0"); a("s_cbranch_scc0 L_keyok")
            a("s_sleep 4"); a("s_branch L_keypoll2")
        g.tail.append(t)
        a("v_and_b32 v77, 15, v0"); a("v_lshlrev_b32 v1, 2, v77")
        a(f"s_lshl_b32 s{g.sD}, s{sW}, 5"); a(f"s_add_u32 s{g.sD}, s{g.sD}, s{sI0}")
        a(f"s_lshl_b32 s67, s{sP}, 10"); a(f"s_add_u32 s67, s67, s{g.sD}"); a(f"s_lshl_b32 s67, s67, 2"); a(f"s_add_u32 s67, s67, {WS_G}")
        for q in range(2):
            a(f"v_add3_u32 v2, s{g.sD}, v77, {16*q}"); a("v_and_b32 v2, 0x400, v2"); a(f"v_lshl_or_b32 v{78+q}, v2, 21, v1")
            a(f"buffer_load_dword v{86+q}, v{78+q}, {R(rWS)}, s67 offen offset:{64*q} sc1")
        a("s_mov_b32 s71, s68")
        a("v_min_u32 v82, 27, v0"); a("v_and_b32 v2, 28, v82"); a("v_add_u32 v82, v82, v2"); a("v_lshlrev_b32 v82, 7, v82")
        a(f"s_and_b32 s{sT}, s2, 1"); a(f"s_xor_b32 s{sT}, s{sT}, 1"); a(f"s_mul_i32 s{sT}, s{sT}, 1280"); a(f"s_mul_i32 s68, s{sTB}, {BLK}"); a(f"s_add_u32 s68, s68, s{sT}")
        a(f"s_add_u32 s68, s68, s{rWS}"); a(f"s_addc_u32 s69, s{rWS+1}, 0"); a("s_mov_b32 s70, 1")
        a(f"s_cmp_eq_u32 s{sW}, 0")
        a("s_waitcnt vmcnt(2)")
        if g.opt.get("self", 0): a(f"buffer_load_dword v76, v82, {R(rWS)}, s71 offen sc1")
        if not g.opt.get("chain"): g.stamp(13)
        a("s_barrier")
        g.stamp(12)
        a("s_cbranch_scc0 L_nosig2")
        g.flagstore("o", g.sFL, 8, wait=False)
        a.lab("L_nosig2")
        a(f"s_cmp_eq_u32 s{sW}, 1"); a("s_cbranch_scc0 L_nosig3")
        for j in range(5): a(f"s_atomic_add s70, s[68:69], {WS_FL+128+256*j}")
        a.lab("L_nosig3")
        g.keyidx(g.sKey, 65)
        a(f"s_lshr_b32 s{sT}, s65, 1"); a(f"s_sub_u32 s{g.sD}, s{sT}, s{g.sD}")
        a(f"s_and_b32 s{sT}, s65, 1"); a(f"s_cmp_eq_u32 s{sT}, s{sP}"); a(f"s_cselect_b32 s{g.sD}, s{g.sD}, 64")
        for k in range(16):
            a(f"v_lshlrev_b32 v{BB+2*k}, 16, v{g.XR+k}")
            a(f"v_and_b32 v{BB+2*k+1}, 0xffff0000, v{g.XR+k}")
        a(f"s_mov_b32 s{sCnt}, 0")
        a("s_waitcnt vmcnt(0)")
        a.lab("L_gchk")
        a("v_max_u32 v2, v86, v87"); a(f"v_cmp_eq_u32 vcc, {POISON}, v2"); a("s_cbranch_vccnz L_gpoll")
        a.lab("L_gok")
        a(f"s_mul_i32 s{sT}, s{sW}, 9216"); a(f"s_add_u32 s{sT}, s{sT}, {L_BB}"); a(f"v_add_u32 v85, s{sT}, v{g.vL16}")
        a("v_sub_f32 v2, 1.0, v86"); a("v_sub_f32 v3, 1.0, v87")
        a("ds_write_b64 v85, v[86:87] offset:8192")
        for k in range(32): a(f"v_mul_f32 v{BB+k}, v{2+k//16}, v{BB+k}")
        if g.opt.get("pert1"):
            a(f"s_lshl3_add_u32 s{sT}, s2, s{sW}"); a(f"s_cmp_eq_u32 s{sT}, {40*8+1}"); a("s_cselect_b64 exec, 1, 0")
            a(f"v_add_f32 v{BB}, {f32(g.opt['pert1'])}, v{BB}"); a("s_mov_b64 exec, -1")
        if g.opt.get("pertall"):
            for k in range(32): a(f"v_add_f32 v{BB+k}, {f32(g.opt['pertall'])}, v{BB+k}")
        a(f"s_cmp_lt_u32 s{sD}, 32"); a("s_cbranch_scc1 L_y")
        a.lab("L_yret")
        for j in range(8): a(f"ds_write_b128 v85, {V(BB+4*j,4)} offset:{1024*j}")
        a("ds_write_b32 v84, v84")
        g.stamp(11)
        a("s_waitcnt lgkmcnt(0)")
        g.dump_stamps(15)
        a("s_endpgm")
        a.lab("L_gpoll")
        for q in range(2): a(f"buffer_load_dword v{86+q}, v{78+q}, {R(rWS)}, s67 offen offset:{64*q} sc1")
        a(f"s_add_u32 s{sCnt}, s{sCnt}, 1"); a(f"s_cmp_lt_u32 s{sCnt}, {SPIN}")
        a("s_waitcnt vmcnt(0)")
        a("s_cbranch_scc1 L_gchk")
        a("s_branch L_gok")
        a.lab("L_y")
        a("v_and_b32 v1, 48, v0"); a(f"s_lshl_b32 s{sT}, s{sCG}, 8"); a(f"s_add_u32 s{sT}, s{sT}, {WS_Y2}")
        a(f"s_mov_b32 s{sCnt}, 0")
        a.lab("L_ypoll")
        for tau in range(4): a(f"buffer_load_dwordx4 {V(Y+8+4*tau,4)}, v1, {R(rWS)}, s{sT} offen offset:{64*tau} sc1")
        a(f"s_add_u32 s{sCnt}, s{sCnt}, 1"); a(f"s_cmp_lt_u32 s{sCnt}, {SPIN}")
        a("s_waitcnt vmcnt(0)")
        g.poison_max(Y+8, 16, 6)
        a(f"v_cmp_eq_u32 vcc, {POISON}, v6")
        a("s_cbranch_scc0 L_yok"); a("s_cbranch_vccz L_yok"); a("s_sleep 3"); a("s_branch L_ypoll")
        a.lab("L_yok")
        a(f"s_and_b32 s{sT}, s{sD}, 15"); a(f"v_cmp_eq_u32 vcc, s{sT}, v77")
        a(f"s_cmp_lt_u32 s{sD}, 16")
        a("s_mov_b64 exec, vcc")
        a("s_cbranch_scc0 L_y1")
        for q in range(2):
            if q: a.lab("L_y1")
            for k in range(16): a(f"v_fmac_f32 v{BB+16*q+k}, v{2+q}, v{Y+8+k}")
            a("s_mov_b64 exec, -1")
            a("s_branch L_yret")

    def aux(g):
        a = g.a
        a.lab("L_aux")
        if g.opt.get("noaux"): a("s_endpgm")
        sA, sF, sHalf, sTmp, sU0 = 56, 57, 58, 59, 60
        r1, r2, rD = 64, 68, 72
        rWR, rGW = 76, 80
        rC = 64
        A_D = 81920
        A_WR, A_GW = 122880, 124928
        A_XS = 126976
        A_PRE = 129024
        A_MAX = 129536
        NCLR = 1
        a(f"s_sub_u32 s{sA}, s{sJ}, 25")
        a(f"s_lshr_b32 s{sF}, s{sA}, 1"); a(f"s_lshl3_add_u32 s{sF}, s{sF}, s{sX}")
        a(f"s_and_b32 s{sT}, s{sA}, 1"); a(f"s_lshl1_add_u32 s{sF}, s{sF}, s{sT}")
        a(f"s_add_u32 s{sT}, s{sX}, 48"); a(f"s_cmp_eq_u32 s{sA}, 6"); a(f"s_cselect_b32 s{sF}, s{sT}, s{sF}")
        a("v_lshrrev_b32 v1, 3, v0"); a("v_and_b32 v2, 7, v0")
        a(f"s_cmp_ge_u32 s{sW}, 5"); a("s_cbranch_scc1 L_aux_hi")
        a(f"s_lshr_b32 s{sU0}, s{sX}, 2"); a(f"s_and_b32 s{sT}, s{sX}, 1"); a(f"s_lshl1_add_u32 s{sU0}, s{sU0}, s{sT}")
        a(f"s_mul_i32 s{sTmp}, s{sA}, 5"); a(f"s_add_u32 s{sTmp}, s{sTmp}, s{sW}")
        a(f"s_lshl_b32 s{sU0}, s{sU0}, 8"); a(f"s_lshl3_add_u32 s{sU0}, s{sTmp}, s{sU0}")
        a(f"v_add_u32 v3, s{sU0}, v1")
        a(f"v_lshl_add_u32 v4, v3, 1, s{sP}")
        a("v_mul_u32_u24 v5, 1280, v4"); a("v_lshl_add_u32 v5, v2, 4, v5")
        a(f"s_cmp_lt_u32 s{sTmp}, 32"); a(f"s_cselect_b32 s{sT}, 0, 0x80000000")
        a(f"v_or_b32 v5, s{sT}, v5")
        g.ptrs()
        XD, WD = 8, 48
        for n in range(10):
            c = (n + g.opt.get("ax0", 0)) % 10
            a(f"buffer_load_dwordx4 {V(XD+4*c,4)}, v5, {R(rX)}, 0 offen offset:{128*c}")
            if n % 2 == 1 and n < 9: a("s_barrier")
        g.ptrs2()
        a(f"v_mov_b32 v136, {63*4}")
        a("v_lshlrev_b32 v6, 4, v2")
        a(f"v_add_u32 v6, {A_WR}, v6")
        a("s_barrier")
        a(f"v_mov_b32 v7, {A_MAX}")
        a(f"s_cmp_lt_u32 s{sTmp}, 32"); a("s_cbranch_scc1 L_aux_rg")
        a(f"s_mov_b64 {S(rC,2)}, {S(rWS,2)}"); g.srd_consts(rC, WS_Y + 54*2560)
        for k in range(4): a(f"v_mov_b32 v{132+k}, {POISON}")
        a(f"s_mul_i32 s{sT}, s{sX}, 3"); a(f"s_add_u32 s{sT}, s{sT}, s{sW}"); a(f"s_mul_i32 s{sT}, s{sT}, {6*1024}"); a(f"s_add_u32 s{sT}, s{sT}, {WS_Y-2*6*1024}")
        a(f"v_lshl_add_u32 v5, v0, 4, s{sT}"); a("v_add_u32 v6, 3072, v5")
        for k in range(6): a(f"buffer_store_dwordx4 v[132:135], v{5+k//3}, {R(rC)}, 0 offen offset:{1024*(k%3)} sc1")
        a("v_mov_b32 v137, 0")
        a("s_branch L_aux_rgdone")
        a.lab("L_aux_rg")
        a(f"buffer_load_dword v137, v136, {R(rDBG)}, 0 offen sc1")
        g.stamp(6)
        for c in range(10):
            a(f"ds_read_b128 {V(WD+8*c,4)}, v6 offset:{128*c}")
            a(f"ds_read_b128 {V(WD+8*c+4,4)}, v6 offset:{2048+128*c}")
        for k in range(4): a(f"v_mov_b32 v{128+k}, 0")
        a(f"s_waitcnt vmcnt(1) lgkmcnt(0)")
        for c in range(10):
            for k in range(4):
                a(f"v_dot2c_f32_bf16 v{128+(k&1)}, v{XD+4*c+k}, v{WD+8*c+k}")
                a(f"v_dot2c_f32_bf16 v{130+(k&1)}, v{XD+4*c+k}, v{WD+8*c+4+k}")
        a("v_add_f32 v128, v128, v129"); a("v_add_f32 v130, v130, v131")
        for d in ("quad_perm:[1,0,3,2]", "quad_perm:[2,3,0,1]", "row_half_mirror"):
            a(f"v_add_f32_dpp v128, v128, v128 {d} row_mask:0xf bank_mask:0xf")
            a(f"v_add_f32_dpp v130, v130, v130 {d} row_mask:0xf bank_mask:0xf")
        g.bf16r(130); g.sigmoid(130, 130); g.bf16r(130)
        g.bf16r(128)
        a("v_ashrrev_i32 v129, 31, v128"); a("v_or_b32 v129, 0x80000000, v129"); a("v_xor_b32 v128, v128, v129")
        a("v_and_b32 v128, 0xffff0000, v128"); a("v_sub_u32 v129, 0xffff, v4"); a("v_or_b32 v128, v128, v129")
        a.lab("L_aux_rgdone")
        a(f"s_lshl_b32 s{sT}, s{sP}, 12"); a(f"s_add_u32 s{sT}, s{sT}, {WS_G}")
        a("v_lshlrev_b32 v3, 2, v3")
        a(f"s_mov_b32 s{sCnt}, 0")
        a("s_waitcnt vmcnt(0)")
        a.lab("L_aux_init")
        a("v_cmp_eq_u32 vcc, 0, v137"); a("s_cbranch_vccz L_aux_initok")
        a(f"buffer_load_dword v137, v136, {R(rDBG)}, 0 offen sc1")
        a(f"s_add_u32 s{sCnt}, s{sCnt}, 1"); a(f"s_cmp_lt_u32 s{sCnt}, {SPIN}")
        a("s_waitcnt vmcnt(0)")
        a("s_cbranch_scc1 L_aux_init")
        a.lab("L_aux_initok")
        a(f"s_cmp_lt_u32 s{sTmp}, 32"); a("s_cbranch_scc0 L_aux_norg")
        a("s_mov_b32 exec_lo, 0x01010101"); a("s_mov_b32 exec_hi, 0x01010101")
        a("ds_max_u32 v7, v128")
        a(f"buffer_store_dword v130, v3, {R(rWS)}, s{sT} offen sc1")
        a.lab("L_aux_norg")
        a.lab("L_aux_arr")
        a("s_mov_b64 exec, 1")
        a("v_mov_b32 v129, 1")
        a("s_waitcnt lgkmcnt(0)")
        a("ds_add_rtn_u32 v131, v7, v129 offset:4")
        a("ds_read_b32 v128, v7")
        a(f"s_lshl3_add_u32 s{sT}, s{sA}, s{sX}"); a(f"s_lshl_b32 s{sT}, s{sT}, 7"); a(f"s_add_u32 s{sT}, s{sT}, {WS_F}")
        a("s_waitcnt lgkmcnt(0)")
        a("v_cmp_eq_u32 vcc, 4, v131"); a(f"v_readfirstlane_b32 s{sCnt}, v128"); a("s_cbranch_vccz L_aux_nopub")
        a(f"s_atomic_add s{sCnt}, {S(rWS,2)}, s{sT}")
        a("s_waitcnt lgkmcnt(0)")
        a.lab("L_aux_nopub")
        a("s_mov_b64 exec, -1")
        g.stamp(1)
        a(f"s_cmp_ge_u32 s{sF}, 54"); a("s_cbranch_scc1 L_aux_end")
        a(f"s_cmp_eq_u32 s{sW}, 4"); a("s_cbranch_scc0 L_aux_f1")
        a(f"s_lshl_b32 s{sT}, s{sF}, 7"); a(f"s_add_u32 s{sT}, s{sT}, {WS_K}")
        a(f"s_mov_b32 s{sCnt}, 0")
        a.lab("L_aux_key")
        a(f"s_load_dword s84, {S(rWS,2)}, s{sT} glc")
        a(f"s_add_u32 s{sCnt}, s{sCnt}, 1")
        a("s_waitcnt lgkmcnt(0)")
        a(f"s_cmp_lt_u32 s{sCnt}, {SPIN}"); a("s_cselect_b32 s84, s84, 1")
        a("s_cmp_eq_u32 s84, 0"); a("s_cbranch_scc1 L_aux_key")
        g.keyidx(84, 85)
        a("s_mul_i32 s85, s85, 1280")
        a("v_lshl_add_u32 v1, v0, 4, s85")
        a(f"s_mov_b32 m0, {A_XS}")
        a(f"buffer_load_dwordx4 v1, {R(rX)}, 0 offen lds")
        a(f"buffer_load_dwordx4 v1, {R(rX)}, 0 offen offset:1024 lds")
        g.stamp(2)
        a("v_mov_b32 v2, s84")
        a("s_waitcnt vmcnt(0)")
        a("ds_write_b32 v7, v2 offset:8")
        a("s_waitcnt lgkmcnt(0)")
        a("s_barrier")
        a("s_branch L_aux_f2")
        a.lab("L_aux_hi")
        sV = 84
        a(f"s_sub_u32 s{sV}, s{sW}, 5")
        a(f"s_cmp_eq_u32 s{sV}, 0"); a("s_cbranch_scc0 L_aux_w67")
        a("v_mul_u32_u24 v3, 4370, v0"); a("v_lshrrev_b32 v3, 16, v3")
        a("v_mul_u32_u24 v4, 15, v3"); a("v_sub_u32 v4, v0, v4")
        a("v_mul_u32_u24 v5, 52, v4"); a("v_lshrrev_b32 v5, 8, v5")
        a("v_mul_u32_u24 v5, 640, v5"); a("v_lshl_add_u32 v5, v4, 7, v5")
        a(f"v_mul_u32_u24 v3, {4*3840}, v3")
        a(f"s_lshr_b32 s{sT}, s{sX}, 1"); a(f"s_lshl4_add_u32 s{sT}, s{sA}, s{sT}"); a(f"s_mul_i32 s{sT}, s{sT}, 6"); a(f"s_and_b32 s{sTmp}, s{sX}, 1")
        a(f"s_add_u32 s{sT}, s{sT}, s{sTmp}"); a(f"s_mul_i32 s{sT}, s{sT}, 640")
        a(f"v_add3_u32 v5, s{sT}, v5, v3")
        a("v_cmp_gt_u32 vcc, 60, v0"); a("v_bfrev_b32 v6, 1"); a("v_cndmask_b32_e64 v5, v6, v5, vcc")
        g.ptrs()
        mb = g.opt.get("mb", 0)
        m0_ = g.opt.get("aw0", 0)
        for n in range(6):
            nn = n - g.opt.get("awd", 0)
            if nn >= 0 and m0_ + 7*nn < 40:
                a(f"s_mov_b32 s{sT}, {(m0_ + 7*nn)*16*3840}")
                a(f"buffer_load_dword v{10+n}, v5, {R(rW)}, s{sT} offen")
            if n >= 1: a("s_barrier")
        g.ptrs2()
        a("s_branch L_aux_hi2")
        a.lab("L_aux_w67")
        a("v_lshlrev_b32 v6, 4, v0")
        a(f"v_mov_b32 v7, {A_MAX}"); a("v_mov_b32 v8, 0"); a("v_mov_b32 v9, 0")
        a("ds_write_b64 v7, v[8:9]"); a("ds_write_b64 v7, v[8:9] offset:8")
        for r in (rWR, rGW): g.srd_consts(r, 1280)
        if g.opt.get("codepf", 0):
            a(f"s_sub_u32 s{sTmp}, s{sA}, 2"); a(f"s_cmp_ge_u32 s{sTmp}, 4"); a("s_cbranch_scc1 L_aux_nocpf"); a(f"s_cmp_eq_u32 s{sV}, 2"); a("s_cbranch_scc0 L_aux_nocpf")
            a("s_getpc_b64 s[88:89]" if not g.stamps else "s_getpc_b64 s[98:99]")
            pc = 88 if not g.stamps else 98
            a.lab("L_pc")
            a(f"s_sub_u32 s{pc}, s{pc}, L_pc-{KN}_kernel"); a(f"s_subb_u32 s{pc+1}, s{pc+1}, 0")
            a(f"s_lshl_b32 s{sT}, s{sTmp}, 13")
            a(f"v_lshl_add_u32 v3, v0, 7, s{sT}")
            a(f"v_min_u32 v3, L_end-{KN}_kernel, v3")
            a(f"global_load_dword v10, v3, s[{pc}:{pc+1}]")
            a.lab("L_aux_nocpf")
        g.ptrs(); g.ptrs2()
        a(f"s_mov_b64 {S(rWR,2)}, s[12:13]"); a(f"s_mov_b64 {S(rGW,2)}, s[20:21]")
        a(f"s_cmp_eq_u32 s{sV}, 1"); a("s_cbranch_scc0 L_aux_w7")
        a(f"s_mov_b32 m0, {A_WR}")
        a(f"buffer_load_dwordx4 v6, {R(rWR)}, 0 offen lds"); a(f"buffer_load_dwordx4 v6, {R(rWR)}, 0 offen offset:1024 lds")
        a(f"s_mov_b32 m0, {A_GW}")
        a(f"buffer_load_dwordx4 v6, {R(rGW)}, 0 offen lds"); a(f"buffer_load_dwordx4 v6, {R(rGW)}, 0 offen offset:1024 lds")
        a.lab("L_aux_w7")
        a("v_lshlrev_b32 v3, 7, v0")
        a(f"s_lshl3_add_u32 s{sTmp}, s2, s{sW}"); a(f"s_cmp_eq_u32 s{sTmp}, {255*8+7}"); a("s_cbranch_scc0 L_aux_nn0")
        for k in range(4): a(f"v_mov_b32 v{12+k}, {POISON}")
        for off in (WS_AR, WS_F, WS_K):
            a(f"s_mov_b32 s{sT}, {off}"); a(f"buffer_store_dword v8, v3, {R(rWS)}, s{sT} offen sc1")
        for k in range(11):
            if k % 4 == 0: a(f"s_mov_b32 s{sT}, {WS_G+1024*k}")
            a(f"buffer_store_dwordx4 v[12:15], v6, {R(rWS)}, s{sT} offen offset:{1024*(k%4)} sc1")
        a.lab("L_aux_nn0")
        a("s_barrier")
        a(f"s_cmp_eq_u32 s{sTmp}, {255*8+7}"); a("s_cbranch_scc0 L_aux_nn1")
        a("s_waitcnt vmcnt(0)")
        a(f"s_mov_b32 s85, 1"); a(f"s_atomic_add s85, {S(rDBG,2)}, {63*4}")
        g.stamp(1)
        a.lab("L_aux_nn1")
        for c in range(3): a("s_barrier")
        a("s_waitcnt vmcnt(0)")
        a("s_barrier")
        a("v_min_u32 v4, 59, v0"); a("v_mul_u32_u24 v5, 52, v4"); a("v_lshrrev_b32 v5, 8, v5"); a(f"v_mul_u32_u24 v5, {4*1280-640}, v5"); a("v_lshl_add_u32 v4, v4, 7, v5")
        a(f"s_lshl1_add_u32 s{sT}, s{sA}, s{sV}"); a(f"s_sub_u32 s{sT}, s{sT}, 1"); a(f"s_mul_i32 s{sT}, s{sT}, 96"); a(f"s_add_u32 s{sT}, s{sT}, s{sX}"); a(f"s_mul_i32 s{sT}, s{sT}, 640")
        a(f"v_add_u32 v4, s{sT}, v4")
        if g.opt.get("wot", 2) == 0:
            a(f"s_lshl3_add_u32 s{sT}, s{sA}, s{sX}"); a(f"s_lshl1_add_u32 s{sT}, s{sT}, s{sV}"); a(f"s_sub_u32 s{sT}, s{sT}, 1"); a(f"s_lshl_b32 s{sT}, s{sT}, 13"); a(f"v_add_u32 v4, s{sT}, v3")
        if g.opt.get("wot", 2) < 2: a(f"buffer_load_dword v10, v4, {R(rWO)}, 0 offen")
        a(f"s_cmp_eq_u32 s{sTmp}, {255*8+7}"); a("s_cbranch_scc0 L_aux_hi2")
        a(f"s_mov_b32 s{sCnt}, 0"); a(f"s_mov_b32 s{sT}, {WS_F}")
        a.lab("L_aux_col")
        a(f"buffer_load_dword v11, v3, {R(rWS)}, s{sT} offen sc1")
        a(f"s_add_u32 s{sCnt}, s{sCnt}, 1")
        a("s_waitcnt vmcnt(0)")
        a("v_cmp_eq_u32 vcc, 0, v11")
        a("s_and_b32 vcc_hi, vcc_hi, 0x00ffffff")
        a(f"s_cmp_lt_u32 s{sCnt}, {SPIN}"); a("s_cselect_b64 vcc, vcc, 0")
        a("s_cmp_eq_u64 vcc, 0"); a("s_cbranch_scc0 L_aux_col")
        g.argmax(11, sCnt, sT)
        a(f"v_mov_b32 v11, s{sCnt}"); a(f"s_mov_b32 s{sT}, {WS_K}")
        a(f"buffer_store_dword v11, v3, {R(rWS)}, s{sT} offen sc1")
        a(f"s_atomic_add s{sCnt}, {S(rDBG,2)}, {0*4}")
        a("s_waitcnt lgkmcnt(0)")
        a.lab("L_aux_hi2")
        a("v_mov_b32 v11, v4")
        l2 = g.opt.get("l2", 0)
        if l2:
            g.wtouch_addr(12, 13, 14)
            a(f"s_bfe_u32 s{sT}, s2, 0x20001"); a(f"s_add_u32 s{sCnt}, s{sT}, s{sV}"); a(f"s_add_u32 s{sCnt}, s{sCnt}, 1"); a(f"s_and_b32 s{sCnt}, s{sCnt}, 3")
            a(f"s_sub_u32 s{sT}, s{sCnt}, s{sT}"); a(f"s_lshl4_add_u32 s{sT}, s{sA}, s{sT}"); a(f"s_add_u32 s{sT}, s{sT}, {64*l2}"); a(f"s_mul_i32 s{sT}, s{sT}, 3840")
            a(f"v_add_u32 v14, s{sT}, v14"); a("v_cmp_gt_u32 vcc, 60, v0"); a("v_bfrev_b32 v12, 1"); a("v_cndmask_b32_e64 v14, v12, v14, vcc")
            a(f"s_and_b32 s{sT}, s{sX}, 5"); a(f"s_xor_b32 s{sT}, s{sT}, 1"); a(f"s_lshr_b32 s{sCnt}, s{sT}, 2"); a(f"s_and_b32 s{sT}, s{sT}, 1"); a(f"s_lshl1_add_u32 s{sT}, s{sCnt}, s{sT}")
            a(f"s_lshl_b32 s{sT}, s{sT}, 9"); a(f"s_add_u32 s{sT}, s{sT}, s{sP}"); a(f"s_mul_i32 s{sT}, s{sT}, 1280")
            a("v_mul_u32_u24 v15, 2560, v0"); a(f"v_add_u32 v15, s{sT}, v15")
            def xt(n):
                if 21*n >= 4*(10-l2): return
                sk = g.lab("xt")
                a(f"s_mul_i32 s{sCnt}, s{sA}, 3"); a(f"s_add_u32 s{sCnt}, s{sCnt}, s{sV}"); a(f"s_add_u32 s{sCnt}, s{sCnt}, {21*n + 4*l2}")
                a(f"s_cmp_lt_u32 s{sCnt}, 40"); a(f"s_cbranch_scc0 {sk}")
                a(f"s_and_b32 s{sT}, s{sCnt}, 3"); a(f"s_mul_i32 s{sT}, s{sT}, {64*2560}"); a(f"s_lshr_b32 s{sCnt}, s{sCnt}, 2"); a(f"s_lshl_b32 s{sCnt}, s{sCnt}, 7"); a(f"s_add_u32 s{sT}, s{sT}, s{sCnt}")
                a(f"buffer_load_dword v10, v15, {R(rX)}, s{sT} offen")
                a.lab(sk)
                a("s_waitcnt vmcnt(1)")
            for n in range(-(-(40 - 4*l2) // 7)):
                a(f"buffer_load_dword v10, v14, {R(rW)}, 0 offen")
                a(f"v_add_u32 v14, {7*16*3840}, v14")
                a("s_waitcnt vmcnt(1)")
                if n in (0, 2): xt(n // 2)
        def inbox():
            a("v_lshlrev_b32 v6, 7, v0")
            a(f"s_mul_i32 s{sCnt}, s{sA}, 3"); a(f"s_sub_u32 s{sCnt}, s{sV}, s{sCnt}"); a(f"s_add_u32 s{sCnt}, s{sCnt}, 18")
            lp = g.lab("ib"); a.lab(lp)
            a(f"s_mul_i32 s{sT}, s{sCnt}, 57"); a(f"s_lshr_b32 s{sT}, s{sT}, 9")
            a(f"s_mul_i32 s{sTmp}, s{sT}, {BLK-9*8192}"); a(f"s_lshl_b32 s{sT}, s{sCnt}, 13"); a(f"s_add_u32 s{sTmp}, s{sTmp}, s{sT}")
            a(f"s_lshr_b32 s{sT}, s{sX}, 1"); a(f"s_mul_i32 s{sT}, s{sT}, {5*BLK}"); a(f"s_add_u32 s{sTmp}, s{sTmp}, s{sT}")
            a(f"s_and_b32 s{sT}, s{sX}, 1"); a(f"s_mul_i32 s{sT}, s{sT}, 71680"); a(f"s_add_u32 s{sTmp}, s{sTmp}, s{sT}")
            a(f"buffer_load_dword v10, v6, {R(rWS)}, s{sTmp} offen sc1")
            a("s_waitcnt vmcnt(1)")
            a(f"s_add_u32 s{sCnt}, s{sCnt}, 21"); a(f"s_cmp_lt_u32 s{sCnt}, 45"); a(f"s_cbranch_scc1 {lp}")
        if g.opt.get("ibm", 1):
            def inbox():
                a(f"s_mul_i32 s{sCnt}, s{sA}, 3"); a(f"s_add_u32 s{sCnt}, s{sCnt}, s{sV}")
                lp = g.lab("ib"); a.lab(lp)
                a(f"s_and_b32 s{sT}, s{sCnt}, 7"); a(f"s_add_u32 s{sT}, s{sT}, 1")
                a(f"s_lshr_b32 s{sTmp}, s{sT}, 1"); a(f"s_sub_u32 s{sTmp}, s{sTmp}, 4")
                a("v_and_b32 v6, 3, v0"); a(f"v_add_u32 v6, s{sTmp}, v6"); a(f"s_lshl_b32 s{sTmp}, s{sT}, 31"); a(f"v_xor_b32 v6, s{sTmp}, v6"); a("v_and_b32 v6, 0x80000000, v6")
                a("v_min_u32 v7, 55, v0"); a("v_lshl_or_b32 v6, v7, 7, v6")
                a(f"s_mul_i32 s{sTmp}, s{sT}, 7168"); a(f"s_lshr_b32 s{sT}, s{sCnt}, 3"); a(f"s_mul_i32 s{sT}, s{sT}, {BLK}"); a(f"s_add_u32 s{sTmp}, s{sTmp}, s{sT}")
                a(f"s_lshr_b32 s{sT}, s{sX}, 1"); a(f"s_mul_i32 s{sT}, s{sT}, {5*BLK}"); a(f"s_add_u32 s{sTmp}, s{sTmp}, s{sT}")
                a(f"s_and_b32 s{sT}, s{sX}, 1"); a(f"s_mul_i32 s{sT}, s{sT}, 71680"); a(f"s_add_u32 s{sTmp}, s{sTmp}, s{sT}")
                a(f"buffer_load_dword v10, v6, {R(rWS)}, s{sTmp} offen sc1")
                a(f"s_add_u32 s{sCnt}, s{sCnt}, 21"); a(f"s_cmp_lt_u32 s{sCnt}, 40"); a(f"s_cbranch_scc1 {lp}")
        ib = g.opt.get("ib", 2)
        if ib == 1: inbox()
        if ib == 2:
            a(f"s_cmp_ge_u32 s{sF}, 54"); a("s_cbranch_scc0 L_aux_hi3")
            inbox()
            a.lab("L_aux_hi3")
        a(f"s_cmp_ge_u32 s{sF}, 54"); a("s_cbranch_scc1 L_aux_end")
        if g.opt.get("fdelay"): a(f"s_sleep {g.opt['fdelay']}")
        a(f"s_and_b32 s{sHalf}, s{sF}, 1")
        for r in (r1, r2, rD): g.srd_consts(r, 640*3456)
        a(f"s_cmp_eq_u32 s{sHalf}, 0")
        a(f"s_cselect_b64 {S(r1,2)}, s[14:15], s[16:17]"); a(f"s_cselect_b64 {S(r2,2)}, s[16:17], s[14:15]")
        a(f"s_mov_b64 {S(rD,2)}, s[18:19]")
        a("v_lshrrev_b32 v3, 2, v0"); a("v_mul_u32_u24 v3, 3456, v3")
        a("v_and_b32 v4, 2, v1"); a("v_and_b32 v5, 3, v0"); a("v_xor_b32 v4, v4, v5")
        a("v_lshl_add_u32 v3, v4, 4, v3")
        a(f"s_lshl_b32 s{sT}, s{sF}, 6"); a(f"v_add_u32 v3, s{sT}, v3")
        if g.opt.get("noffn"):
            for r in (r1, r2, rD): a(f"s_mov_b32 s{r+2}, 0")
        for mi, rr in enumerate((r1, r2)):
            lp = g.lab("fm")
            a(f"s_xor_b32 s{sT}, s{sHalf}, {mi}"); a(f"s_mul_i32 s{sTmp}, s{sT}, 40960")
            a(f"s_mov_b32 s{sCnt}, s{sV}")
            a.lab(lp)
            a(f"s_lshl_b32 s{sT}, s{sCnt}, 10"); a(f"s_add_u32 m0, s{sT}, s{sTmp}")
            a(f"s_mul_i32 s{sT}, s{sCnt}, {16*3456}")
            a(f"buffer_load_dwordx4 v3, {R(rr)}, s{sT} offen {g.opt.get('ffl','')} lds")
            a(f"s_waitcnt vmcnt({g.opt.get('fthr', 5)})")
            a(f"s_add_u32 s{sCnt}, s{sCnt}, 3"); a(f"s_cmp_lt_u32 s{sCnt}, 40"); a(f"s_cbranch_scc1 {lp}")
            if ib == 2 and mi == 0: inbox()
            if g.opt.get("wol2", 0) == mi + 1:
                a("v_min_u32 v12, 59, v0"); a("v_mul_u32_u24 v13, 52, v12"); a("v_lshrrev_b32 v13, 8, v13"); a("v_mul_u32_u24 v13, 640, v13"); a("v_lshl_add_u32 v12, v12, 7, v13")
                a(f"s_mul_i32 s{sT}, s{sA}, 3"); a(f"s_add_u32 s{sT}, s{sT}, s{sV}"); a(f"s_mul_i32 s{sT}, s{sT}, 24"); a(f"s_and_b32 s{sCnt}, s{sX}, 1"); a(f"s_add_u32 s{sT}, s{sT}, s{sCnt}"); a(f"s_mul_i32 s{sT}, s{sT}, 640")
                a(f"v_add_u32 v12, s{sT}, v12")
                for n in range(3):
                    a(f"buffer_load_dword v10, v12, {R(rWO)}, 0 offen"); a(f"v_add_u32 v12, {21*12*1280}, v12"); a("s_waitcnt vmcnt(1)")
            if g.opt.get("wot", 2) == 2 and mi == 0:
                a(f"s_cmp_eq_u32 s{sV}, 0"); a("s_cbranch_scc1 L_aux_nwo"); a(f"buffer_load_dword v10, v11, {R(rWO)}, 0 offen"); a.lab("L_aux_nwo")
        a("v_and_b32 v4, 6, v1"); a("v_xor_b32 v4, v4, v2"); a("v_lshlrev_b32 v4, 4, v4")
        a("v_mul_u32_u24 v5, 1280, v1")
        a(f"s_mul_i32 s{sT}, s{sF}, {32*1280}"); a(f"v_add3_u32 v4, s{sT}, v4, v5")
        a(f"s_mov_b32 s{sCnt}, s{sV}")
        def dn(lim):
            lp = g.lab("fd")
            a.lab(lp)
            a(f"s_lshl_b32 s{sT}, s{sCnt}, 10"); a(f"s_add_u32 m0, s{sT}, {A_D}")
            a(f"s_and_b32 s{sT}, s{sCnt}, 3"); a(f"s_mul_i32 s{sT}, s{sT}, {8*1280}"); a(f"s_lshr_b32 s{sTmp}, s{sCnt}, 2"); a(f"s_lshl_b32 s{sTmp}, s{sTmp}, 7"); a(f"s_add_u32 s{sT}, s{sT}, s{sTmp}")
            a(f"buffer_load_dwordx4 v4, {R(rD)}, s{sT} offen lds")
            a(f"s_add_u32 s{sCnt}, s{sCnt}, 3"); a(f"s_cmp_lt_u32 s{sCnt}, {lim}"); a(f"s_cbranch_scc1 {lp}")
        dn(40)
        a("s_waitcnt vmcnt(13)")
        g.stamp(2)
        a("s_barrier")
        a("s_waitcnt vmcnt(0)")
        a("s_branch L_aux_f2")
        a.lab("L_aux_f1")
        a(f"s_and_b32 s{sT}, s{sW}, 1")
        a("v_bfe_u32 v1, v0, 4, 1"); a(f"v_xor_b32 v1, s{sT}, v1"); a("v_lshlrev_b32 v1, 5, v1")
        a("v_and_b32 v2, 3, v0"); a("v_lshl_add_u32 v1, v2, 3, v1")
        a("v_lshrrev_b32 v2, 2, v0"); a("v_lshl_add_u32 v1, v2, 6, v1")
        a(f"s_lshr_b32 s{sT}, s{sW}, 1"); a(f"s_mul_i32 s{sT}, s{sT}, 40960"); a(f"v_add_u32 v1, s{sT}, v1")
        a("v_lshrrev_b32 v2, 4, v0"); a("v_lshlrev_b32 v2, 3, v2"); a(f"v_add_u32 v2, {A_XS}, v2")
        a.lab("L_aux_xs")
        a("s_sleep 2")
        a("ds_read_b32 v3, v7 offset:8"); a("s_waitcnt lgkmcnt(0)")
        a("v_cmp_eq_u32 vcc, 0, v3"); a("s_cbranch_vccnz L_aux_xs")
        for ks in range(20): a(f"ds_read2_b64 {V(12+8*ks,4)}, v2 offset0:{8*ks} offset1:{8*ks+4}")
        a("s_barrier")
        g.stamp(3)
        for ks in range(26):
            if ks < 20:
                a(f"ds_read_b64_tr_b16 {V(8+8*ks,2)}, v1 offset:{ks*2048}")
                a(f"ds_read_b64_tr_b16 {V(10+8*ks,2)}, v1 offset:{ks*2048+1024}")
            if ks >= 6:
                a(f"s_waitcnt lgkmcnt({2*min(6, 25-ks)})")
                a(f"v_mfma_f32_16x16x32_bf16 v[4:7], {V(8+8*(ks-6),4)}, {V(12+8*(ks-6),4)}, {'0' if ks == 6 else 'v[4:7]'}")
        a(f"s_lshl_b32 s{sT}, s{sW}, 6"); a(f"s_add_u32 s{sT}, s{sT}, {A_PRE}")
        a("v_and_b32 v3, 48, v0"); a(f"v_add_u32 v3, s{sT}, v3")
        a("ds_write_b128 v3, v[4:7]")
        a("s_waitcnt lgkmcnt(0)")
        a.lab("L_aux_f2")
        a(f"s_and_b32 s{sT}, s{sW}, 3")
        g.tr_addr(1, f"s{sT}", A_D, 9, 10)
        a(f"s_lshr_b32 s{sTmp}, s{sW}, 2"); a(f"s_mul_i32 s{sCnt}, s{sTmp}, {5*4096}"); a(f"v_add_u32 v1, s{sCnt}, v1")
        a("v_and_b32 v3, 48, v0"); a(f"v_add_u32 v2, {A_PRE}, v3")
        a("v_and_b32 v4, 15, v0"); a("v_lshl_add_u32 v5, v4, 8, v3")
        a(f"s_mul_i32 s{sCnt}, s{sF}, 2560"); a(f"s_mul_i32 s{sTmp}, s{sTmp}, 1280"); a(f"s_add_u32 s{sCnt}, s{sCnt}, s{sTmp}")
        a(f"s_lshl_b32 s{sT}, s{sT}, 6"); a(f"s_add_u32 s{sCnt}, s{sCnt}, s{sT}"); a(f"s_add_u32 s{sCnt}, s{sCnt}, {WS_Y}")
        a("s_barrier")
        g.stamp(4)
        for k in range(4): a(f"ds_read_b128 {V(8+4*k,4)}, v2 offset:{64*k}")
        for e in range(5):
            for ab in range(2): a(f"ds_read_b64_tr_b16 {V(40+4*e+2*ab,2)}, v1 offset:{e*4096+ab*2048}")
        a("s_waitcnt lgkmcnt(10)")
        for k in range(8): a(f"v_mul_f32 v{24+k}, {f32(-math.log2(math.e))}, v{8+k}")
        for k in range(8): a(f"v_exp_f32 v{24+k}, v{24+k}")
        for k in range(8): a(f"v_mul_f32 v{8+k}, v{8+k}, v{16+k}")
        for k in range(8): a(f"v_add_f32 v{24+k}, 1.0, v{24+k}")
        for k in range(8): a(f"v_rcp_f32 v{24+k}, v{24+k}")
        for k in range(8): a(f"v_mul_f32 v{24+k}, v{24+k}, v{8+k}")
        for k in range(4): a(f"v_cvt_pk_bf16_f32 v{32+k}, v{24+2*k}, v{25+2*k}")
        a("s_waitcnt lgkmcnt(0)")
        for e in range(5): a(f"v_mfma_f32_16x16x32_bf16 {V(64+4*e,4)}, {V(40+4*e,4)}, v[32:35], 0")
        for e in range(1, 5):
            a(f"v_cmp_eq_u32 vcc, {e}, v4")
            for k in range(4): a(f"v_cndmask_b32_e64 v{64+k}, v{64+k}, v{64+4*e+k}, vcc")
        a("s_mov_b32 exec_lo, 0x001f001f"); a("s_mov_b32 exec_hi, 0x001f001f")
        a(f"buffer_store_dwordx4 v[64:67], v5, {R(rWS)}, s{sCnt} offen sc1")
        a("s_mov_b64 exec, -1")
        g.stamp(5)
        a(f"s_sub_u32 s{sF}, s{sF}, 32"); a(f"s_cmp_lt_u32 s{sF}, 10"); a("s_cbranch_scc0 L_aux_end")
        Y = 72
        a("v_lshrrev_b32 v1, 4, v0"); a(f"s_lshl_b32 s{sT}, s{sW}, 3"); a(f"v_add_u32 v1, s{sT}, v1")
        a("v_mul_u32_u24 v2, 2560, v1"); a("v_lshl_add_u32 v2, v4, 4, v2")
        a(f"s_lshl_b32 s{sT}, s{sF}, 8"); a(f"s_add_u32 s{sT}, s{sT}, {WS_Y}"); a(f"v_add_u32 v2, s{sT}, v2"); a(f"v_add_u32 v3, {4*2560}, v2")
        a(f"s_mov_b64 {S(rC,2)}, {S(rWS,2)}"); g.srd_consts(rC, WS_Y + 54*2560)
        a(f"s_lshl_b32 s{sT}, s{sW}, 10"); a(f"v_lshl_add_u32 v7, v0, 4, s{sT}")
        a(f"s_mov_b32 s{sCnt}, 0")
        a.lab("L_yr")
        for e in range(2): a(f"buffer_load_dwordx4 {V(Y+4*e,4)}, v{2+e}, {R(rC)}, 0 offen sc1")
        a(f"s_add_u32 s{sCnt}, s{sCnt}, 1"); a(f"s_cmp_lt_u32 s{sCnt}, {SPIN}")
        a("s_waitcnt vmcnt(0)")
        g.poison_max(Y, 8, 6)
        a(f"v_cmp_eq_u32 vcc, {POISON}, v6")
        a("s_cbranch_scc0 L_yrok"); a("s_cbranch_vccnz L_yr")
        a.lab("L_yrok")
        for k in (0, 2): a(f"v_pk_add_f32 {V(Y+k,2)}, {V(Y+k,2)}, {V(Y+4+k,2)}")
        a(f"ds_write_b128 v7, {V(Y,4)}")
        a(f"s_and_b32 s{sT}, s84, 0xffff0000"); a("s_cmp_lt_i32 s84, 0")
        a(f"s_cselect_b32 s{sCnt}, 0, 0x7fff0000")
        a(f"s_xor_b32 s{sT}, s{sT}, s{sCnt}"); a(f"s_xor_b32 s{sT}, s{sT}, 0x80000000")
        a(f"v_mov_b32 v5, s{sT}")
        g.sigmoid(5, 5); g.bf16r(5)
        a("v_lshlrev_b32 v1, 4, v0")
        a(f"s_lshl_b32 s{sT}, s{sF}, 8"); a(f"s_add_u32 s{sT}, s{sT}, {WS_Y2}")
        a(f"s_cmp_eq_u32 s{sW}, 4")
        a("s_waitcnt lgkmcnt(0)")
        a("s_barrier")
        a("s_cbranch_scc0 L_aux_end")
        for e in range(7): a(f"ds_read_b128 {V(Y+4*e,4)}, v1 offset:{1024*e}")
        for e in range(1, 7):
            a(f"s_waitcnt lgkmcnt({6-e})")
            for k in (0, 2): a(f"v_pk_add_f32 {V(Y+k,2)}, {V(Y+k,2)}, {V(Y+4*e+k,2)}")
        for pl in ("16", "32"):
            for k in range(4): a(f"v_mov_b32 v{Y+4+k}, v{Y+k}")
            for k in range(4): a(f"v_permlane{pl}_swap_b32 v{Y+k}, v{Y+4+k}")
            for k in range(4): a(f"v_add_f32 v{Y+k}, v{Y+k}, v{Y+4+k}")
        for k in range(4):
            g.bf16r(Y+k); a(f"v_mul_f32 v{Y+k}, v{Y+k}, v5"); g.bf16r(Y+k)
        a("s_mov_b64 exec, 0xffff")
        a(f"buffer_store_dwordx4 {V(Y,4)}, v1, {R(rWS)}, s{sT} offen sc1")
        a("s_mov_b64 exec, -1")
        g.stamp(7)
        a.lab("L_aux_end")
        g.dump_stamps(8)

    def flush_tail(g):
        for t in g.tail: t()
        g.tail = []

    def build(g):
        g.prologue(); g.lwave(); g.flush_tail(); g.cwave(); g.softmax(); g.stage2(); g.cfin(); g.flush_tail(); g.aux()
        g.a.lab("L_end")
        g.a("s_endpgm")
        body = g.a.finish()
        if g.opt.get('align', 1): body, g.npro, g.nnop = align8(body, KN + '_kernel')
        hdr = open(f"cdna_kernels/{KN}.s.ref").read().split("; Override launch")[0]
        k = KN + "_kernel"
        return hdr + f"""; @launch grid=(256,1,1) block=(512,1,1) lds={LDS_BYTES}
.amdgcn_target "amdgcn-amd-amdhsa--gfx950"
.text
.globl {k}
.p2align 8
.type {k},@function
{k}:
{body}
.section .rodata,"a"
.p2align 6
.amdhsa_kernel {k}
  .amdhsa_next_free_vgpr 256
  .amdhsa_next_free_sgpr 102
  .amdhsa_accum_offset 256
  .amdhsa_group_segment_fixed_size 0
  .amdhsa_kernarg_size 96
  .amdhsa_user_sgpr_count 2
  .amdhsa_user_sgpr_kernarg_segment_ptr 1
  .amdhsa_system_sgpr_workgroup_id_x 1
  .amdhsa_float_denorm_mode_32 3
.end_amdhsa_kernel
"""

if __name__ == "__main__":
    out = sys.argv[1] if len(sys.argv) > 1 else "k2.s"
    kw = {}
    for x in sys.argv[2:]:
        k, v = x.split("="); kw[k] = eval(v)
    g = Gen(**kw)
    open(out, "w").write(g.build())
    print("wrote", out, "pads", g.a.npad, "promoted/nops", getattr(g, "npro", 0), getattr(g, "nnop", 0))
```

```python
import sys, struct, math, re
sys.path.insert(0, "work")
from asmlib import Asm, align8

KN = "gated_mix__sliding_local_dilated__moe_arch_mod__prompt"
def f32(x): return "0x%08x" % struct.unpack("<I", struct.pack("<f", x))[0]

import os
BLK = int(os.environ.get('BLK', 290816))
WS_OG = 143360
WS_FL = 2*143360
WS_Y = 20*BLK
WS_G = WS_Y + 139264
WS_Y2 = WS_G + 8192
WS_F = WS_G + 16384
WS_K = WS_F + 8192
WS_AR = WS_K + 8192
WS_T = 16 << 20
WS_SIZE = 20 << 20
SLOT = 38912
WOFF = 14336
L_WO = 81920
L_QK = 38912
L_WO2 = 0
L_P = L_WO + 12*4096
L_EP = L_P
L_CNT = L_P + 28672
L_GF = L_CNT + 16
L_OWN = 38912
L_BB = 38912
LDS_BYTES = 163840
POISON = -1
SPIN = 30000
CSC = f32(20**-0.5 * math.log2(math.e))

rX, rW, rWO, rWS, rDBG, rOUT = 28, 32, 36, 40, 44, 48
sW, sX, sJ, sP, sM0, sJB, sCG, sTB, sI0, sCnt, sSlot, sT = 52, 53, 54, 55, 56, 57, 58, 59, 60, 61, 62, 63
def S(n, k=1): return f"s{n}" if k == 1 else f"s[{n}:{n+k-1}]"
def V(n, k=1): return f"v{n}" if k == 1 else f"v[{n}:{n+k-1}]"
def R(n): return S(n, 4)

class Gen:
    def __init__(g, stamps=False, look=8, rot=2, depth=5, **kw):
        g.a = Asm(); g.stamps = stamps; g.look = look; g.rot = rot; g.depth = depth
        g.opt = kw
        g.nlab = 0
        g.tail = []
    def lab(g, base): g.nlab += 1; return f"L_{base}_{g.nlab}"
    def sreg(g, k): return 86 + 2*k if k < 8 else 4 + 2*(k-8)
    def stamp(g, k):
        if g.stamps and (g.stamps is True or k in g.stamps or k == 0): g.a(f"{'s_memrealtime' if g.opt.get('rt') else 's_memtime'} {S(g.sreg(k),2)}")
    def dump_stamps(g, nst):
        if not g.stamps: return
        a = g.a
        a("s_memrealtime s[62:63]")
        a("s_waitcnt lgkmcnt(0)")
        a("v_mov_b32 v1, v253")
        for k in range(nst): a(f"v_writelane_b32 v1, s{g.sreg(k)}, {k}")
        a("v_writelane_b32 v1, s3, 30")
        a("v_writelane_b32 v1, s62, 31")
        a(f"s_lshl_b32 s62, s2, 3"); a(f"s_add_u32 s62, s62, s{sW}"); a("s_lshl_b32 s62, s62, 8"); a(f"s_add_u32 s62, s62, {WS_T}")
        a("v_lshlrev_b32 v2, 2, v0")
        a(f"buffer_store_dword v1, v2, {R(rWS)}, s62 offen")
    def srd_consts(g, r, size):
        g.a(f"s_mov_b32 s{r+2}, {size}"); g.a(f"s_mov_b32 s{r+3}, 0x20000")

    def prologue(g):
        a = g.a
        a("s_load_dwordx16 s[4:19], s[0:1], 0")
        a("s_load_dwordx8 s[20:27], s[0:1], 64")
        if g.stamps:
            a("s_memrealtime s[100:101]")
            g.stamp(0)
        if g.opt.get("cpf0", 1):
            a("s_getpc_b64 s[52:53]")
            a.lab("L_pc0")
            a("s_and_b32 s61, s2, 0xf8")
            a("v_min_u32 v1, 7, v0"); a("v_add_lshl_u32 v1, v1, s61, 7")
            a(f"v_min_u32 v1, L_end-L_pc0, v1")
            a("v_cmp_gt_u32 vcc, 64, v0"); a("s_cbranch_vccz L_nocpf0")
            a("global_load_dword v247, v1, s[52:53]")
            a.lab("L_nocpf0")
        a("v_lshrrev_b32 v1, 6, v0")
        a("s_cmp_ge_u32 s2, 256")
        a("s_cbranch_scc1 L_end")
        a(f"v_readfirstlane_b32 s{sW}, v1")
        a("v_and_b32 v0, 63, v0")
        a(f"s_and_b32 s{sX}, s2, 7")
        a(f"s_lshr_b32 s{sJ}, s2, 3")
        g.srd_consts(rX, 2048*1280); g.srd_consts(rW, 640*3840)
        a(f"s_bfe_u32 s{sP}, s2, 0x10001")
        a(f"s_cmp_ge_u32 s{sJ}, 25")
        a("s_cbranch_scc1 L_aux")
        a(f"s_mul_i32 s{sM0}, s{sJ}, 52"); a(f"s_lshr_b32 s{sM0}, s{sM0}, 8")
        a(f"s_mul_i32 s{sJB}, s{sM0}, 5"); a(f"s_sub_u32 s{sJB}, s{sJ}, s{sJB}")
        a(f"s_and_b32 s{sCG}, s2, 1"); a(f"s_mul_i32 s{sCG}, s{sCG}, 5"); a(f"s_add_u32 s{sCG}, s{sCG}, s{sM0}")
        a(f"s_lshr_b32 s{sTB}, s{sX}, 1"); a(f"s_mul_i32 s{sTB}, s{sTB}, 5"); a(f"s_add_u32 s{sTB}, s{sTB}, s{sJB}")
        a(f"s_and_b32 s{sI0}, s{sX}, 4"); a(f"s_lshl_b32 s{sI0}, s{sI0}, 7")
        a(f"s_mul_i32 s{sCnt}, s{sJB}, 104"); a(f"s_add_u32 s{sI0}, s{sI0}, s{sCnt}"); a(f"s_sub_u32 s{sI0}, s{sI0}, 8")
        a(f"s_cmp_lt_u32 s{sW}, 4")
        a("s_cbranch_scc1 L_cwave")

    def ptrs(g):
        a = g.a
        a("s_waitcnt lgkmcnt(0)")
        a(f"s_mov_b64 {S(rX,2)}, s[4:5]"); a(f"s_mov_b64 {S(rW,2)}, s[6:7]")
        if g.stamps: a("s_mov_b32 s3, s100")
    def ptrs2(g):
        a = g.a
        a(f"s_mov_b64 {S(rWO,2)}, s[8:9]"); a(f"s_mov_b64 {S(rWS,2)}, s[26:27]")
        a(f"s_mov_b64 {S(rDBG,2)}, s[24:25]"); a(f"s_mov_b64 {S(rOUT,2)}, s[22:23]")
        g.srd_consts(rWO, 640*1280); g.srd_consts(rWS, WS_SIZE); g.srd_consts(rDBG, 256); g.srd_consts(rOUT, 2048*1280)

    XR = 224
    vXR = 3
    vSP = 254
    vL16 = 255
    sFL, sCur, sAr, sLoc = 20, 21, 0, 53

    def xres_addr(g):
        a = g.a
        a("v_bfe_u32 v8, v0, 1, 3"); a("v_lshrrev_b32 v9, 5, v0"); a("v_xor_b32 v9, v9, v8"); a("v_lshlrev_b32 v9, 4, v9")
        a("v_bfe_u32 v10, v0, 4, 1"); a("v_lshl_add_u32 v9, v10, 3, v9"); a("v_and_b32 v10, 15, v0"); a("v_lshl_add_u32 v9, v10, 7, v9")
        a(f"s_mul_i32 s{sCnt}, s{sCG}, 86"); a(f"s_lshr_b32 s{sCnt}, s{sCnt}, 8"); a(f"s_mul_i32 s{sCnt}, s{sCnt}, 3"); a(f"s_sub_u32 s{sCnt}, s{sCG}, s{sCnt}")
        a(f"s_sub_u32 s{sSlot}, 3, s{sCnt}"); a(f"s_cmp_eq_u32 s{sCnt}, 0"); a(f"s_cselect_b32 s{sSlot}, 0, s{sSlot}"); a(f"s_mul_i32 s{sSlot}, s{sSlot}, {SLOT}")
        a(f"s_lshl_b32 s{sT}, s{sW}, 12"); a(f"s_add_u32 s{sT}, s{sT}, s{sSlot}")
        a(f"v_add_u32 v{g.vXR}, s{sT}, v9")
    def xres_read(g):
        a = g.a
        for tau, x in ((0, 0), (1, 32), (3, 64), (2, 32)):
            if tau: a(f"v_xor_b32 v{g.vXR}, {x}, v{g.vXR}")
            for q in range(2): a(f"ds_read_b64 {V(g.XR+8*q+2*tau,2)}, v{g.vXR} offset:{2048*q}")
    BI, BI0 = 240, 244
    B1, B2 = 200, 216
    vQ1, vQ2 = 251, 252
    def unit_setup(g, sA):
        a = g.a
        a(f"s_and_b32 s{sCnt}, s{sW}, 1"); a(f"s_mul_i32 s{sCnt}, s{sCnt}, 1536")
        a(f"s_mul_i32 s{sT}, s{sA}, 7168"); a(f"s_lshl1_add_u32 s{sT}, s{sCnt}, s{sT}"); a(f"s_add_u32 s{sT}, s{sT}, {L_P+8}")
        a(f"v_lshlrev_b32 v{g.vL16}, 4, v0")
        a("v_lshrrev_b32 v8, 2, v0"); a("v_bfi_b32 v8, v0, 0, v8"); a("v_and_b32 v8, 8, v8")
        a(f"v_sub_u32 v8, v{g.vL16}, v8"); a(f"v_add_u32 v{g.vSP}, s{sT}, v8")
        a(f"s_mul_i32 s{sT}, s{sA}, 5"); a(f"s_sub_u32 s{sT}, s{sT}, s{sM0}"); a(f"s_add_u32 s{sT}, s{sT}, 4")
        a(f"s_add_u32 s{sCnt}, s{sCnt}, {L_QK}")
        a("v_and_b32 v9, 15, v0"); a(f"v_lshl_add_u32 v10, v9, 3, s{sCnt}")
        a("v_lshrrev_b32 v11, 4, v0"); a(f"v_add_u32 v8, s{sT}, v11")
        a(f"v_lshl_add_u32 v{g.vQ1}, v8, 7, v10"); a("v_lshrrev_b32 v8, 2, v8"); a(f"v_mul_u32_u24 v8, {7168-512}, v8"); a(f"v_add_u32 v{g.vQ1}, v{g.vQ1}, v8")
        a(f"s_add_u32 s{sT}, s{sT}, 4"); a(f"s_lshr_b32 s{sSlot}, s{sT}, 2"); a(f"s_mul_i32 s{sSlot}, s{sSlot}, {7168-512}"); a(f"s_lshl_b32 s{sT}, s{sT}, 7"); a(f"s_add_u32 s{sT}, s{sT}, s{sSlot}")
        a(f"v_add_u32 v{g.vQ2}, s{sT}, v10")
        a(";cut")
        a("v_lshlrev_b32 v8, 2, v11"); a("v_sub_u32 v9, v9, v8")
        a(f"v_mov_b32 v11, {f32(-1e30)}")
        for r in range(4):
            a(f"v_subrev_u32 v10, {r}, v9"); a("v_and_b32 v10, 8, v10")
            a("v_cmp_eq_u32 vcc, 0, v10")
            a(f"v_cndmask_b32_e64 v{g.BI+r}, v11, v10, vcc")
        a(f"s_cmp_lt_i32 s{sI0}, 0"); a(f"s_cselect_b32 s{sT}, 32, 0"); a(f"s_bitcmp1_b32 s{sW}, 0"); a(f"s_cselect_b32 s{sT}, 0, s{sT}")
        a(f"v_cmp_gt_u32 vcc, s{sT}, v0")
        for r in range(4): a(f"v_cndmask_b32_e64 v{g.BI0+r}, v{g.BI+r}, v11, vcc")
    vK = 120
    def unit_late(g):
        v = g.vK
        return [f"v_and_b32 v{v}, 8, v0", f"v_lshlrev_b32 v{v}, 6, v{v}",
                f"v_lshlrev_b32 v{v+2}, 5, v0", f"v_bfi_b32 v{v+2}, v{v+2}, 0, v{v}",
                f"s_bitcmp1_b32 s{sW}, 0", f"s_cselect_b32 s{sT}, -1, 0",
                f"v_and_b32 v{v+1}, s{sT}, v{v}", f"v_and_b32 v{v+3}, s{sT}, v{v+2}",
                f"v_sub_u32 v{v}, v{g.vQ1}, v{v}", f"v_sub_u32 v{v+1}, v{g.vQ1}, v{v+1}",
                f"v_sub_u32 v{v+2}, v{g.vQ2}, v{v+2}", f"v_sub_u32 v{v+3}, v{g.vQ2}, v{v+3}",
                f"v_mov_b32 v{v+4}, {L_CNT}", f"v_mov_b32 v{v+6}, 1",
                f"s_mov_b32 s{sSlot}, {CSC}", f"s_mov_b32 s{sT}, {CSC}"]
    def fl_addr(g):
        a = g.a
        a(f"s_mul_i32 s{g.sFL}, s{sTB}, {BLK//256}"); a(f"s_add_u32 s{g.sFL}, s{g.sFL}, s{sCG}"); a(f"s_lshl_b32 s{g.sFL}, s{g.sFL}, 8"); a(f"s_add_u32 s{g.sFL}, s{g.sFL}, {WS_FL}")
    def arr_load(g): return [f"s_lshl_b32 s{g.sLoc}, s{sTB}, 8", f"s_add_u32 s{g.sLoc}, s{g.sLoc}, {WS_AR}", f"s_load_dword s{g.sAr}, {S(rWS,2)}, s{g.sLoc}",
                             f"s_add_u32 s{g.sCur}, s{g.sLoc}, 128", f"s_load_dword s{g.sAr+1}, {S(rWS,2)}, s{g.sCur}"]
    def arr_check(g, nm, t0, t1, va, vd):
        a = g.a
        ops = [[f"L_ac_{nm}:", f"s_add_u32 s{t0}, s{g.sAr}, s{g.sAr+1}", f"s_lshr_b32 s{t1}, s{t0}, 4", f"s_and_b32 s{t1}, s{t1}, 0x0f0f0f0f"],
               [f"s_and_b32 s{t0}, s{t0}, 0x0f0f0f0f", f"s_add_u32 s{t0}, s{t0}, s{t1}", f"s_mul_i32 s{t0}, s{t0}, 0x01010101"],
               [f"s_lshr_b32 s{t0}, s{t0}, 24", f"s_cmp_ge_u32 s{t0}, 10", f"s_cbranch_scc0 L_ar_{nm}", f"L_ao_{nm}:"],
               ["s_bitcmp1_b32 s2, 0", f"s_cselect_b32 s{t0}, s{g.sAr+1}, s{g.sAr}", f"s_getreg_b32 s{t1}, hwreg(HW_REG_XCC_ID, 0, 3)"],
               [f"s_lshl_b32 s{t1}, s{t1}, 2", f"s_lshr_b32 s{t0}, s{t0}, s{t1}"],
               [f"s_cmp_eq_u32 s{t0}, 5", f"s_cselect_b32 s{g.sLoc}, {0 if g.opt.get('nolocal') else 1}, 0"]]
        if g.opt.get("noarr"): return [[f"s_mov_b32 s{g.sLoc}, 1"]]
        def t():
            a.lab(f"L_ar_{nm}")
            a(f"s_mov_b32 s{g.sCur}, 0"); a(f"v_mov_b32 v{va}, s{g.sLoc}")
            a.lab(f"L_ar2_{nm}")
            a("s_sleep 4")
            a(f"buffer_load_dword v{vd}, v{va}, {R(rWS)}, 0 offen sc1"); a(f"buffer_load_dword v{vd+1}, v{va}, {R(rWS)}, 0 offen offset:128 sc1")
            a(f"s_add_u32 s{g.sCur}, s{g.sCur}, 1")
            a("s_waitcnt vmcnt(0)")
            a(f"v_readfirstlane_b32 s{g.sAr}, v{vd}"); a(f"v_readfirstlane_b32 s{g.sAr+1}, v{vd+1}")
            a(f"v_mov_b64 {V(vd,2)}, 0")
            a(f"s_cmp_lt_u32 s{g.sCur}, {SPIN}"); a(f"s_cbranch_scc0 L_ao_{nm}")
            for x in ops[0][1:] + ops[1] + ops[2][:2]: a(x)
            a(f"s_cbranch_scc0 L_ar2_{nm}")
            a(f"s_branch L_ao_{nm}")
        g.tail.append(t)
        return ops
    def emit(g, ops):
        for grp in ops:
            for x in (grp if isinstance(grp, list) else [grp]):
                if x.endswith(":"): g.a.lab(x[:-1])
                else: g.a(x)

    def lwave(g):
        a = g.a
        vX, vW, vWO = 12, 16, 43
        sLW, sXo, sWo, sMb, sTmp, sS0, sS1 = 64, 65, 66, 67, 68, 69, 70
        sNeed = 71
        a(f"s_sub_u32 s{sLW}, s{sW}, 4")
        a("v_lshrrev_b32 v1, 3, v0")
        a("v_and_b32 v2, 7, v0")
        a("v_lshrrev_b32 v3, 4, v0")
        a(f"s_and_b32 s{sTmp}, s{sLW}, 1"); a(f"s_lshl_b32 s{sWo}, s{sTmp}, 2")
        a(f"v_xor_b32 v4, v3, v2"); a(f"v_xor_b32 v4, s{sWo}, v4")
        a(f"s_lshl3_add_u32 s{sMb}, s{sLW}, s{sI0}")
        a(f"s_lshl1_add_u32 s{sMb}, s{sMb}, s{sP}"); a(f"s_mul_i32 s{sMb}, s{sMb}, 1280")
        a("v_mul_u32_u24 v5, 2560, v1")
        a(f"v_lshl_add_u32 v5, v4, 4, v5")
        a(f"v_add_u32 v{vX}, s{sMb}, v5")
        a("v_and_b32 v3, 6, v1"); a("v_xor_b32 v4, v3, v2")
        a(f"s_lshl_b32 s{sXo}, s{sCG}, 7")
        a(f"v_lshl_add_u32 v4, v4, 4, s{sXo}")
        a(f"s_lshl_b32 s{sTmp}, s{sTmp}, 4"); a(f"s_and_b32 s{sXo}, s{sLW}, 2"); a(f"s_lshl1_add_u32 s{sTmp}, s{sXo}, s{sTmp}")
        a("v_and_b32 v5, 4, v1"); a(f"v_add3_u32 v5, v5, v1, s{sTmp}")
        a("v_mul_u32_u24 v5, 3840, v5")
        a(f"v_add_u32 v{vW}, v5, v4")
        for m in range(1, 4): a(f"v_add_u32 v{vX+m}, {32*2560*m}, v{vX}")
        a(f"s_lshl_b32 s{sMb}, s{sLW}, 10")
        a(f"s_cmp_ge_u32 s{sLW}, 2"); a("s_cselect_b64 vcc, -1, 0")
        g.ptrs()
        g.stamp(3)
        order9 = [('x',0),('w',1),('x',1),('x',3),('w',0),('x',2),('w',4),('w',3),('w',2),('w',5)]
        order = [('x',0),('w',0),('w',1),('x',1),('w',2),('w',3),('x',2),('w',4),('w',5),('x',3)]
        slot = lambda c: (0, 2*SLOT, SLOT)[c % 3]
        def issue(c, j):
            split = c == 9 and g.opt.get("split", 0)
            kind, m = (order9 if split else order)[j]
            if kind == 'x':
                skip = None
                if m == 3:
                    skip = g.lab("skipx")
                    a(f"s_cbranch_vccnz {skip}")
                a(f"s_add_u32 m0, s{sMb}, {slot(c) + m*4096}")
                if m == 0: a(f"s_movk_i32 s{sXo}, {c*128}")
                a(f"buffer_load_dwordx4 v{vX+m}, {R(rX)}, s{sXo} offen lds")
                if skip: a.lab(skip)
            else:
                ks, sec = divmod(m, 3)
                a(f"s_add_u32 m0, s{sMb}, {slot(c) + WOFF + m*4096 - sec*1280}")
                if sec == 0 or split: a(f"s_mov_b32 s{g.sLd}, {c*245760 + ks*122880}")
                a(f"buffer_load_dwordx4 v{vW}, {R(rW)}, s{g.sLd} offen offset:{sec*1280} lds")
        look = g.look
        def pre():
            g.ptrs2()
            a(f"s_lshl_b32 s{sTmp}, s{sLW}, 3"); a(f"v_add_u32 v5, s{sTmp}, v1"); a("v_mul_u32_u24 v5, 1280, v5"); a(f"v_add_u32 v{vWO}, v5, v4")
            a(f"s_getreg_b32 s84, hwreg(HW_REG_XCC_ID, 0, 3)"); a(f"s_lshl_b32 s84, s84, 2"); a(f"s_lshl_b32 s84, 1, s84")
            a(f"s_and_b32 s83, s2, 1"); a(f"s_lshl1_add_u32 s83, s{sTB}, s83"); a(f"s_lshl_b32 s83, s83, 7"); a(f"s_add_u32 s83, s83, {WS_AR}")
            g.emit([x for x in g.arr_load() if not x.startswith("s_load")])
        for c in range(10):
            for j in range(look): issue(c, j)
            if c == g.opt.get("lpre", 0): pre()
            arrc = g.opt.get("arrc", 6)
            if c == arrc - 1: a(f"s_load_dword s85, {S(rDBG,2)}, {63*4}")
            if c == arrc:
                a("s_waitcnt lgkmcnt(0)")
                a("s_cmp_eq_u32 s85, 0"); a("s_cbranch_scc1 L_ll_init")
                a.lab("L_ll_initok")
                a(f"s_cmp_eq_u32 s{sLW}, 3"); a("s_cbranch_scc0 L_ll_na")
                if not g.opt.get("noarr"): a(f"s_atomic_add s84, {S(rWS,2)}, s83")
                a.lab("L_ll_na")
                def t():
                    a.lab("L_ll_init")
                    a(f"v_mov_b32 v6, {63*4}"); a(f"s_mov_b32 s{sCnt}, 0")
                    a.lab("L_ll_init2")
                    a(f"buffer_load_dword v7, v6, {R(rDBG)}, 0 offen sc1")
                    a(f"s_add_u32 s{sCnt}, s{sCnt}, 1")
                    a("s_waitcnt vmcnt(0)")
                    a("v_readfirstlane_b32 s85, v7")
                    a(f"s_cmp_lt_u32 s{sCnt}, {SPIN}"); a("s_cbranch_scc0 L_ll_initok")
                    a("s_cmp_eq_u32 s85, 0"); a("s_cbranch_scc0 L_ll_initok")
                    a("s_sleep 4"); a("s_branch L_ll_init2")
                g.tail.append(t)
            if c == 9: g.emit([x for x in g.arr_load() if x.startswith("s_load")])
            if c == 8 and g.opt.get("warm", 0):
                a("s_mov_b64 exec, 0")
                for j in range(3): a(f"s_cmp_eq_u32 s{sLW}, {j}"); a(f"s_cbranch_scc1 L_hop{j}")
                a("s_branch L_hop3"); a.lab("L_hopret"); a("s_mov_b64 exec, -1")
            if c > 0:
                a(f"s_waitcnt vmcnt({look - (1 if c == 9 and g.opt.get('split', 0) else 0)})")
                a("s_barrier")
            for j in range(look, 10): issue(c, j)
        g.stamp(1)
        a(f"s_add_u32 s{sMb}, s{sMb}, {L_WO}")
        a(f"s_sub_u32 s{sXo}, s{sCG}, s{sM0}"); a(f"s_mul_i32 s{sXo}, s{sXo}, 81920")
        n1 = g.opt.get("wo1", 7)
        for e in range(g.opt.get("woA", 12)):
            if e == g.opt.get("wo0", 3) and g.opt.get("split", 0):
                a(f"s_waitcnt vmcnt({e + 4})")
                a("s_barrier")
            if e == n1:
                a(f"s_waitcnt vmcnt({n1})")
                a("s_barrier")
            if e == 10: a(f"s_sub_u32 s{sXo}, 409600, s{sXo}")
            if e % 2 == 0: g.gidx(e//2, sWo, sTmp); a(f"s_mul_i32 s{sWo}, s{sWo}, 81920")
            a(f"s_add_u32 m0, s{sMb}, {e*4096}")
            a(f"s_add_u32 s{sWo}, s{sWo}, {'s%d' % sXo if e % 2 == 0 else 40960}")
            a(f"buffer_load_dwordx4 v{vWO}, {R(rWO)}, s{sWo} offen lds")
        if g.opt.get("woA", 12) <= 10: a(f"s_sub_u32 s{sXo}, 409600, s{sXo}")
        g.stamp(2)
        g.l_setup()
        a(f"s_mov_b64 s[72:73], {S(rWS,2)}")
        for j in range(1, 5 if not g.opt.get("woc", 0) else 0):
            g.gidx(5+j, sT, sTmp); a(f"s_mul_i32 s{sT}, s{sT}, 81920"); a(f"s_add_u32 s{21+j}, s{sT}, s{sXo}")
        a(f"s_mul_i32 s84, s{sS1}, {5*7168}"); a(f"s_add_u32 s84, s84, {L_QK}")
        a(f"s_and_b32 s{sT}, s{sLW}, 1"); a(f"s_mul_i32 s82, s{sT}, 1536"); a(f"s_lshl_b32 s83, s{sT}, 9"); a(f"s_add_u32 s83, s83, 3584")
        a(f"s_mov_b32 s{sSlot}, {CSC}"); a(f"s_mov_b32 s{sT}, {CSC}")
        a(f"s_mov_b32 s{sCnt}, 0")
        a(f"s_cmp_eq_u32 s{sNeed}, s{sM0}")
        g.stamp(5)
        a("s_cbranch_scc1 L_sdone")
        if g.opt.get("sp", 1):
            a("s_waitcnt vmcnt(0)")
            a(f"buffer_load_dword v44, v41, {R(rWS)}, 0 offen sc1")
            a("s_sleep 2")
            a.lab("L_spoll")
            a(f"buffer_load_dword v42, v41, {R(rWS)}, 0 offen sc1")
            a(f"s_add_u32 s{sCnt}, s{sCnt}, 1"); a(f"s_cmp_lt_u32 s{sCnt}, {SPIN}")
            a("s_waitcnt vmcnt(1)")
            a("v_cmp_eq_u32 vcc, 0, v44"); a("s_cbranch_scc0 L_sok"); a("s_cbranch_vccz L_sok")
            a(f"buffer_load_dword v44, v41, {R(rWS)}, 0 offen sc1")
            a("s_waitcnt vmcnt(1)")
            a("v_cmp_eq_u32 vcc, 0, v42"); a("s_cbranch_vccnz L_spoll")
        else:
            a.lab("L_spoll")
            a(f"buffer_load_dword v42, v41, {R(rWS)}, 0 offen sc1")
            a(f"s_add_u32 s{sCnt}, s{sCnt}, 1"); a(f"s_cmp_lt_u32 s{sCnt}, {SPIN}")
            a("s_waitcnt vmcnt(0)")
            a("v_cmp_eq_u32 vcc, 0, v42"); a("s_cbranch_scc0 L_sok"); a("s_cbranch_vccnz L_spoll")
        a.lab("L_sok")
        for so, n in ((82, 2), (83, 3)):
            a(f"s_add_u32 m0, s84, s{so}"); a(f"s_add_u32 s{sTmp}, s{sS0}, s{so}")
            for e in range(n): a(f"buffer_load_dwordx4 v45, {R(rWS)}, s{sTmp} offen offset:{1024*e} sc1 lds")
        g.stamp(4)
        a.lab("L_sdone")
        g.cntwait("l", 46, 47)
        if g.opt.get("prio", 1): a("s_setprio 1")
        a("s_waitcnt vmcnt(0)")
        g.stamp(6)
        a("s_branch L_units")

    sLd = 66
    def l_setup(g):
        a = g.a
        sLW, sTmp, sS0, sS1, sNeed = 64, 68, 69, 70, 71
        a(f"s_lshl_b32 s{sT}, s{sLW}, 30"); a(f"s_and_b32 s{sT}, s{sT}, 0x80000000"); a(f"s_sub_u32 s{sTmp}, s{sM0}, 4")
        a("v_bfe_u32 v8, v0, 3, 2"); a(f"v_add_u32 v8, s{sTmp}, v8"); a("v_and_b32 v8, 0x80000000, v8"); a(f"v_xor_b32 v8, s{sT}, v8"); a("v_lshl_or_b32 v45, v0, 4, v8")
        a(f"v_mov_b32 v46, {L_CNT}")
        a(";cut")
        g.fl_addr()
        a(f"s_lshr_b32 s{sS1}, s{sLW}, 1")
        a(f"s_mul_i32 s{sTmp}, s{sS1}, 3")
        g.unit_setup(sTmp)
        a(";cut")
        for r in range(g.B1, g.B1+24, 2): a(f"v_mov_b64 {V(r,2)}, 0")
        a(";cut")
        a(f"s_lshl1_add_u32 s{sS0}, s{sCG}, s{sS1}"); a(f"s_mul_i32 s{sS0}, s{sS0}, 7168"); a(f"s_mul_i32 s{sT}, s{sTB}, {BLK}"); a(f"s_add_u32 s{sS0}, s{sS0}, s{sT}")
        a(f"s_lshl2_add_u32 s{sT}, s{sS1}, s{g.sFL}"); a(f"v_mov_b32 v41, s{sT}")
        a(f"s_lshl_b32 s{sNeed}, s{sS1}, 2")
        a(";cut")
        g.emit(g.unit_late()[:-2])
        a(f"s_lshl_b32 s{sT}, s{sS1}, 3"); a(f"s_lshl_b32 s{sT}, 0x100, s{sT}"); a(f"v_mov_b32 v{g.vK+6}, s{sT}")

    AQ, AK, AV = 4, 32, 60
    XA = (88, 128); WB = (116, 156)
    VL, VR = 168, 184
    vXA0, vXA1, vWB, vO = 248, 249, 250, 125
    mSend, mCL = 64, 66
    sXg, sXf, sPL, sPR, sKey, sD = 80, 81, 82, 83, 75, 79

    def cwave(g):
        a = g.a
        a.lab("L_cwave")
        sM, sAL, sAR, sU = 74, 75, 78, 79
        a("v_and_b32 v1, 15, v0")
        a("v_lshrrev_b32 v2, 4, v0")
        for r in range(4): a(f"v_mov_b32 v{88+r}, 0")
        a("v_lshlrev_b32 v12, 7, v0")
        g.ptrs(); g.ptrs2(); g.fl_addr()
        a(f"s_mul_i32 s{sJ}, s{sCG}, 14336"); a(f"s_mul_i32 s{sT}, s{sTB}, {BLK}"); a(f"s_add_u32 s{sJ}, s{sJ}, s{sT}")
        a(f"s_cmp_eq_u32 s{sW}, 0"); a("s_cbranch_scc0 L_ch1")
        a("s_mov_b64 exec, 3")
        a(f"buffer_store_dwordx4 v[88:91], v12, {R(rWS)}, s{g.sFL} offen sc1")
        a("s_branch L_ch3")
        a.lab("L_ch1")
        if g.opt.get("tlb", 1):
            a(f"s_cmp_eq_u32 s{sW}, 3"); a("s_cbranch_scc0 L_ch2" if g.opt.get("mb", 0) else "s_cbranch_scc0 L_ch3")
            a(f"s_max_i32 s{sT}, s{sI0}, 0"); a(f"s_mul_i32 s{sT}, s{sT}, 2560"); a(f"v_mul_u32_u24 v13, {100*2560}, v0")
            a("s_mov_b64 exec, 3")
            a(f"buffer_load_dword v{g.XA[1]}, v13, {R(rOUT)}, s{sT} offen sc1")
        mb = g.opt.get("mb", 0)
        if mb:
            a("s_branch L_ch3")
            a.lab("L_ch2")
            if mb == 1: a(f"s_cmp_eq_u32 s{sW}, 1"); a("s_cbranch_scc0 L_ch3")
            g.wtouch_addr(12, 13, 14)
            a(f"s_lshr_b32 s{sT}, s2, 3"); a(f"s_mul_i32 s{sCnt}, s{sW}, 25"); a(f"s_add_u32 s{sT}, s{sT}, s{sCnt}"); a(f"s_add_u32 s{sT}, s{sT}, {g.opt.get('mb0', 3)-25}")
            a(f"s_mul_i32 s{sT}, s{sT}, {16*3840}"); a(f"v_add_u32 v14, s{sT}, v14")
            a("s_mov_b32 exec_hi, 0x0fffffff")
            a(f"buffer_load_dword v{g.XA[1]}, v14, {R(rW)}, 0 offen")
        a.lab("L_ch3")
        a("s_mov_b64 exec, -1")
        a(f"s_add_u32 s{sM}, s{sW}, 5"); a(f"s_sub_u32 s{sM}, s{sM}, s{sM0}")
        a(f"s_cmp_ge_u32 s{sM}, 5"); a(f"s_cselect_b32 s{sT}, 5, 0"); a(f"s_sub_u32 s{sM}, s{sM}, s{sT}")
        a(f"s_cmp_gt_u32 s{sW}, s{sM0}"); a(f"s_subb_u32 s{g.sPL}, s{sW}, 0")
        a(f"s_cmp_lt_u32 s{sW}, s{sM0}"); a(f"s_addc_u32 s{g.sPR}, s{sW}, 0")
        a(f"s_cmp_eq_u32 s{sM}, 0"); a(f"s_cselect_b32 s{g.sPL}, s{g.sPR}, s{g.sPL}")
        a(f"s_cmp_eq_u32 s{sM}, 4"); a(f"s_cselect_b32 s{g.sPR}, s{g.sPL}, s{g.sPR}")
        a(f"s_cmp_eq_u32 s{g.sPL}, 0"); a("s_cselect_b32 s84, 0x204, 4")
        a(f"s_cmp_eq_u32 s{g.sPR}, 3"); a("s_cselect_b32 s84, 0x20004, s84")
        if g.opt.get("allp"): a("s_mov_b32 s84, 0x20204")
        a(f"s_mul_i32 s{g.sPL}, s{g.sPL}, 7168"); a(f"s_mul_i32 s{g.sPR}, s{g.sPR}, 7168")
        a(f"s_add_u32 s{g.sPL}, s{g.sPL}, {L_P}"); a(f"s_add_u32 s{g.sPR}, s{g.sPR}, {L_P}")
        a(f"v_cmp_gt_u32 vcc, s{sM}, v2")
        a("v_lshrrev_b32 v12, 2, v1")
        a(f"v_cmp_gt_u32 {S(g.mCL,2)}, s{sM}, v12")
        a(f"s_cmp_eq_u32 s{sW}, 3"); a(f"s_cselect_b64 {S(g.mSend,2)}, -1, 0"); a(f"s_cselect_b32 s{sT}, 2, -1"); a(f"s_cselect_b32 s{sU}, 508, 0")
        a(f"s_xor_b64 {S(g.mSend,2)}, {S(g.mSend,2)}, vcc")
        a(f"s_mul_i32 s{g.sXg}, s{sT}, 7168"); a(f"s_add_u32 s{g.sXg}, s{g.sXg}, s{sJ}")
        a(f"s_add_u32 s{g.sXf}, s{g.sFL}, s{sU}"); a(f"s_sub_u32 s{g.sXf}, s{g.sXf}, 252")
        a(f"s_add_u32 s{sCnt}, s{sW}, 1"); a(f"s_and_b32 s{sCnt}, s{sCnt}, 2"); a(f"s_cselect_b32 s{g.sXf}, 0, s{g.sXf}")
        a(f"s_cmp_eq_u64 {S(g.mSend,2)}, 0"); a(f"s_cselect_b32 s{g.sXf}, 0, s{g.sXf}")
        a(f"s_lshr_b32 s{sU}, s{sW}, 1"); a(f"s_mul_i32 s{sT}, s{sU}, 7168"); a(f"s_add_u32 s{sJ}, s{sJ}, s{sT}")
        a(f"s_and_b32 s{sT}, s{sW}, 1"); a(f"s_lshl_b32 s{sT}, s{sT}, 9"); a(f"s_add_u32 s{sJ}, s{sJ}, s{sT}")
        a(f"s_add_u32 s{sAL}, s{sU}, 1")
        a("s_waitcnt vmcnt(1)")
        g.unit_setup(sAL)
        a(f"s_lshl_b32 s{sT}, s{sW}, 13"); a(f"s_add_u32 s{sT}, s{sT}, {L_P}"); a(f"v_add_u32 v8, s{sT}, v{g.vL16}")
        for j in range(8): a(f"ds_write_b128 v8, v[88:91] offset:{1024*j}")
        a(f"s_mul_i32 s77, s{sW}, {8*1280}"); a(f"s_lshl_b32 s{sT}, s{sCG}, 7"); a(f"s_add_u32 s77, s77, s{sT}")
        a("s_bitcmp1_b32 s2, 0"); a(f"s_cselect_b32 s{sT}, 0, 409600"); a(f"s_add_u32 s77, s77, s{sT}"); a("s_add_u32 s77, s77, 40960")
        a(f"s_lshl_b32 s76, s{sW}, 10")
        a(f"s_and_b32 s{sT}, s2, 1"); a(f"s_xor_b32 s{sT}, s{sT}, 1"); a(f"s_mul_i32 s{sT}, s{sT}, 1280"); a(f"s_mul_i32 s72, s{sTB}, {BLK}"); a(f"s_add_u32 s72, s72, s{sT}")
        a(f"s_add_u32 s72, s72, s{rWS}"); a(f"s_addc_u32 s73, s{rWS+1}, 0"); a("s_mov_b32 s78, 1")
        a("v_lshrrev_b32 v8, 1, v1"); a("v_xor_b32 v9, v8, v2"); a("v_lshlrev_b32 v9, 4, v9")
        a(f"v_lshl_add_u32 v{g.vXA0}, v1, 7, v9"); a(f"v_xor_b32 v{g.vXA1}, 64, v{g.vXA0}")
        g.tr_addr(g.vWB, f"s{sW}", WOFF)
        g.xres_addr()
        for r in range(g.VL, g.VL+64, 4):
            a(f"v_mfma_f32_16x16x32_bf16 {V(r,4)}, v[88:91], v[88:91], 0")

        def reads(buf, ks):
            out = []
            for sec in range(3):
                for ab in range(2):
                    out.append(f"ds_read_b64_tr_b16 {V(g.WB[buf]+4*sec+2*ab,2)}, v{g.vWB} offset:{(ks*3+sec)*4096+ab*2048}")
            for t in range(7):
                out.append(f"ds_read_b128 {V(g.XA[buf]+4*t,4)}, v{g.vXA0 if ks == 0 else g.vXA1} offset:{t*2048}")
            return out
        first = [True]
        def mf(buf, t, sec):
            acc = V((g.AQ, g.AK, g.AV)[sec]+4*t, 4); x = V(g.XA[buf]+4*t, 4); w = V(g.WB[buf]+4*sec, 4)
            return f"v_mfma_f32_16x16x32_bf16 {acc}, {x if sec == 2 else w}, {w if sec == 2 else x}, {0 if first[0] else acc}"
        def phase(buf, fill):
            mo = g.opt.get("mo", 0)
            if mo == 0: ms = [mf(buf, t, sec) for t in range(7) for sec in range(3)]
            if mo == 1: ms = [mf(buf, t, sec) for sec in range(3) for t in range(7)]
            if mo == 2: ms = [mf(buf, t, sec) for t in range(7) for sec in range(2)] + [mf(buf, t, 2) for t in range(7)]
            if mo == 3: ms = [mf(buf, t, sec if t % 2 == 0 else 1-sec) for t in range(7) for sec in range(2)] + [mf(buf, t, 2) for t in range(7)]
            if g.opt.get("nomf"): ms = [m if i % g.opt["nomf"] else "s_nop 3" for i, m in enumerate(ms)]
            fill = list(fill)
            if g.opt.get("nord"): fill = [[] if isinstance(f, str) and f.startswith("ds_read") else f for f in fill]
            for m in ms:
                a(m)
                if fill:
                    f = fill.pop(0)
                    for x in (f if isinstance(f, list) else [f]):
                        if x.endswith(":"): a.lab(x[:-1])
                        else: a(x)
            assert not fill
            first[0] = False
        a(f"s_cmp_eq_u32 s{sW}, 0"); a("s_cbranch_scc0 L_ch4")
        a(f"v_mov_b32 v1, s{g.sFL}")
        a("s_waitcnt vmcnt(0)")
        a(f"buffer_load_dword v2, v1, {R(rWS)}, 0 offen sc1")
        a("s_branch L_ch5")
        a.lab("L_ch4")
        a("s_waitcnt vmcnt(0)")
        a.lab("L_ch5")
        g.stamp(1)
        a("s_barrier")
        g.stamp(2)
        for r in reads(0, 0): a(r)
        slot = lambda c: (0, 2*SLOT, SLOT)[c % 3]
        for c in range(10):
            if c > 0:
                st = [[("s_memrealtime" if g.opt.get("rt") else "s_memtime") + " s[98:99]"]] if g.stamps is True or g.opt.get("bars") else []
                bp = g.opt.get("bp9", 0) if c == 9 else g.opt.get("bp", 0)
                pre = [x for x in g.arr_load() if not x.startswith("s_load")] if c == 8 else []
                ex = [pre] if pre else (g.arr_check("c", sT, sCnt, 1, g.VL) if c == 9 else [])
                rd = reads(0, 0)
                if c == 9 and g.opt.get("split", 0): rd = rd[2:4] + rd[6:] + rd[0:2]
                head = ex[:bp] + [[]] * (bp - len(ex)); ex = ex[bp:]
                room = 21 - bp - 1 - len(ex) - g.opt.get("bgap", 3 if bp else 0)
                grp = [rd[n*len(rd)//min(room, len(rd)):(n+1)*len(rd)//min(room, len(rd))] for n in range(min(room, len(rd)))]
                phase(1, head + [["s_barrier"] + (st[0] if st else [])] + grp + ex)
            a("s_waitcnt lgkmcnt(0)")
            book = [[f"s_cmp_eq_u32 s{sCG}, {c}", f"s_cbranch_scc1 L_xres_{c}", f"L_xret_{c}:"]]
            if c < 9:
                d = (slot(c+1) - slot(c)) & 0xffffffff
                book += [f"v_add_u32 v{r}, {d}, v{r}" for r in (g.vXA0, g.vXA1, g.vWB)]
            if c == 4: book.append("s_waitcnt vmcnt(0)")
            if (g.stamps is True or g.opt.get("bars")) and 0 < c < 9: book.append(f"v_writelane_b32 v253, s98, {32+c}")
            if c == 9: break
            book += [[]] * (7 - len(book)) + ["s_waitcnt lgkmcnt(0)"]
            rd = reads(1, 1)
            if c == 8:
                for n, x in enumerate([x for x in g.arr_load() if x.startswith("s_load")]): rd[n] = [rd[n], x]
            phase(0, rd + book)
        rd = reads(1, 1)
        rd = rd[2:4] + rd[6:] + rd[0:2] + rd[4:6]
        cv = lambda s_, t: [f"v_cvt_pk_bf16_f32 v{s_+4*t+h}, v{s_+4*t+2*h}, v{s_+4*t+2*h+1}" for h in range(2)]
        stK = lambda t, fl="": f"buffer_store_dwordx2 {V(g.AK+4*t,2)}, v1, {R(rWS)}, s{sCnt} offen offset:{t*512} {fl}"
        stQ = lambda t, fl="": f"buffer_store_dwordx2 {V(g.AQ+4*t,2)}, v1, {R(rWS)}, s{g.sXg} offen offset:{t*512} {fl}"
        wK = lambda t: f"ds_write_b64 v2, {V(g.AK+4*t,2)} offset:{3584+t*512}"
        wQ = lambda t: f"ds_write_b64 v2, {V(g.AQ+4*t,2)} offset:{t*512}"
        nq = g.opt.get("nq", 3)
        ms = [mf(0, t, 1) for t in range(7)] + [mf(0, t, 0) for t in range(nq)] + [mf(1, t, 1) for t in range(7)]
        fill = [rd[0:2], rd[2:4], rd[4:5], rd[5:7], rd[7:8], rd[8:10], rd[10:11], rd[11:13]] + book
        if g.opt.get("split", 0):
            nq = g.opt.get("nq", 6)
            ms = [mf(0, t, 1) for t in range(7)] + [mf(0, t, 0) for t in range(nq)] + [mf(1, t, 1) for t in range(7)]
            b9 = g.opt.get("b9", 5)
            fill = [rd[2:4], rd[4:6], rd[6:8], rd[8:9]] + book
            fill += [[]] * (b9 - len(fill)) + [["s_barrier"] + rd[0:2], rd[9:11], reads(0, 0)[4:6], rd[11:13]]
        fill += [[]] * (6 + nq - len(fill)) + [[f"s_waitcnt lgkmcnt({6 if g.opt.get('split', 0) else 4})"]]
        assert len(fill) == 7 + nq
        fill += [[f"s_mul_i32 s{sCnt}, s{sW}, 7168", f"s_add_u32 s{sCnt}, s{sCnt}, {L_QK+7168}", "v_lshlrev_b32 v1, 3, v0"],
                 [f"v_add_u32 v2, s{sCnt}, v1", f"s_cmp_eq_u32 s{g.sLoc}, 0", f"s_cselect_b32 s70, 0, s{g.sXf}"],
                 ["s_cmp_eq_u32 s70, 0", f"s_cselect_b64 vcc, 0, {S(g.mSend,2)}", "v_bfrev_b32 v3, 1"],
                 ["v_cndmask_b32_e64 v1, v3, v1, vcc", f"s_add_u32 s{sCnt}, s{g.sXg}, 3584"], [], [],
                 ["s_waitcnt lgkmcnt(0)", f"s_load_dword s{g.sKey}, {S(rDBG,2)}, {0*4}"]]
        for m in ms:
            a(m); g.emit([fill.pop(0)])
        g.stamp(3)
        nst = [0]
        def stub():
            if not g.opt.get("warm", 0): return
            a.lab(f"L_hop{nst[0]}"); nst[0] += 1
            a("s_cbranch_execz L_hopret")
        def dump(send):
            il = g.opt.get("il", 0) or not send
            ms = [mf(0, t, 0) for t in range(nq, 7)] + [mf(1, t, 0) for t in range(7)]
            ops = []
            late_k = send and g.opt.get("lk", 1)
            for t in range(7): ops += cv(g.AK, t) + ([stK(t)] if send else []) + ([] if late_k else [wK(t)])
            for n, m in enumerate(ms):
                a(m)
                k1 = (n + 1) * len(ops) // len(ms); k0 = n * len(ops) // len(ms)
                g.emit(ops[k0:k1])
                if not send and n in (5, len(ms)-1): stub()
            def count():
                a(f"v_mov_b32 v{g.AQ+2}, {L_CNT}"); a(f"v_mov_b32 v{g.AQ+3}, 1")
                a("s_mov_b64 exec, 1")
                a(f"ds_add_u32 v{g.AQ+2}, v{g.AQ+3}")
                a("s_mov_b64 exec, -1")
            for t in range(7):
                g.emit(cv(g.AQ, t) + ([stQ(t)] if send else []))
                if il: a(wQ(t)); a(mf(0, t, 2))
                if not send and t == 3: stub()
            if not il:
                for t in range(7):
                    if late_k and t == g.opt.get("fk", 6):
                        a("v_mov_b32 v1, 0"); a("v_mov_b32 v3, 1"); a("s_mov_b64 exec, 1"); a("s_waitcnt vmcnt(0)")
                        a(f"buffer_store_dword v3, v1, {R(rWS)}, s70 offen")
                        if g.opt.get("chain"): g.stamp(13)
                        a("s_mov_b64 exec, -1")
                    if late_k: a(wK(t))
                    a(wQ(t)); a(mf(0, t, 2))
            count()
        a("s_cbranch_vccz L_nosend")
        if g.opt.get("adj", 1):
            dump(True); a("s_branch L_dumped")
            a.lab("L_nosend"); stub(); dump(False)
            a.lab("L_dumped")
        else:
            dump(True)
            a.lab("L_dumped")
            def t():
                a.lab("L_nosend"); stub(); dump(False); a("s_branch L_dumped")
            g.tail.append(t)
        late = g.unit_late()
        for t in range(7):
            if t == g.opt.get("fpos", 3) and not g.opt.get("lk", 1):
                a("v_mov_b32 v1, 0"); a("v_mov_b32 v2, 1")
                a("s_cmp_eq_u32 s70, 0"); a("s_cbranch_scc1 L_noflag")
                a("s_mov_b64 exec, 1"); a("s_waitcnt vmcnt(0)")
                a(f"buffer_store_dword v2, v1, {R(rWS)}, s70 offen")
                if g.opt.get("chain"): g.stamp(13)
                a.lab("L_noflag")
                a("s_mov_b64 exec, -1")
            a(mf(1, t, 2))
            if t == g.opt.get("cpos", 3): a(f"ds_read_b32 v3, v{g.AQ+2}")
            for _ in range(2):
                if late: a(late.pop(0))
        g.emit(late)
        a(f"s_cmp_lg_u32 s70, s{g.sXf}"); a("s_cbranch_scc1 L_send1")
        a.lab("L_sent")
        def t():
            a.lab("L_send1")
            a("v_lshlrev_b32 v1, 3, v0")
            a(f"s_mov_b64 exec, {S(g.mSend,2)}")
            for t in range(7): a(stK(t, "sc1")); a(stQ(t, "sc1"))
            a("s_mov_b64 exec, 1"); a("v_mov_b32 v1, 0"); a("s_waitcnt vmcnt(0)")
            a(f"buffer_store_dword v{g.AQ+3}, v1, {R(rWS)}, s{g.sXf} offen sc1"); a("s_mov_b64 exec, -1")
            a("s_branch L_sent")
        g.tail.append(t)
        def t():
            for c in range(10):
                a.lab(f"L_xres_{c}"); a(f"s_call_b64 s[26:27], L_xres"); a(f"s_branch L_xret_{c}")
            a.lab("L_xres"); g.xres_read(); a("s_setpc_b64 s[26:27]")
        g.tail.append(t)
        g.stamp(4)
        if g.opt.get("vpos", 1) == 0: g.vcvt()
        a("s_waitcnt lgkmcnt(0)")
        a("v_cmp_gt_u32 vcc, 4, v3"); a("s_cbranch_vccz L_cw_ok")
        g.cntwait("c", g.AQ+2, 3)
        a.lab("L_cw_ok")
        g.stamp(6)

    def flagstore(g, nm, sOff, off=0, wait=True):
        a = g.a
        a("v_mov_b32 v1, 0"); a("v_mov_b32 v3, 1")
        a(f"s_cmp_eq_u32 s{g.sLoc}, 0")
        a("s_mov_b64 exec, 1")
        if wait: a("s_waitcnt vmcnt(0)")
        a(f"s_cbranch_scc1 L_fs_{nm}")
        a(f"buffer_store_dword v3, v1, {R(rWS)}, s{sOff} offen offset:{off}")
        a.lab(f"L_fr_{nm}")
        a("s_mov_b64 exec, -1")
        def t():
            a.lab(f"L_fs_{nm}")
            a(f"buffer_store_dword v3, v1, {R(rWS)}, s{sOff} offen offset:{off} sc1")
            a(f"s_branch L_fr_{nm}")
        g.tail.append(t)

    def wtouch_addr(g, t0, t1, d):
        a = g.a
        a(f"v_mul_u32_u24 v{t0}, 4370, v0"); a(f"v_lshrrev_b32 v{t0}, 16, v{t0}")
        a(f"v_mul_u32_u24 v{t1}, 15, v{t0}"); a(f"v_sub_u32 v{t1}, v0, v{t1}")
        a(f"v_mul_u32_u24 v{d}, 52, v{t1}"); a(f"v_lshrrev_b32 v{d}, 8, v{d}")
        a(f"v_mul_u32_u24 v{d}, 640, v{d}"); a(f"v_lshl_add_u32 v{d}, v{t1}, 7, v{d}")
        a(f"v_mul_u32_u24 v{t0}, {4*3840}, v{t0}")
        a(f"s_bfe_u32 s{sT}, s2, 0x20001"); a(f"s_mul_i32 s{sT}, s{sT}, 6"); a(f"s_and_b32 s{sCnt}, s2, 1")
        a(f"s_add_u32 s{sT}, s{sT}, s{sCnt}"); a(f"s_mul_i32 s{sT}, s{sT}, 640")
        a(f"v_add3_u32 v{d}, s{sT}, v{d}, v{t0}")

    def pwait(g, nm, mask, first=True):
        a = g.a
        a.lab(f"L_pw_{nm}")
        a(f"ds_read_b32 v{g.vK+7}, v{g.vK+4} offset:4")
        a("s_waitcnt lgkmcnt(0)")
        a(f"v_bfi_b32 v{g.vK+7}, v{g.vK+7}, 0, {mask}")
        a(f"v_cmp_ne_u32 vcc, 0, v{g.vK+7}"); a(f"s_cbranch_vccnz L_pw_{nm}")

    def vcvt(g):
        a = g.a
        for dst, ex in ((g.VL, f"s_mov_b64 exec, {S(g.mCL,2)}"), (g.VR, "s_not_b64 exec, exec")):
            a(ex)
            for t in range(7):
                for h in range(2): a(f"v_cvt_pk_bf16_f32 v{dst+2+2*t+h}, v{g.AV+4*t+2*h}, v{g.AV+4*t+2*h+1}")
        a("s_mov_b64 exec, -1")

    def cntwait(g, nm, va, vd):
        a = g.a
        a.lab(f"L_cw_{nm}")
        a(f"ds_read_b32 v{vd}, v{va}")
        a("s_waitcnt lgkmcnt(0)")
        a(f"v_cmp_gt_u32 vcc, 4, v{vd}")
        a(f"s_cbranch_vccnz L_cw_{nm}")

    def tr_addr(g, dst, win, base, t0=9, t1=10, hmul=1024):
        a = g.a
        a(f"v_bfe_u32 v{t0}, v0, 3, 2")
        if win != "0": a(f"v_xor_b32 v{t0}, {win}, v{t0}")
        a(f"v_lshlrev_b32 v{t0}, 5, v{t0}")
        a(f"v_and_b32 v{t1}, 3, v0"); a(f"v_lshl_add_u32 v{t0}, v{t1}, 3, v{t0}")
        a(f"v_lshrrev_b32 v{t1}, 2, v0"); a(f"v_lshl_add_u32 v{t0}, v{t1}, 7, v{t0}")
        if hmul == 2048:
            a(f"v_and_b32 v{t1}, 32, v0"); a(f"v_lshl_add_u32 v{t0}, v{t1}, 5, v{t0}")
        a(f"v_add_u32 v{dst}, {base}, v{t0}")

    def poison_max(g, base, n, t, cont=False):
        a = g.a
        k = 0
        if not cont:
            a(f"v_max3_u32 v{t}, v{base}, v{base+1}, v{base+2}"); k = 3
        while k + 1 < n:
            a(f"v_max3_u32 v{t}, v{t}, v{base+k}, v{base+k+1}"); k += 2
        if k < n: a(f"v_max_u32 v{t}, v{t}, v{base+k}")

    def softmax(g):
        a = g.a
        a.lab("L_units")
        A, B, M = 4, 20, 36
        A1, A2, vK = 128, 144, g.vK
        sc = S(sSlot, 2)
        for u in range(4): a(f"ds_read_b64 {V(A2+2*u,2)}, v{vK+2+(u==0)} offset:{3584+u*512}")
        a("s_mov_b32 exec_lo, 0xff0000ff"); a("s_mov_b32 exec_hi, 0")
        for u in range(4): a(f"ds_read_b64 {V(g.B2+2*u,2)}, v{g.vQ2} offset:{u*512}")
        a("s_mov_b32 exec_lo, 0x00ff00ff"); a("s_mov_b32 exec_hi, exec_lo")
        for u in range(4): a(f"ds_read_b64 {V(g.B1+4*u,2)}, v{g.vQ1} offset:{u*512}")
        a("s_not_b64 exec, exec")
        for u in range(4): a(f"ds_read_b64 {V(g.B1+4*u+2,2)}, v{g.vQ1} offset:{u*512}")
        a("s_mov_b64 exec, -1")
        for u in range(4):
            if u == 0: a("s_waitcnt lgkmcnt(8)")
            a(f"v_mfma_f32_16x16x16_bf16 {V(A+4*u,4)}, {V(A2+2*u,2)}, {V(g.B2+2*u,2)}, {V(g.BI0 if u == 0 else g.BI,4)}")
            a(f"ds_read_b64 {V(A1+4*u,2)}, v{vK+(u==0)} offset:{3584+u*512}")
            a(f"ds_read_b64 {V(A1+4*u+2,2)}, v{g.vQ1} offset:{3584+u*512}")
        for u in range(4):
            a(f"s_waitcnt lgkmcnt({6-2*u})")
            a(f"v_mfma_f32_16x16x32_bf16 {V(A+4*u,4)}, {V(A1+4*u,4)}, {V(g.B1+4*u,4)}, {V(A+4*u,4)}")
        g.stamp(8)
        for u in range(4): a(f"v_max3_f32 v{M+u}, v{A+4*u}, v{A+4*u+1}, v{A+4*u+2}")
        for u in range(4): a(f"v_max_f32 v{M+u}, v{M+u}, v{A+4*u+3}")
        def red(op):
            a(f"v_permlane32_swap_b32 v{M}, v{M+1}"); a(f"v_permlane32_swap_b32 v{M+2}, v{M+3}")
            a(f"{op} v{M}, v{M}, v{M+1}"); a(f"{op} v{M+2}, v{M+2}, v{M+3}")
            a(f"v_permlane16_swap_b32 v{M}, v{M+2}")
            a(f"{op} v{M}, v{M}, v{M+2}")
        def bc():
            a(f"v_permlane16_swap_b32 v{M}, v{M+2}")
            a(f"v_mov_b32 v{M+1}, v{M}"); a(f"v_mov_b32 v{M+3}, v{M+2}")
            a(f"v_permlane32_swap_b32 v{M}, v{M+1}"); a(f"v_permlane32_swap_b32 v{M+2}, v{M+3}")
        red("v_max_f32")
        a(f"v_mul_f32 v{M+2}, s{sSlot}, v{M}"); a(f"v_mul_f32 v{M}, s{sSlot}, v{M}")
        bc()
        for k in range(0, 16, 2):
            u = k//4; sel = "op_sel_hi:[1,1,0]" if u % 2 == 0 else "op_sel:[0,0,1] op_sel_hi:[1,1,1]"
            a(f"v_pk_fma_f32 {V(A+k,2)}, {V(A+k,2)}, {sc}, {V(M+(u&2),2)} {sel} neg_lo:[0,0,1] neg_hi:[0,0,1]")
        norm = g.opt.get("norm", 1)
        if norm:
            for k in range(16): a(f"v_exp_f32 v{A+k}, v{A+k}")
            for u in range(4): a(f"v_pk_add_f32 {V(B+2*u,2)}, {V(A+4*u,2)}, {V(A+4*u+2,2)}")
            for u in range(4): a(f"v_add_f32 v{M+u}, v{B+2*u}, v{B+2*u+1}")
            red("v_add_f32")
            a(f"v_rcp_f32 v{M+2}, v{M}"); a(f"v_rcp_f32 v{M}, v{M}")
            bc()
            for u in range(4):
                sel = "op_sel_hi:[1,0]" if u % 2 == 0 else "op_sel:[0,1] op_sel_hi:[1,1]"
                for k in (0, 2): a(f"v_pk_mul_f32 {V(A+4*u+k,2)}, {V(A+4*u+k,2)}, {V(M+(u&2),2)} {sel}")
                for h in range(2): a(f"v_cvt_pk_bf16_f32 v{B+2*u+h}, v{A+4*u+2*h}, v{A+4*u+2*h+1}")
                a(f"ds_write_b64 v{g.vSP}, {V(B+2*u,2)} offset:{u*1024}")
        for u in range(0 if norm else 5):
            if u < 4:
                for k in range(4): a(f"v_exp_f32 v{A+4*u+k}, v{A+4*u+k}")
            if u > 0:
                for h in range(2): a(f"v_cvt_pk_bf16_f32 v{B+2*u-2+h}, v{A+4*u-4+2*h}, v{A+4*u-4+2*h+1}")
                a(f"ds_write_b64 v{g.vSP}, {V(B+2*u-2,2)} offset:{(u-1)*1024}")
        a("s_mov_b64 exec, 1")
        a(f"ds_add_u32 v{vK+4}, v{vK+6} offset:4")
        a("s_mov_b64 exec, -1")
        a(f"s_cmp_ge_u32 s{sW}, 4"); a("s_cbranch_scc0 L_cbeta")
        if g.opt.get("chain"): g.stamp(14)
        a("s_setprio 0")
        for e in range(g.opt.get("woA", 12), 12):
            assert e >= 10 and g.rot == 2
            a(f"s_add_u32 m0, s67, {e*4096}"); a(f"s_add_u32 s68, s65, {40960*(e&1)}")
            a(f"buffer_load_dwordx4 v43, {R(rWO)}, s68 offen lds")
        for e in range(12, 20 if not g.opt.get("woc", 0) else 0):
            a(f"s_sub_u32 m0, s67, {L_WO - L_WO2 - (e-12)*4096}")
            a(f"s_add_u32 s68, s{22 + e//2 - 6}, {40960*(e&1)}")
            a(f"buffer_load_dwordx4 v43, {R(rWO)}, s68 offen lds")
        a("s_branch L_lbeta")
        a.lab("L_cbeta")
        g.stamp(7)
        PL, PR = 88, 128
        if g.opt.get("woc", 0):
            assert g.rot == 2
            a("v_lshrrev_b32 v1, 3, v0"); a("v_and_b32 v2, 6, v1"); a("v_xor_b32 v2, v2, v0"); a("v_and_b32 v2, 7, v2")
            a("v_mul_u32_u24 v1, 1280, v1"); a("v_lshl_add_u32 v3, v2, 4, v1")
            for e in range(12, 20):
                a(f"s_add_u32 m0, s76, {L_WO2 + (e-12)*4096}")
                a(f"s_add_u32 s77, s77, 40960")
                a(f"buffer_load_dwordx4 v3, {R(rWO)}, s77 offen lds")
        if g.opt.get("vpos", 1) == 1: g.vcvt()
        if not norm:
            a("v_mov_b32 v1, 0x3f803f80")
            a(f"v_cndmask_b32_e64 v{g.BI}, 0, v1, {S(g.mCL,2)}"); a(f"v_cndmask_b32_e64 v{g.BI0}, v1, 0, {S(g.mCL,2)}")
            for r in (g.BI, g.BI0): a(f"v_mov_b32 v{r+1}, v{r}"); a(f"v_mov_b64 {V(r+2,2)}, {V(r,2)}")
        a(f"s_cmp_eq_u32 s{g.sKey}, 0"); a("s_cbranch_scc1 L_keypoll")
        a.lab("L_keyok")
        def t():
            a.lab("L_keypoll")
            a(f"v_mov_b32 v1, {0*4}"); a(f"s_mov_b32 s{sCnt}, 0")
            a.lab("L_keypoll2")
            a(f"buffer_load_dword v2, v1, {R(rDBG)}, 0 offen sc1")
            a(f"s_add_u32 s{sCnt}, s{sCnt}, 1")
            a("s_waitcnt vmcnt(0)")
            a(f"v_readfirstlane_b32 s{g.sKey}, v2")
            a(f"s_cmp_lt_u32 s{sCnt}, {SPIN}"); a("s_cbranch_scc0 L_keyok")
            a(f"s_cmp_eq_u32 s{g.sKey}, 0"); a("s_cbranch_scc0 L_keyok")
            a("s_sleep 4"); a("s_branch L_keypoll2")
        g.tail.append(t)
        a("v_and_b32 v77, 15, v0"); a("v_lshlrev_b32 v1, 2, v77")
        a(f"s_lshl_b32 s{g.sD}, s{sW}, 5"); a(f"s_add_u32 s{g.sD}, s{g.sD}, s{sI0}")
        a(f"s_lshl_b32 s67, s{sP}, 10"); a(f"s_add_u32 s67, s67, s{g.sD}"); a(f"s_lshl_b32 s67, s67, 2"); a(f"s_add_u32 s67, s67, {WS_G}")
        for q in range(2):
            a(f"v_add3_u32 v2, s{g.sD}, v77, {16*q}"); a("v_and_b32 v2, 0x400, v2"); a(f"v_lshl_or_b32 v{78+q}, v2, 21, v1")
            a(f"buffer_load_dword v{86+q}, v{78+q}, {R(rWS)}, s67 offen offset:{64*q} sc1")
        a(f"v_and_b32 v2, 32, v0"); a(f"v_lshl_add_u32 v{g.vO}, v2, 4, v{g.vL16}")
        a(f"v_add_u32 v1, s{g.sPL}, v{g.vL16}"); a(f"v_add_u32 v2, s{g.sPR}, v{g.vL16}")
        a(f"s_add_u32 s{sT}, s{sJ}, 4096"); a(f"s_add_u32 s68, s{sJ}, {WS_OG}"); a(f"s_add_u32 s69, s{sT}, {WS_OG}")
        if g.opt.get("chain"): g.stamp(14)
        g.pwait("c", "s84")
        g.stamp(9)
        for t in range(7):
            a(f"ds_read_b128 {V(PL+4*t,4)}, v1 offset:{t*1024}")
            a(f"ds_read_b128 {V(PR+4*t,4)}, v2 offset:{t*1024}")
        a(f"s_lshr_b32 s70, s{sW}, 1"); a(f"s_mul_i32 s70, s70, {7168-1024}"); a(f"s_lshl_b32 s{sCnt}, s{sW}, 9"); a(f"s_add_u32 s70, s70, s{sCnt}"); a(f"s_add_u32 s70, s70, {L_OWN}")
        a(f"v_add_u32 v83, s70, v{g.vO}")
        a(f"s_lshl_b32 s70, s{sW}, 2"); a(f"s_add_u32 s70, s70, {L_GF}"); a(f"v_mov_b32 v84, s70")
        OP = 60
        SM = 32
        def post(t):
            j, q = divmod(t, 2)
            o = [f"v_rcp_f32 v{SM+4*t}, v{SM+4*t}"]
            o += [f"v_pk_mul_f32 {V(4+4*t+k,2)}, {V(4+4*t+k,2)}, {V(SM+4*t,2)} op_sel_hi:[1,0]" for k in (0, 2)]
            o += [f"v_cvt_pk_bf16_f32 v{OP+2*t+h}, v{4+4*t+2*h}, v{4+4*t+2*h+1}" for h in range(2)]
            return o[3:] if norm else o
        def out(j):
            o = [f"v_permlane32_swap_b32 v{OP+4*j+h}, v{OP+4*j+2+h}" for h in range(2)]
            if j == 3: o.append("s_mov_b32 exec_hi, 0")
            if j == 0 and g.opt.get("halo", 1): o.append("s_mov_b32 exec_lo, 0xff00ff00")
            o.append(f"buffer_store_dwordx4 {V(OP+4*j,4)}, v{g.vO}, {R(rWS)}, s{68 if j < 2 else 69} offen offset:{(j%2)*2048} sc1")
            if j == 0 and g.opt.get("halo", 1): o.append("s_mov_b32 exec_lo, -1")
            return o
        q = []
        lag = 3 if norm else 2
        for t in range(7):
            a(f"s_waitcnt lgkmcnt({12-2*t})")
            if norm and t == 5: q += out(0)
            if t >= lag: q += post(t-lag)
            if not norm and t in (4, 6): q += out(t//2 - 2)
            ms = [f"v_mfma_f32_16x16x32_bf16 {V(SM+4*t,4)}, {V(g.BI,4)}, {V(PL+4*t,4)}, 0",
                  f"v_mfma_f32_16x16x32_bf16 {V(SM+4*t,4)}, {V(g.BI0,4)}, {V(PR+4*t,4)}, {V(SM+4*t,4)}",
                  f"v_mfma_f32_16x16x32_bf16 {V(4+4*t,4)}, {V(g.VL+2*t,4)}, {V(PL+4*t,4)}, 0",
                  f"v_mfma_f32_16x16x32_bf16 {V(4+4*t,4)}, {V(g.VR+2*t,4)}, {V(PR+4*t,4)}, {V(4+4*t,4)}"]
            for n, m in enumerate(ms[2:] if norm else ms):
                a(m)
                for _ in range(1 if n == 0 else 2):
                    if q: a(q.pop(0))
        p5, p6 = post(5), post(6)
        if norm: g.emit(q + post(4) + out(1) + p5 + p6 + out(2) + out(3))
        else: g.emit(q + p5[:1] + p6[:1] + p5[1:] + p6[1:3] + out(2) + p6[3:] + out(3))
        g.stamp(10)
        a("s_mov_b32 s84, 0x20200")
        g.pwait("c2", "s84")
        for j in (3, 0, 1, 2):
            a(f"ds_write_b128 v83, {V(OP+4*j,4)} offset:{j*2048}")
            if j == 3: a("s_mov_b32 exec_hi, -1")
        a("s_waitcnt lgkmcnt(0)")
        a("s_barrier")
        g.stamp(5)
        a("v_mov_b32 v1, 0"); a("v_mov_b32 v3, 1")
        a(f"s_lshl1_add_u32 s{sT}, s{sW}, s{g.sLoc}"); a(f"s_cmp_eq_u32 s{sT}, 1")
        a("s_mov_b64 exec, 1")
        a("s_waitcnt vmcnt(0)")
        if not g.opt.get("chain"): g.stamp(13)
        a("s_barrier")
        a("s_cbranch_scc0 L_nosig2")
        a(f"buffer_store_dword v3, v1, {R(rWS)}, s{g.sFL} offen offset:8")
        a.lab("L_nosig2")
        g.stamp(12)
        a(f"s_cmp_eq_u32 s{sW}, 1"); a("s_cbranch_scc0 L_nosig3")
        for j in range(5): a(f"s_atomic_add s78, s[72:73], {WS_FL+128+256*j}")
        a.lab("L_nosig3")
        a(f"s_cmp_eq_u32 s{sT}, 0"); a("s_cbranch_scc0 L_cfin")
        a(f"buffer_store_dword v3, v1, {R(rWS)}, s{g.sFL} offen offset:8 sc1")
        a("s_branch L_cfin")
        a.lab("L_lbeta")
        g.s2_setup(); g.s2_setup2()
        a("s_mov_b32 s84, 0x20200")
        g.pwait("l", "s84")
        g.stamp(9)

    vA, vB, vE = 224, 232, 236
    sO = 72
    sOut = 82
    def s2_setup2(g):
        a = g.a
        sB5, sR = 82, 83
        a(f"s_sub_u32 s{sB5}, s{sCG}, s{sM0}"); a(f"s_mul_i32 s{sB5}, s{sB5}, 14336")
        a(f"s_add_u32 s{sT}, s{sB5}, {WS_OG}")
        a(f"s_sub_u32 s{sCnt}, {WS_OG+5*14336}, s{sB5}")
        for j in range(10):
            g.gidx(j, sR, g.sCur)
            a(f"s_mul_i32 s{sR}, s{sR}, 14336"); a(f"s_add_u32 s{g.sO+j}, s{sT if j < 5 else sCnt}, s{sR}")
    def gidx(g, j, d, t):
        a = g.a
        if g.rot == 1 or j == 0 or (g.rot == 3 and j >= 5):
            a(f"s_add_u32 s{d}, s{sM0}, {j % 5}"); a(f"s_cmp_ge_u32 s{d}, 5"); a(f"s_cselect_b32 s{t}, 5, 0"); a(f"s_sub_u32 s{d}, s{d}, s{t}")
        elif j < 5: a(f"s_cmp_lt_u32 s{sM0}, {j}"); a(f"s_cselect_b32 s{d}, {j}, {j-1}")
        else: a(f"s_mov_b32 s{d}, {j-5}")
    def s2_setup(g):
        a = g.a
        sLW, sGi = 64, 84
        a(f"s_mul_i32 s{sT}, s{sTB}, {BLK}"); a(f"s_lshl_b32 s{sCnt}, s{sLW}, 11"); a(f"s_add_u32 s{sT}, s{sT}, s{sCnt}")
        a(f"v_add_u32 v{g.vA}, s{sT}, v{g.vL16}")
        a(f"s_cmp_eq_u32 s{sLW}, 3"); a(f"s_cselect_b32 s{sT}, 0x80000000, 0"); a(f"s_add_u32 s{sT}, s{sT}, 1024")
        a(f"v_add_u32 v{g.vA+1}, s{sT}, v{g.vA}")
        if g.opt.get("halo", 1):
            a(f"s_cmp_eq_u32 s{sLW}, 0"); a(f"s_cselect_b32 s{sT}, 8, 0"); a(f"v_bfi_b32 v8, v0, 0, s{sT}"); a(f"v_lshl_or_b32 v{g.vA}, v8, 28, v{g.vA}")
        for q in range(2): a(f"v_add_u32 v{g.vA+2+q}, 7168, v{g.vA+q}")
        g.tr_addr(g.vB, "0", L_WO, 8, 9, hmul=2048)
        for tau in range(1, 4): a(f"v_xor_b32 v{g.vB+tau}, {32*tau}, v{g.vB}")
        a(f"s_lshl_b32 s{sT}, s{sM0}, 8"); a(f"s_sub_u32 s{sT}, s{g.sFL}, s{sT}")
        a("v_and_b32 v8, 3, v0"); a(f"v_cmp_le_u32 vcc, s{sM0}, v8"); a("v_addc_co_u32 v8, vcc, 0, v8, vcc"); a(f"v_lshl_add_u32 v{g.vA+4}, v8, 8, s{sT}")
        a(";cut")
        a(f"s_mul_i32 s{sT}, s{sLW}, 4608"); a(f"s_add_u32 s{sT}, s{sT}, {L_EP}")
        a("v_and_b32 v8, 15, v0"); a("v_mul_u32_u24 v8, 144, v8"); a("v_lshrrev_b32 v9, 4, v0"); a("v_lshl_add_u32 v8, v9, 3, v8"); a(f"v_add_u32 v{g.vE}, s{sT}, v8")
        a("v_mul_u32_u24 v8, 144, v1"); a("v_lshl_add_u32 v8, v2, 4, v8"); a(f"v_add_u32 v{g.vE+1}, s{sT}, v8")
        a(f"s_mul_i32 s{sT}, s{sLW}, 9216"); a(f"s_add_u32 s{sT}, s{sT}, {L_BB}"); a(f"v_add_u32 v{g.vE+2}, s{sT}, v{g.vL16}")
        a("v_mul_u32_u24 v8, 2560, v1"); a(f"v_lshl_add_u32 v{g.vE+3}, v2, 4, v8")
        a(";cut")
        a(f"s_lshl_b32 s{sGi}, s{sLW}, 5"); a(f"s_add_u32 s{sT}, s{sGi}, s{sI0}")
        a(f"s_lshl1_add_u32 s{sT}, s{sT}, s{sP}"); a(f"s_mul_i32 s{sT}, s{sT}, 1280"); a(f"s_lshl_b32 s{sCnt}, s{sCG}, 7"); a(f"s_add_u32 s{sT}, s{sT}, s{sCnt}")
        a(f"s_cmp_eq_u32 s{sJB}, 4"); a(f"s_cselect_b32 s{sCnt}, 0, 8"); a(f"s_add_u32 s{sCnt}, s{sCnt}, 96")
        a(f"s_sub_u32 s{sGi}, s{sGi}, 8")
        for e in range(4):
            a(f"s_cmp_lt_u32 s{sGi}, s{sCnt}"); a(f"s_cselect_b32 s{g.sOut}, s{sT}, 0x80000000")
            a(f"v_add_u32 v{(229,230,231,250)[e]}, s{g.sOut}, v{g.vE+3}")
            if e < 3: a(f"s_add_u32 s{sGi}, s{sGi}, 8"); a(f"s_add_u32 s{sT}, s{sT}, {8*2560}")

    def stage2(g):
        if g.opt.get("w7", 1):
            g.stage2x(2, "")
            n0 = len(g.a.L)
            g.stage2x(1, "b")
            del g.a.L[n0:g.a.L.index("L_ookb:")]
        else: g.stage2x(2, "")
    def stage2x(g, NQ, sx):
        a0 = g.a
        class A:
            def __call__(_, x): a0(re.sub(r"(L_(?:ook|opoll|mb_ret|mb0|mb|gf_ret|gf|amp))\b", lambda m: m.group(1) + sx, x))
            def lab(_, x): a0.lab(x + sx)
        a = A()
        a.lab("L_s2")
        D = g.depth
        NA = D + 2; NB = g.opt.get("nb", 8)
        AC, AF = 4, 36
        BF = AF + 8*NA
        assert BF + 16*NB <= 224, (BF, NB)
        vA, vB, vE, sO = g.vA, g.vB, g.vE, g.sO
        af = lambda k, q: AF + 8*(k % NA) + 4*q
        bf = lambda k: BF + 16*(k % NB)
        def aload(k): return [f"buffer_load_dwordx4 {V(af(k,q),4)}, v{vA+2*(k%2)+q}, {R(rWS)}, s{sO+k//2} offen sc1" for q in range(NQ)]
        def breads(k):
            return [[f"ds_read_b64_tr_b16 {V(bf(k)+4*tau+2*ab,2)}, v{(vB if k < 12 else 242)+tau} offset:{(k % 12)*4096+ab*1024}"] for tau in range(4) for ab in range(2)]
        p0 = g.opt.get("p0", 2); p1 = g.opt.get("p1", 3)
        for k in range(p0): g.emit(breads(k))
        a(f"s_mov_b32 s{sCnt}, 0"); a(f"s_add_u32 s{g.sFL}, s{g.sFL}, 128")
        a(f"s_lshl_b32 s{sT}, s{sW}, 11"); a(f"s_add_u32 s{sT}, s{sT}, {L_OWN-8192}"); a(f"v_add_u32 v3, s{sT}, v{g.vL16}")
        g.stamp(10)
        a("s_barrier")
        for k in range(2):
            for q in range(NQ): a(f"ds_read_b128 {V(af(k,q),4)}, v3 offset:{k*7168+q*1024}")
        a(f"s_lshl_b32 s{sT}, s{sW}, 2"); a(f"s_add_u32 s{sT}, s{sT}, {L_GF-16}"); a(f"v_mov_b32 v3, s{sT}"); a(f"s_mov_b32 s{g.sCur}, 0")
        a("s_waitcnt lgkmcnt(0)")
        kp = 10 - D - 1
        BBk = 20 - NB
        BBr = bf(BBk)
        assert bf(BBk+1) == BBr + 16
        GG = 240
        pend = []
        for k in range(20):
            tailf = []
            if k == 2:
                for kk in range(p0, p1): g.emit(breads(kk))
                a("s_waitcnt vmcnt(0)")
                a("s_barrier")
                if g.opt.get("prio2", 1): a("s_setprio 1")
                g.stamp(11)
                p2 = g.opt.get("p2", 5)
                for kk in range(p1, p2): g.emit(breads(kk))
                a(f"buffer_load_dword v2, v{vA+4}, {R(rWS)}, 0 offen offset:8 sc1")
                for kk in range(p2, NB): g.emit(breads(kk))
                for tau in range(4): a(f"v_subrev_u32 v{242+tau}, {L_WO-L_WO2}, v{vB+tau}")
                if g.opt.get("pp", 1):
                    a(f"buffer_load_dword v1, v{vA+4}, {R(rWS)}, 0 offen offset:8 sc1")
                    a("s_waitcnt vmcnt(1)")
                    a("v_cmp_eq_u32 vcc, 0, v2"); a("s_cbranch_vccz L_ook")
                    a(f"buffer_load_dword v2, v{vA+4}, {R(rWS)}, 0 offen offset:8 sc1")
                    a("s_waitcnt vmcnt(1)")
                    a("v_cmp_eq_u32 vcc, 0, v1"); a("s_cbranch_vccz L_ook")
                a("s_waitcnt vmcnt(0)")
                a("v_cmp_eq_u32 vcc, 0, v2"); a("s_cbranch_vccz L_ook")
                a.lab("L_opoll")
                a(f"buffer_load_dword v2, v{vA+4}, {R(rWS)}, 0 offen offset:8 sc1")
                a(f"s_add_u32 s{sCnt}, s{sCnt}, 1"); a(f"s_cmp_lt_u32 s{sCnt}, {SPIN}")
                a("s_waitcnt vmcnt(0)")
                a("v_cmp_eq_u32 vcc, 0, v2"); a("s_cbranch_scc0 L_ook"); a("s_cbranch_vccnz L_opoll")
                a.lab("L_ook")
                if NQ == 2 and g.opt.get("w7", 1): a0(f"s_cmp_eq_u32 s{sW}, 7"); a0("s_cbranch_scc1 L_ookb")
                g.stamp(12)
                if g.opt.get("smp0", 0): a(f"s_load_dword s{g.sCur}, {S(rWS,2)}, s{g.sFL} glc")
                for j in range(2, 2+D+1):
                    for x in aload(j): a(x)
                    if j == g.opt.get("gap", 3): g.emit(pend + breads(1+NB)); pend = []
                a("s_waitcnt lgkmcnt(15)")
                a(f"s_load_dword s{g.sCur}, {S(rWS,2)}, s{g.sFL} glc")
                a(f"s_waitcnt vmcnt({NQ*D})")
                g.stamp(7)
            if k == 2 and kp >= 4: tailf += [[f"s_load_dword s{g.sCur}, {S(rWS,2)}, s{g.sFL} glc"]]
            if k == kp:
                tailf += [[f"s_cmp_ge_u32 s{g.sCur}, 5", "s_cbranch_scc0 L_mb0", "L_mb_ret:"]]
                def t():
                    a.lab("L_mb0")
                    a("s_waitcnt lgkmcnt(0)")
                    a(f"s_cmp_ge_u32 s{g.sCur}, 5"); a("s_cbranch_scc1 L_mb_ret")
                    a.lab("L_mb")
                    a(f"s_load_dword s{g.sCur}, {S(rWS,2)}, s{g.sFL} glc")
                    a(f"s_add_u32 s{sCnt}, s{sCnt}, 1"); a(f"s_cmp_lt_u32 s{sCnt}, {SPIN}")
                    a("s_waitcnt lgkmcnt(0)")
                    a("s_cbranch_scc0 L_mb_ret")
                    a(f"s_cmp_ge_u32 s{g.sCur}, 5"); a("s_cbranch_scc0 L_mb")
                    a("s_branch L_mb_ret")
                g.tail.append(t)
            if k >= 2 and k + D + 1 < 20: tailf += [[x] for x in aload(k+D+1)]
            if 1 <= k and k != 2 and k-1+NB < 20: pend += breads(k-1+NB)
            kb = g.opt.get("kb", 17)
            if k == kb - 2: tailf = [["ds_read_b32 v2, v3"]] + tailf
            if k == kb:
                assert not pend
                a("v_cmp_eq_u32 vcc, 0, v2")
                pend += [[], ["s_cbranch_vccnz L_gf", "L_gf_ret:"]] + [[f"ds_read_b128 {V(BBr+4*j,4)}, v{vE+2} offset:{1024*j}"] for j in range(4*NQ)] + [[f"ds_read_b64 v[{GG}:{GG+1}], v{vE+2} offset:8192"]]
                def t():
                    a.lab("L_gf")
                    a("ds_read_b32 v2, v3"); a("s_waitcnt lgkmcnt(0)")
                    a("v_cmp_eq_u32 vcc, 0, v2"); a("s_cbranch_vccz L_gf_ret")
                    a("s_sleep 1"); a("s_branch L_gf")
                g.tail.append(t)
            nrd = g.opt.get("nrd", 6)
            if k < 2: nrd = 0
            rd = pend[:nrd]; pend = pend[nrd:]
            slots = [[] for _ in range(8)]
            for j, grp in enumerate(rd): slots[j] += grp
            for j, grp in enumerate(tailf): slots[8-len(tailf)+j] += grp
            n = 0
            if NQ == 1: slots = [slots[2*j] + slots[2*j+1] for j in range(4)]
            for q in range(NQ):
                for tau in range(4):
                    acc = V(AC+16*q+4*tau, 4)
                    a(f"v_mfma_f32_16x16x32_bf16 {acc}, {V(bf(k)+4*tau,4)}, {V(af(k,q),4)}, {'0' if k == 0 else acc}")
                    for x in slots[n]:
                        if x.endswith(":"): a.lab(x[:-1])
                        else: a(x)
                    n += 1
            if g.opt.get("kst"):
                if k > 0: a(f"v_writelane_b32 v253, s{(26, 0)[(k-1) % 2]}, {32 + k - 1}")
                a(f"s_memtime {('s[26:27]', 's[0:1]')[k % 2]}")
            if 2 <= k < 19:
                a(f"s_waitcnt vmcnt({NQ*min(D, 18-k)})" + (f" lgkmcnt({len([x for x in rd if x and x[0].startswith('ds_')])})" if k + 1 >= NB else ""))
        assert not pend
        def epi(q):
            sel = "op_sel_hi:[1,0,1]" if q == 0 else "op_sel:[0,1,0] op_sel_hi:[1,1,1]"
            o = []
            for tau in range(4):
                b = BBr + 16*q + 4*tau
                o += [f"v_pk_fma_f32 {V(b+k,2)}, {V(AC+16*q+4*tau+k,2)}, {V(GG,2)}, {V(b+k,2)} {sel}" for k in (0, 2)]
                o += [f"v_cvt_pk_bf16_f32 v{b+h}, v{b+2*h}, v{b+2*h+1}" for h in range(2)]
                o += [f"ds_write_b64 v{vE}, {V(b,2)} offset:{q*2304+32*tau}"]
            o += [f"ds_read_b128 {V(af(16,0)+8*q+4*e,4)}, v{vE+1} offset:{q*2304+e*8*144}" for e in range(2)]
            return o
        a("s_waitcnt lgkmcnt(0)")
        g.stamp(13)
        for q in range(NQ): g.emit(epi(q))
        assert af(17, 0) == af(16, 0) + 8
        for e in range(2*NQ):
            a(f"s_waitcnt lgkmcnt({(7,6,1,0)[e + 4 - 2*NQ]})")
            a(f"buffer_store_dwordx4 {V(af(16,0)+4*e,4)}, v{(229,230,231,250)[e]}, {R(rOUT)}, 0 offen {g.opt.get('outfl','')}")
        if not g.opt.get("chain"): g.stamp(14)
        if g.stamps:
            a("s_waitcnt vmcnt(0)"); g.stamp(15)
            a(f"v_writelane_b32 v253, s{sCnt}, 29")
        if g.opt.get("amp"):
            r = g.sreg(g.opt.get("ampk", 15))
            a("s_waitcnt lgkmcnt(0)")
            a(f"s_sub_u32 s60, s{r}, s86"); a(f"s_mul_i32 s60, s60, {g.opt['amp']}")
            a.lab("L_amp")
            a("s_sleep 2"); a("s_memtime s[62:63]"); a("s_waitcnt lgkmcnt(0)")
            a("s_sub_u32 s61, s62, s86"); a("s_cmp_lt_u32 s61, s60"); a("s_cbranch_scc1 L_amp")
        g.dump_stamps(16)
        a("s_endpgm")

    def argmax(g, v, sKey, sTmp):
        a = g.a
        a("v_cmp_gt_u32 vcc, 56, v0")
        a(f"v_cndmask_b32_e64 v{v}, 0, v{v}, vcc")
        for d in ("quad_perm:[1,0,3,2]", "quad_perm:[2,3,0,1]", "row_half_mirror", "row_mirror"):
            a(f"v_max_u32_dpp v{v}, v{v}, v{v} {d} row_mask:0xf bank_mask:0xf")
        a(f"v_readlane_b32 s{sKey}, v{v}, 0"); a(f"v_readlane_b32 s{sTmp}, v{v}, 16")
        a(f"s_max_u32 s{sKey}, s{sKey}, s{sTmp}")
        a(f"v_readlane_b32 s{sTmp}, v{v}, 32"); a(f"s_max_u32 s{sKey}, s{sKey}, s{sTmp}")
        a(f"v_readlane_b32 s{sTmp}, v{v}, 48"); a(f"s_max_u32 s{sKey}, s{sKey}, s{sTmp}")
    def keyidx(g, sKey, sIdx):
        g.a(f"s_andn2_b32 s{sIdx}, 0x7ff, s{sKey}")

    def bf16r(g, r):
        g.a(f"v_cvt_pk_bf16_f32 v{r}, v{r}, v{r}"); g.a(f"v_and_b32 v{r}, 0xffff0000, v{r}")
    def sigmoid(g, d, s):
        a = g.a
        a(f"v_mul_f32 v{d}, {f32(-math.log2(math.e))}, v{s}")
        a(f"v_exp_f32 v{d}, v{d}")
        a(f"v_add_f32 v{d}, 1.0, v{d}")
        a(f"v_rcp_f32 v{d}, v{d}")

    def cfin(g):
        a = g.a
        a.lab("L_cfin")
        a("s_mov_b64 exec, -1")
        sKey, sD = g.sKey, g.sD
        Y, BB = 128, 88
        g.keyidx(g.sKey, 65)
        a(f"s_lshr_b32 s{sT}, s65, 1"); a(f"s_sub_u32 s{g.sD}, s{sT}, s{g.sD}")
        a(f"s_and_b32 s{sT}, s65, 1"); a(f"s_cmp_eq_u32 s{sT}, s{sP}"); a(f"s_cselect_b32 s{g.sD}, s{g.sD}, 64")
        for k in range(16):
            a(f"v_lshlrev_b32 v{BB+2*k}, 16, v{g.XR+k}")
            a(f"v_and_b32 v{BB+2*k+1}, 0xffff0000, v{g.XR+k}")
        a(f"s_mov_b32 s{sCnt}, 0")
        a.lab("L_gchk")
        a("v_max_u32 v2, v86, v87"); a(f"v_cmp_eq_u32 vcc, {POISON}, v2"); a("s_cbranch_vccnz L_gpoll")
        a.lab("L_gok")
        a(f"s_mul_i32 s{sT}, s{sW}, 9216"); a(f"s_add_u32 s{sT}, s{sT}, {L_BB}"); a(f"v_add_u32 v85, s{sT}, v{g.vL16}")
        a("v_sub_f32 v2, 1.0, v86"); a("v_sub_f32 v3, 1.0, v87")
        a("ds_write_b64 v85, v[86:87] offset:8192")
        for k in range(32): a(f"v_mul_f32 v{BB+k}, v{2+k//16}, v{BB+k}")
        if g.opt.get("pert1"):
            a(f"s_lshl3_add_u32 s{sT}, s2, s{sW}"); a(f"s_cmp_eq_u32 s{sT}, {40*8+1}"); a("s_cselect_b64 exec, 1, 0")
            a(f"v_add_f32 v{BB}, {f32(g.opt['pert1'])}, v{BB}"); a("s_mov_b64 exec, -1")
        if g.opt.get("pertall"):
            for k in range(32): a(f"v_add_f32 v{BB+k}, {f32(g.opt['pertall'])}, v{BB+k}")
        a(f"s_cmp_lt_u32 s{sD}, 32"); a("s_cbranch_scc1 L_y")
        a.lab("L_yret")
        for j in range(8): a(f"ds_write_b128 v85, {V(BB+4*j,4)} offset:{1024*j}")
        a("ds_write_b32 v84, v84")
        g.stamp(11)
        a("s_waitcnt lgkmcnt(0)")
        g.dump_stamps(15)
        a("s_endpgm")
        a.lab("L_gpoll")
        for q in range(2): a(f"buffer_load_dword v{86+q}, v{78+q}, {R(rWS)}, s67 offen offset:{64*q} sc1")
        a(f"s_add_u32 s{sCnt}, s{sCnt}, 1"); a(f"s_cmp_lt_u32 s{sCnt}, {SPIN}")
        a("s_waitcnt vmcnt(0)")
        a("s_cbranch_scc1 L_gchk")
        a("s_branch L_gok")
        a.lab("L_y")
        a("v_and_b32 v1, 48, v0"); a(f"s_lshl_b32 s{sT}, s{sCG}, 8"); a(f"s_add_u32 s{sT}, s{sT}, {WS_Y2}")
        a(f"s_mov_b32 s{sCnt}, 0")
        a.lab("L_ypoll")
        for tau in range(4): a(f"buffer_load_dwordx4 {V(Y+8+4*tau,4)}, v1, {R(rWS)}, s{sT} offen offset:{64*tau} sc1")
        a(f"s_add_u32 s{sCnt}, s{sCnt}, 1"); a(f"s_cmp_lt_u32 s{sCnt}, {SPIN}")
        a("s_waitcnt vmcnt(0)")
        g.poison_max(Y+8, 16, 6)
        a(f"v_cmp_eq_u32 vcc, {POISON}, v6")
        a("s_cbranch_scc0 L_yok"); a("s_cbranch_vccz L_yok"); a("s_sleep 3"); a("s_branch L_ypoll")
        a.lab("L_yok")
        a(f"s_and_b32 s{sT}, s{sD}, 15"); a(f"v_cmp_eq_u32 vcc, s{sT}, v77")
        a(f"s_cmp_lt_u32 s{sD}, 16")
        a("s_mov_b64 exec, vcc")
        a("s_cbranch_scc0 L_y1")
        for q in range(2):
            if q: a.lab("L_y1")
            for k in range(16): a(f"v_fmac_f32 v{BB+16*q+k}, v{2+q}, v{Y+8+k}")
            a("s_mov_b64 exec, -1")
            a("s_branch L_yret")

    def aux(g):
        a = g.a
        a.lab("L_aux")
        if g.opt.get("noaux"): a("s_endpgm")
        sA, sF, sHalf, sTmp, sU0 = 56, 57, 58, 59, 60
        r1, r2, rD = 64, 68, 72
        rWR, rGW = 76, 80
        rC = 64
        A_D = 81920
        A_WR, A_GW = 122880, 124928
        A_XS = 126976
        A_PRE = 129024
        A_MAX = 129536
        NCLR = 1
        a(f"s_sub_u32 s{sA}, s{sJ}, 25")
        a(f"s_lshr_b32 s{sF}, s{sA}, 1"); a(f"s_lshl3_add_u32 s{sF}, s{sF}, s{sX}")
        a(f"s_and_b32 s{sT}, s{sA}, 1"); a(f"s_lshl1_add_u32 s{sF}, s{sF}, s{sT}")
        a(f"s_add_u32 s{sT}, s{sX}, 48"); a(f"s_cmp_eq_u32 s{sA}, 6"); a(f"s_cselect_b32 s{sF}, s{sT}, s{sF}")
        a("v_lshrrev_b32 v1, 3, v0"); a("v_and_b32 v2, 7, v0")
        a(f"s_cmp_ge_u32 s{sW}, 5"); a("s_cbranch_scc1 L_aux_hi")
        a(f"s_lshr_b32 s{sU0}, s{sX}, 2"); a(f"s_and_b32 s{sT}, s{sX}, 1"); a(f"s_lshl1_add_u32 s{sU0}, s{sU0}, s{sT}")
        a(f"s_mul_i32 s{sTmp}, s{sA}, 5"); a(f"s_add_u32 s{sTmp}, s{sTmp}, s{sW}")
        a(f"s_lshl_b32 s{sU0}, s{sU0}, 8"); a(f"s_lshl3_add_u32 s{sU0}, s{sTmp}, s{sU0}")
        a(f"v_add_u32 v3, s{sU0}, v1")
        a(f"v_lshl_add_u32 v4, v3, 1, s{sP}")
        a("v_mul_u32_u24 v5, 1280, v4"); a("v_lshl_add_u32 v5, v2, 4, v5")
        a(f"s_cmp_lt_u32 s{sTmp}, 32"); a(f"s_cselect_b32 s{sT}, 0, 0x80000000")
        a(f"v_or_b32 v5, s{sT}, v5")
        g.ptrs()
        XD, WD = 8, 48
        for n in range(10):
            c = (n + g.opt.get("ax0", 0)) % 10
            a(f"buffer_load_dwordx4 {V(XD+4*c,4)}, v5, {R(rX)}, 0 offen offset:{128*c}")
            if n % 2 == 1 and n < 9: a("s_barrier")
        g.ptrs2()
        a(f"v_mov_b32 v136, {63*4}")
        a("v_lshlrev_b32 v6, 4, v2")
        a(f"v_add_u32 v6, {A_WR}, v6")
        a("s_barrier")
        a(f"v_mov_b32 v7, {A_MAX}")
        a(f"s_cmp_lt_u32 s{sTmp}, 32"); a("s_cbranch_scc1 L_aux_rg")
        a(f"s_mov_b64 {S(rC,2)}, {S(rWS,2)}"); g.srd_consts(rC, WS_Y + 54*2560)
        for k in range(4): a(f"v_mov_b32 v{132+k}, {POISON}")
        a(f"s_mul_i32 s{sT}, s{sX}, 3"); a(f"s_add_u32 s{sT}, s{sT}, s{sW}"); a(f"s_mul_i32 s{sT}, s{sT}, {6*1024}"); a(f"s_add_u32 s{sT}, s{sT}, {WS_Y-2*6*1024}")
        a(f"v_lshl_add_u32 v5, v0, 4, s{sT}"); a("v_add_u32 v6, 3072, v5")
        for k in range(6): a(f"buffer_store_dwordx4 v[132:135], v{5+k//3}, {R(rC)}, 0 offen offset:{1024*(k%3)} sc1")
        a("s_waitcnt vmcnt(0)")
        a(f"s_load_dword s85, {S(rDBG,2)}, {63*4}")
        a("s_branch L_aux_rgdone")
        a.lab("L_aux_rg")
        g.stamp(6)
        for c in range(10):
            a(f"ds_read_b128 {V(WD+8*c,4)}, v6 offset:{128*c}")
            a(f"ds_read_b128 {V(WD+8*c+4,4)}, v6 offset:{2048+128*c}")
        for k in range(4): a(f"v_mov_b32 v{128+k}, 0")
        a(f"s_waitcnt vmcnt(0) lgkmcnt(0)")
        a(f"s_load_dword s85, {S(rDBG,2)}, {63*4}")
        for c in range(10):
            for k in range(4):
                a(f"v_dot2c_f32_bf16 v{128+(k&1)}, v{XD+4*c+k}, v{WD+8*c+k}")
                a(f"v_dot2c_f32_bf16 v{130+(k&1)}, v{XD+4*c+k}, v{WD+8*c+4+k}")
        a("v_add_f32 v128, v128, v129"); a("v_add_f32 v130, v130, v131")
        for d in ("quad_perm:[1,0,3,2]", "quad_perm:[2,3,0,1]", "row_half_mirror"):
            a(f"v_add_f32_dpp v128, v128, v128 {d} row_mask:0xf bank_mask:0xf")
            a(f"v_add_f32_dpp v130, v130, v130 {d} row_mask:0xf bank_mask:0xf")
        g.bf16r(130); g.sigmoid(130, 130); g.bf16r(130)
        g.bf16r(128)
        a("v_ashrrev_i32 v129, 31, v128"); a("v_or_b32 v129, 0x80000000, v129"); a("v_xor_b32 v128, v128, v129")
        a("v_and_b32 v128, 0xffff0000, v128"); a("v_sub_u32 v129, 0xffff, v4"); a("v_or_b32 v128, v128, v129")
        a.lab("L_aux_rgdone")
        a(f"s_lshl_b32 s{sT}, s{sP}, 12"); a(f"s_add_u32 s{sT}, s{sT}, {WS_G}")
        a("v_lshlrev_b32 v3, 2, v3")
        a(f"s_mov_b32 s{sCnt}, 0")
        a("s_waitcnt lgkmcnt(0)")
        a("v_mov_b32 v137, s85")
        a.lab("L_aux_init")
        a("v_cmp_eq_u32 vcc, 0, v137"); a("s_cbranch_vccz L_aux_initok")
        a(f"buffer_load_dword v137, v136, {R(rDBG)}, 0 offen sc1")
        a(f"s_add_u32 s{sCnt}, s{sCnt}, 1"); a(f"s_cmp_lt_u32 s{sCnt}, {SPIN}")
        a("s_waitcnt vmcnt(0)")
        a("s_cbranch_scc1 L_aux_init")
        a.lab("L_aux_initok")
        a(f"s_cmp_lt_u32 s{sTmp}, 32"); a("s_cbranch_scc0 L_aux_norg")
        a("s_mov_b32 exec_lo, 0x01010101"); a("s_mov_b32 exec_hi, 0x01010101")
        a("ds_max_u32 v7, v128")
        a(f"buffer_store_dword v130, v3, {R(rWS)}, s{sT} offen sc1")
        a.lab("L_aux_norg")
        a.lab("L_aux_arr")
        a("s_mov_b64 exec, 1")
        a("v_mov_b32 v129, 1")
        a("s_waitcnt lgkmcnt(0)")
        a("ds_add_rtn_u32 v131, v7, v129 offset:4")
        a("ds_read_b32 v128, v7")
        a(f"s_lshl3_add_u32 s{sT}, s{sA}, s{sX}"); a(f"s_lshl_b32 s{sT}, s{sT}, 7"); a(f"s_add_u32 s{sT}, s{sT}, {WS_F}")
        a("s_waitcnt lgkmcnt(0)")
        a("v_cmp_eq_u32 vcc, 4, v131"); a(f"v_readfirstlane_b32 s{sCnt}, v128"); a("s_cbranch_vccz L_aux_nopub")
        a(f"s_atomic_add s{sCnt}, {S(rWS,2)}, s{sT}")
        a("s_waitcnt lgkmcnt(0)")
        a.lab("L_aux_nopub")
        a("s_mov_b64 exec, -1")
        g.stamp(1)
        a(f"s_cmp_ge_u32 s{sF}, 54"); a("s_cbranch_scc1 L_aux_end")
        a(f"s_cmp_eq_u32 s{sW}, 4"); a("s_cbranch_scc0 L_aux_f1")
        a(f"s_lshl_b32 s{sT}, s{sF}, 7"); a(f"s_add_u32 s{sT}, s{sT}, {WS_K}")
        a(f"s_mov_b32 s{sCnt}, 0")
        a.lab("L_aux_key")
        a(f"s_load_dword s84, {S(rWS,2)}, s{sT} glc")
        a(f"s_add_u32 s{sCnt}, s{sCnt}, 1")
        a("s_waitcnt lgkmcnt(0)")
        a(f"s_cmp_lt_u32 s{sCnt}, {SPIN}"); a("s_cselect_b32 s84, s84, 1")
        a("s_cmp_eq_u32 s84, 0"); a("s_cbranch_scc1 L_aux_key")
        g.keyidx(84, 85)
        a("s_mul_i32 s85, s85, 1280")
        a("v_lshl_add_u32 v1, v0, 4, s85")
        a(f"s_mov_b32 m0, {A_XS}")
        a(f"buffer_load_dwordx4 v1, {R(rX)}, 0 offen lds")
        a(f"buffer_load_dwordx4 v1, {R(rX)}, 0 offen offset:1024 lds")
        g.stamp(2)
        a("v_mov_b32 v2, s84")
        a("s_waitcnt vmcnt(0)")
        a("ds_write_b32 v7, v2 offset:8")
        a("s_waitcnt lgkmcnt(0)")
        a("s_barrier")
        a("s_branch L_aux_f2")
        a.lab("L_aux_hi")
        sV = 84
        a(f"s_sub_u32 s{sV}, s{sW}, 5")
        a(f"s_cmp_eq_u32 s{sV}, 0"); a("s_cbranch_scc0 L_aux_w67")
        a("v_mul_u32_u24 v3, 4370, v0"); a("v_lshrrev_b32 v3, 16, v3")
        a("v_mul_u32_u24 v4, 15, v3"); a("v_sub_u32 v4, v0, v4")
        a("v_mul_u32_u24 v5, 52, v4"); a("v_lshrrev_b32 v5, 8, v5")
        a("v_mul_u32_u24 v5, 640, v5"); a("v_lshl_add_u32 v5, v4, 7, v5")
        a(f"v_mul_u32_u24 v3, {4*3840}, v3")
        a(f"s_lshr_b32 s{sT}, s{sX}, 1"); a(f"s_lshl4_add_u32 s{sT}, s{sA}, s{sT}"); a(f"s_mul_i32 s{sT}, s{sT}, 6"); a(f"s_and_b32 s{sTmp}, s{sX}, 1")
        a(f"s_add_u32 s{sT}, s{sT}, s{sTmp}"); a(f"s_mul_i32 s{sT}, s{sT}, 640")
        a(f"v_add3_u32 v5, s{sT}, v5, v3")
        a("v_cmp_gt_u32 vcc, 60, v0"); a("v_bfrev_b32 v6, 1"); a("v_cndmask_b32_e64 v5, v6, v5, vcc")
        g.ptrs()
        mb = g.opt.get("mb", 0)
        m0_ = g.opt.get("aw0", 0)
        for n in range(6):
            nn = n - g.opt.get("awd", 0)
            if nn >= 0 and m0_ + 7*nn < 40:
                a(f"s_mov_b32 s{sT}, {(m0_ + 7*nn)*16*3840}")
                a(f"buffer_load_dword v{10+n}, v5, {R(rW)}, s{sT} offen")
            if n >= 1: a("s_barrier")
        g.ptrs2()
        a("s_branch L_aux_hi2")
        a.lab("L_aux_w67")
        a("v_lshlrev_b32 v6, 4, v0")
        a(f"v_mov_b32 v7, {A_MAX}"); a("v_mov_b32 v8, 0"); a("v_mov_b32 v9, 0")
        a("ds_write_b64 v7, v[8:9]"); a("ds_write_b64 v7, v[8:9] offset:8")
        for r in (rWR, rGW): g.srd_consts(r, 1280)
        if g.opt.get("codepf", 0):
            a(f"s_sub_u32 s{sTmp}, s{sA}, 2"); a(f"s_cmp_ge_u32 s{sTmp}, 4"); a("s_cbranch_scc1 L_aux_nocpf"); a(f"s_cmp_eq_u32 s{sV}, 2"); a("s_cbranch_scc0 L_aux_nocpf")
            a("s_getpc_b64 s[88:89]" if not g.stamps else "s_getpc_b64 s[98:99]")
            pc = 88 if not g.stamps else 98
            a.lab("L_pc")
            a(f"s_sub_u32 s{pc}, s{pc}, L_pc-{KN}_kernel"); a(f"s_subb_u32 s{pc+1}, s{pc+1}, 0")
            a(f"s_lshl_b32 s{sT}, s{sTmp}, 13")
            a(f"v_lshl_add_u32 v3, v0, 7, s{sT}")
            a(f"v_min_u32 v3, L_end-{KN}_kernel, v3")
            a(f"global_load_dword v10, v3, s[{pc}:{pc+1}]")
            a.lab("L_aux_nocpf")
        g.ptrs(); g.ptrs2()
        a(f"s_mov_b64 {S(rWR,2)}, s[12:13]"); a(f"s_mov_b64 {S(rGW,2)}, s[20:21]")
        a(f"s_cmp_eq_u32 s{sV}, 1"); a("s_cbranch_scc0 L_aux_w7")
        a(f"s_mov_b32 m0, {A_WR}")
        a(f"buffer_load_dwordx4 v6, {R(rWR)}, 0 offen lds"); a(f"buffer_load_dwordx4 v6, {R(rWR)}, 0 offen offset:1024 lds")
        a(f"s_mov_b32 m0, {A_GW}")
        a(f"buffer_load_dwordx4 v6, {R(rGW)}, 0 offen lds"); a(f"buffer_load_dwordx4 v6, {R(rGW)}, 0 offen offset:1024 lds")
        a.lab("L_aux_w7")
        a("v_lshlrev_b32 v3, 7, v0")
        a(f"s_lshl3_add_u32 s{sTmp}, s2, s{sW}"); a(f"s_cmp_eq_u32 s{sTmp}, {255*8+7}"); a("s_cbranch_scc0 L_aux_nn0")
        for k in range(4): a(f"v_mov_b32 v{12+k}, {POISON}")
        for off in (WS_AR, WS_F, WS_K):
            a(f"s_mov_b32 s{sT}, {off}"); a(f"buffer_store_dword v8, v3, {R(rWS)}, s{sT} offen sc1")
        for k in range(11):
            if k % 4 == 0: a(f"s_mov_b32 s{sT}, {WS_G+1024*k}")
            a(f"buffer_store_dwordx4 v[12:15], v6, {R(rWS)}, s{sT} offen offset:{1024*(k%4)} sc1")
        a.lab("L_aux_nn0")
        a("s_barrier")
        a(f"s_cmp_eq_u32 s{sTmp}, {255*8+7}"); a("s_cbranch_scc0 L_aux_nn1")
        a("s_waitcnt vmcnt(0)")
        a(f"s_mov_b32 s85, 1"); a(f"s_atomic_add s85, {S(rDBG,2)}, {63*4}")
        g.stamp(1)
        a.lab("L_aux_nn1")
        for c in range(3): a("s_barrier")
        a("s_waitcnt vmcnt(0)")
        a("s_barrier")
        a("v_min_u32 v4, 59, v0"); a("v_mul_u32_u24 v5, 52, v4"); a("v_lshrrev_b32 v5, 8, v5"); a(f"v_mul_u32_u24 v5, {4*1280-640}, v5"); a("v_lshl_add_u32 v4, v4, 7, v5")
        a(f"s_lshl1_add_u32 s{sT}, s{sA}, s{sV}"); a(f"s_sub_u32 s{sT}, s{sT}, 1"); a(f"s_mul_i32 s{sT}, s{sT}, 96"); a(f"s_add_u32 s{sT}, s{sT}, s{sX}"); a(f"s_mul_i32 s{sT}, s{sT}, 640")
        a(f"v_add_u32 v4, s{sT}, v4")
        if g.opt.get("wot", 2) == 0:
            a(f"s_lshl3_add_u32 s{sT}, s{sA}, s{sX}"); a(f"s_lshl1_add_u32 s{sT}, s{sT}, s{sV}"); a(f"s_sub_u32 s{sT}, s{sT}, 1"); a(f"s_lshl_b32 s{sT}, s{sT}, 13"); a(f"v_add_u32 v4, s{sT}, v3")
        if g.opt.get("wot", 2) < 2: a(f"buffer_load_dword v10, v4, {R(rWO)}, 0 offen")
        a(f"s_cmp_eq_u32 s{sTmp}, {255*8+7}"); a("s_cbranch_scc0 L_aux_hi2")
        a(f"s_mov_b32 s{sCnt}, 0"); a(f"s_mov_b32 s{sT}, {WS_F}")
        a.lab("L_aux_col")
        a(f"buffer_load_dword v11, v3, {R(rWS)}, s{sT} offen sc1")
        a(f"s_add_u32 s{sCnt}, s{sCnt}, 1")
        a("s_waitcnt vmcnt(0)")
        a("v_cmp_eq_u32 vcc, 0, v11")
        a("s_and_b32 vcc_hi, vcc_hi, 0x00ffffff")
        a(f"s_cmp_lt_u32 s{sCnt}, {SPIN}"); a("s_cselect_b64 vcc, vcc, 0")
        a("s_cmp_eq_u64 vcc, 0"); a("s_cbranch_scc0 L_aux_col")
        g.argmax(11, sCnt, sT)
        a(f"v_mov_b32 v11, s{sCnt}"); a(f"s_mov_b32 s{sT}, {WS_K}")
        a(f"buffer_store_dword v11, v3, {R(rWS)}, s{sT} offen sc1")
        a(f"s_atomic_add s{sCnt}, {S(rDBG,2)}, {0*4}")
        a("s_waitcnt lgkmcnt(0)")
        a.lab("L_aux_hi2")
        a("v_mov_b32 v11, v4")
        l2 = g.opt.get("l2", 0)
        if l2:
            g.wtouch_addr(12, 13, 14)
            a(f"s_bfe_u32 s{sT}, s2, 0x20001"); a(f"s_add_u32 s{sCnt}, s{sT}, s{sV}"); a(f"s_add_u32 s{sCnt}, s{sCnt}, 1"); a(f"s_and_b32 s{sCnt}, s{sCnt}, 3")
            a(f"s_sub_u32 s{sT}, s{sCnt}, s{sT}"); a(f"s_lshl4_add_u32 s{sT}, s{sA}, s{sT}"); a(f"s_add_u32 s{sT}, s{sT}, {64*l2}"); a(f"s_mul_i32 s{sT}, s{sT}, 3840")
            a(f"v_add_u32 v14, s{sT}, v14"); a("v_cmp_gt_u32 vcc, 60, v0"); a("v_bfrev_b32 v12, 1"); a("v_cndmask_b32_e64 v14, v12, v14, vcc")
            a(f"s_and_b32 s{sT}, s{sX}, 5"); a(f"s_xor_b32 s{sT}, s{sT}, 1"); a(f"s_lshr_b32 s{sCnt}, s{sT}, 2"); a(f"s_and_b32 s{sT}, s{sT}, 1"); a(f"s_lshl1_add_u32 s{sT}, s{sCnt}, s{sT}")
            a(f"s_lshl_b32 s{sT}, s{sT}, 9"); a(f"s_add_u32 s{sT}, s{sT}, s{sP}"); a(f"s_mul_i32 s{sT}, s{sT}, 1280")
            a("v_mul_u32_u24 v15, 2560, v0"); a(f"v_add_u32 v15, s{sT}, v15")
            def xt(n):
                if 21*n >= 4*(10-l2): return
                sk = g.lab("xt")
                a(f"s_mul_i32 s{sCnt}, s{sA}, 3"); a(f"s_add_u32 s{sCnt}, s{sCnt}, s{sV}"); a(f"s_add_u32 s{sCnt}, s{sCnt}, {21*n + 4*l2}")
                a(f"s_cmp_lt_u32 s{sCnt}, 40"); a(f"s_cbranch_scc0 {sk}")
                a(f"s_and_b32 s{sT}, s{sCnt}, 3"); a(f"s_mul_i32 s{sT}, s{sT}, {64*2560}"); a(f"s_lshr_b32 s{sCnt}, s{sCnt}, 2"); a(f"s_lshl_b32 s{sCnt}, s{sCnt}, 7"); a(f"s_add_u32 s{sT}, s{sT}, s{sCnt}")
                a(f"buffer_load_dword v10, v15, {R(rX)}, s{sT} offen")
                a.lab(sk)
                a("s_waitcnt vmcnt(1)")
            for n in range(-(-(40 - 4*l2) // 7)):
                a(f"buffer_load_dword v10, v14, {R(rW)}, 0 offen")
                a(f"v_add_u32 v14, {7*16*3840}, v14")
                a("s_waitcnt vmcnt(1)")
                if n in (0, 2): xt(n // 2)
        def inbox():
            a("v_lshlrev_b32 v6, 7, v0")
            a(f"s_mul_i32 s{sCnt}, s{sA}, 3"); a(f"s_sub_u32 s{sCnt}, s{sV}, s{sCnt}"); a(f"s_add_u32 s{sCnt}, s{sCnt}, 18")
            lp = g.lab("ib"); a.lab(lp)
            a(f"s_mul_i32 s{sT}, s{sCnt}, 57"); a(f"s_lshr_b32 s{sT}, s{sT}, 9")
            a(f"s_mul_i32 s{sTmp}, s{sT}, {BLK-9*8192}"); a(f"s_lshl_b32 s{sT}, s{sCnt}, 13"); a(f"s_add_u32 s{sTmp}, s{sTmp}, s{sT}")
            a(f"s_lshr_b32 s{sT}, s{sX}, 1"); a(f"s_mul_i32 s{sT}, s{sT}, {5*BLK}"); a(f"s_add_u32 s{sTmp}, s{sTmp}, s{sT}")
            a(f"s_and_b32 s{sT}, s{sX}, 1"); a(f"s_mul_i32 s{sT}, s{sT}, 71680"); a(f"s_add_u32 s{sTmp}, s{sTmp}, s{sT}")
            a(f"buffer_load_dword v10, v6, {R(rWS)}, s{sTmp} offen sc1")
            a("s_waitcnt vmcnt(1)")
            a(f"s_add_u32 s{sCnt}, s{sCnt}, 21"); a(f"s_cmp_lt_u32 s{sCnt}, 45"); a(f"s_cbranch_scc1 {lp}")
        if g.opt.get("ibm", 1):
            def inbox():
                a(f"s_mul_i32 s{sCnt}, s{sA}, 3"); a(f"s_add_u32 s{sCnt}, s{sCnt}, s{sV}")
                lp = g.lab("ib"); a.lab(lp)
                a(f"s_and_b32 s{sT}, s{sCnt}, 7"); a(f"s_add_u32 s{sT}, s{sT}, 1")
                a(f"s_lshr_b32 s{sTmp}, s{sT}, 1"); a(f"s_sub_u32 s{sTmp}, s{sTmp}, 4")
                a("v_and_b32 v6, 3, v0"); a(f"v_add_u32 v6, s{sTmp}, v6"); a(f"s_lshl_b32 s{sTmp}, s{sT}, 31"); a(f"v_xor_b32 v6, s{sTmp}, v6"); a("v_and_b32 v6, 0x80000000, v6")
                a("v_min_u32 v7, 55, v0"); a("v_lshl_or_b32 v6, v7, 7, v6")
                a(f"s_mul_i32 s{sTmp}, s{sT}, 7168"); a(f"s_lshr_b32 s{sT}, s{sCnt}, 3"); a(f"s_mul_i32 s{sT}, s{sT}, {BLK}"); a(f"s_add_u32 s{sTmp}, s{sTmp}, s{sT}")
                a(f"s_lshr_b32 s{sT}, s{sX}, 1"); a(f"s_mul_i32 s{sT}, s{sT}, {5*BLK}"); a(f"s_add_u32 s{sTmp}, s{sTmp}, s{sT}")
                a(f"s_and_b32 s{sT}, s{sX}, 1"); a(f"s_mul_i32 s{sT}, s{sT}, 71680"); a(f"s_add_u32 s{sTmp}, s{sTmp}, s{sT}")
                a(f"buffer_load_dword v10, v6, {R(rWS)}, s{sTmp} offen sc1")
                a(f"s_add_u32 s{sCnt}, s{sCnt}, 21"); a(f"s_cmp_lt_u32 s{sCnt}, 40"); a(f"s_cbranch_scc1 {lp}")
        ib = g.opt.get("ib", 2)
        if ib == 1: inbox()
        if ib == 2:
            a(f"s_cmp_ge_u32 s{sF}, 54"); a("s_cbranch_scc0 L_aux_hi3")
            inbox()
            a(f"s_cmp_eq_u32 s{sV}, 0"); a("s_cbranch_scc1 L_aux_end"); a(f"buffer_load_dword v10, v11, {R(rWO)}, 0 offen")
            a.lab("L_aux_hi3")
        a(f"s_cmp_ge_u32 s{sF}, 54"); a("s_cbranch_scc1 L_aux_end")
        if g.opt.get("fdelay"): a(f"s_sleep {g.opt['fdelay']}")
        a(f"s_and_b32 s{sHalf}, s{sF}, 1")
        for r in (r1, r2, rD): g.srd_consts(r, 640*3456)
        a(f"s_cmp_eq_u32 s{sHalf}, 0")
        a(f"s_cselect_b64 {S(r1,2)}, s[14:15], s[16:17]"); a(f"s_cselect_b64 {S(r2,2)}, s[16:17], s[14:15]")
        a(f"s_mov_b64 {S(rD,2)}, s[18:19]")
        a("v_lshrrev_b32 v3, 2, v0"); a("v_mul_u32_u24 v3, 3456, v3")
        a("v_and_b32 v4, 2, v1"); a("v_and_b32 v5, 3, v0"); a("v_xor_b32 v4, v4, v5")
        a("v_lshl_add_u32 v3, v4, 4, v3")
        a(f"s_lshl_b32 s{sT}, s{sF}, 6"); a(f"v_add_u32 v3, s{sT}, v3")
        if g.opt.get("noffn"):
            for r in (r1, r2, rD): a(f"s_mov_b32 s{r+2}, 0")
        for mi, rr in enumerate((r1, r2)):
            lp = g.lab("fm")
            a(f"s_xor_b32 s{sT}, s{sHalf}, {mi}"); a(f"s_mul_i32 s{sTmp}, s{sT}, 40960")
            a(f"s_mov_b32 s{sCnt}, s{sV}")
            a.lab(lp)
            a(f"s_lshl_b32 s{sT}, s{sCnt}, 10"); a(f"s_add_u32 m0, s{sT}, s{sTmp}")
            a(f"s_mul_i32 s{sT}, s{sCnt}, {16*3456}")
            a(f"buffer_load_dwordx4 v3, {R(rr)}, s{sT} offen {g.opt.get('ffl','')} lds")
            a(f"s_waitcnt vmcnt({g.opt.get('fthr', 5)})")
            a(f"s_add_u32 s{sCnt}, s{sCnt}, 3"); a(f"s_cmp_lt_u32 s{sCnt}, 40"); a(f"s_cbranch_scc1 {lp}")
            if ib == 2 and mi == 0: inbox()
            if g.opt.get("wol2", 0) == mi + 1:
                a("v_min_u32 v12, 59, v0"); a("v_mul_u32_u24 v13, 52, v12"); a("v_lshrrev_b32 v13, 8, v13"); a("v_mul_u32_u24 v13, 640, v13"); a("v_lshl_add_u32 v12, v12, 7, v13")
                a(f"s_mul_i32 s{sT}, s{sA}, 3"); a(f"s_add_u32 s{sT}, s{sT}, s{sV}"); a(f"s_mul_i32 s{sT}, s{sT}, 24"); a(f"s_and_b32 s{sCnt}, s{sX}, 1"); a(f"s_add_u32 s{sT}, s{sT}, s{sCnt}"); a(f"s_mul_i32 s{sT}, s{sT}, 640")
                a(f"v_add_u32 v12, s{sT}, v12")
                for n in range(3):
                    a(f"buffer_load_dword v10, v12, {R(rWO)}, 0 offen"); a(f"v_add_u32 v12, {21*12*1280}, v12"); a("s_waitcnt vmcnt(1)")
            if g.opt.get("wot", 2) == 2 and mi == 0:
                a(f"s_cmp_eq_u32 s{sV}, 0"); a("s_cbranch_scc1 L_aux_nwo"); a(f"buffer_load_dword v10, v11, {R(rWO)}, 0 offen"); a.lab("L_aux_nwo")
        a("v_and_b32 v4, 6, v1"); a("v_xor_b32 v4, v4, v2"); a("v_lshlrev_b32 v4, 4, v4")
        a("v_mul_u32_u24 v5, 1280, v1")
        a(f"s_mul_i32 s{sT}, s{sF}, {32*1280}"); a(f"v_add3_u32 v4, s{sT}, v4, v5")
        a(f"s_mov_b32 s{sCnt}, s{sV}")
        def dn(lim):
            lp = g.lab("fd")
            a.lab(lp)
            a(f"s_lshl_b32 s{sT}, s{sCnt}, 10"); a(f"s_add_u32 m0, s{sT}, {A_D}")
            a(f"s_and_b32 s{sT}, s{sCnt}, 3"); a(f"s_mul_i32 s{sT}, s{sT}, {8*1280}"); a(f"s_lshr_b32 s{sTmp}, s{sCnt}, 2"); a(f"s_lshl_b32 s{sTmp}, s{sTmp}, 7"); a(f"s_add_u32 s{sT}, s{sT}, s{sTmp}")
            a(f"buffer_load_dwordx4 v4, {R(rD)}, s{sT} offen lds")
            a(f"s_add_u32 s{sCnt}, s{sCnt}, 3"); a(f"s_cmp_lt_u32 s{sCnt}, {lim}"); a(f"s_cbranch_scc1 {lp}")
        d1 = g.opt.get("d1", 7)
        dn(3*d1)
        a(f"s_waitcnt vmcnt({d1})")
        g.stamp(2)
        a("s_barrier")
        dn(40)
        a("s_branch L_aux_f2")
        a.lab("L_aux_f1")
        a(f"s_and_b32 s{sT}, s{sW}, 1")
        a("v_bfe_u32 v1, v0, 4, 1"); a(f"v_xor_b32 v1, s{sT}, v1"); a("v_lshlrev_b32 v1, 5, v1")
        a("v_and_b32 v2, 3, v0"); a("v_lshl_add_u32 v1, v2, 3, v1")
        a("v_lshrrev_b32 v2, 2, v0"); a("v_lshl_add_u32 v1, v2, 6, v1")
        a(f"s_lshr_b32 s{sT}, s{sW}, 1"); a(f"s_mul_i32 s{sT}, s{sT}, 40960"); a(f"v_add_u32 v1, s{sT}, v1")
        a("v_lshrrev_b32 v2, 4, v0"); a("v_lshlrev_b32 v2, 3, v2"); a(f"v_add_u32 v2, {A_XS}, v2")
        a.lab("L_aux_xs")
        a("s_sleep 2")
        a("ds_read_b32 v3, v7 offset:8"); a("s_waitcnt lgkmcnt(0)")
        a("v_cmp_eq_u32 vcc, 0, v3"); a("s_cbranch_vccnz L_aux_xs")
        for ks in range(20): a(f"ds_read2_b64 {V(12+8*ks,4)}, v2 offset0:{8*ks} offset1:{8*ks+4}")
        a("s_barrier")
        g.stamp(3)
        for ks in range(26):
            if ks < 20:
                a(f"ds_read_b64_tr_b16 {V(8+8*ks,2)}, v1 offset:{ks*2048}")
                a(f"ds_read_b64_tr_b16 {V(10+8*ks,2)}, v1 offset:{ks*2048+1024}")
            if ks >= 6:
                a(f"s_waitcnt lgkmcnt({2*min(6, 25-ks)})")
                a(f"v_mfma_f32_16x16x32_bf16 v[4:7], {V(8+8*(ks-6),4)}, {V(12+8*(ks-6),4)}, {'0' if ks == 6 else 'v[4:7]'}")
        a(f"s_lshl_b32 s{sT}, s{sW}, 6"); a(f"s_add_u32 s{sT}, s{sT}, {A_PRE}")
        a("v_and_b32 v3, 48, v0"); a(f"v_add_u32 v3, s{sT}, v3")
        a("ds_write_b128 v3, v[4:7]")
        a("s_waitcnt lgkmcnt(0)")
        a.lab("L_aux_f2")
        a(f"s_lshl_b32 s{sT}, s{sW}, 12"); a(f"s_add_u32 s{sT}, s{sT}, {A_D}")
        g.tr_addr(40, "0", f"s{sT}", 9, 10)
        for tau in range(1, 4): a(f"v_xor_b32 v{40+tau}, {32*tau}, v40")
        a("v_and_b32 v3, 48, v0"); a(f"v_add_u32 v2, {A_PRE}, v3")
        a("v_and_b32 v4, 15, v0"); a("v_lshlrev_b32 v5, 2, v0")
        a(f"s_mul_i32 s{sCnt}, s{sF}, 2560"); a(f"s_lshl_b32 s{sT}, s{sW}, 8"); a(f"s_add_u32 s{sCnt}, s{sCnt}, s{sT}"); a(f"s_add_u32 s{sCnt}, s{sCnt}, {WS_Y}")
        a("s_barrier")
        for k in range(4): a(f"ds_read_b128 {V(8+4*k,4)}, v2 offset:{64*k}")
        for k in range(0, 16, 2): a(f"v_mov_b64 {V(48+k,2)}, 0")
        a("s_waitcnt lgkmcnt(0)")
        for k in range(8): a(f"v_mul_f32 v{24+k}, {f32(-math.log2(math.e))}, v{8+k}")
        for k in range(8): a(f"v_exp_f32 v{24+k}, v{24+k}")
        for k in range(8): a(f"v_mul_f32 v{8+k}, v{8+k}, v{16+k}")
        for k in range(8): a(f"v_add_f32 v{24+k}, 1.0, v{24+k}")
        for k in range(8): a(f"v_rcp_f32 v{24+k}, v{24+k}")
        for k in range(8): a(f"v_mul_f32 v{24+k}, v{24+k}, v{8+k}")
        for k in range(4): a(f"v_cvt_pk_bf16_f32 v{32+k}, v{24+2*k}, v{25+2*k}")
        for r in range(1):
            for tau in range(4):
                m = 0x00010001 << (4*tau + r)
                a(f"s_mov_b32 exec_lo, {m}"); a("s_mov_b32 exec_hi, exec_lo")
                for k in (0, 2): a(f"v_mov_b64 {V(48+16*r+4*tau+k,2)}, {V(32+k,2)}")
        a("s_mov_b64 exec, -1")
        a(f"s_cmp_lt_u32 s{sW}, 2")
        a("s_waitcnt vmcnt(0)")
        a("s_barrier")
        g.stamp(4)
        for r in range(2):
            if r == 1: a("s_cbranch_scc0 L_aux_d1")
            for tau in range(4):
                for ab in range(2): a(f"ds_read_b64_tr_b16 {V(80+16*r+4*tau+2*ab,2)}, v{40+tau} offset:{r*32768+ab*2048}")
        a("s_waitcnt lgkmcnt(0)")
        for tau in range(4): a(f"v_mfma_f32_16x16x32_bf16 v[116:119], {V(48+4*tau,4)}, {V(96+4*tau,4)}, {0 if tau == 0 else 'v[116:119]'}")
        a.lab("L_aux_d1")
        a("s_waitcnt lgkmcnt(0)")
        for tau in range(4): a(f"v_mfma_f32_16x16x32_bf16 v[112:115], {V(48+4*tau,4)}, {V(80+4*tau,4)}, {0 if tau == 0 else 'v[112:115]'}")
        a(f"buffer_store_dword v112, v5, {R(rWS)}, s{sCnt} offen sc1")
        a("s_cbranch_scc0 L_aux_d2")
        a(f"buffer_store_dword v116, v5, {R(rWS)}, s{sCnt} offen offset:2048 sc1")
        a.lab("L_aux_d2")
        g.stamp(5)
        a(f"s_sub_u32 s{sF}, s{sF}, 32"); a(f"s_cmp_lt_u32 s{sF}, 10"); a("s_cbranch_scc0 L_aux_end")
        Y = 72
        a("v_lshrrev_b32 v1, 4, v0"); a(f"s_lshl_b32 s{sT}, s{sW}, 3"); a(f"v_add_u32 v1, s{sT}, v1")
        a("v_mul_u32_u24 v2, 2560, v1"); a("v_lshl_add_u32 v2, v4, 4, v2")
        a(f"s_lshl_b32 s{sT}, s{sF}, 8"); a(f"s_add_u32 s{sT}, s{sT}, {WS_Y}"); a(f"v_add_u32 v2, s{sT}, v2"); a(f"v_add_u32 v3, {4*2560}, v2")
        a(f"s_mov_b64 {S(rC,2)}, {S(rWS,2)}"); g.srd_consts(rC, WS_Y + 54*2560)
        a(f"s_lshl_b32 s{sT}, s{sW}, 10"); a(f"v_lshl_add_u32 v7, v0, 4, s{sT}")
        a(f"s_mov_b32 s{sCnt}, 0")
        a.lab("L_yr")
        a(f"s_sleep {g.opt.get('ysl', 2)}")
        for e in range(2): a(f"buffer_load_dwordx4 {V(Y+4*e,4)}, v{2+e}, {R(rC)}, 0 offen sc1")
        a(f"s_add_u32 s{sCnt}, s{sCnt}, 1"); a(f"s_cmp_lt_u32 s{sCnt}, {SPIN}")
        a("s_waitcnt vmcnt(0)")
        g.poison_max(Y, 8, 6)
        a(f"v_cmp_eq_u32 vcc, {POISON}, v6")
        a("s_cbranch_scc0 L_yrok"); a("s_cbranch_vccnz L_yr")
        a.lab("L_yrok")
        for k in (0, 2): a(f"v_pk_add_f32 {V(Y+k,2)}, {V(Y+k,2)}, {V(Y+4+k,2)}")
        a(f"ds_write_b128 v7, {V(Y,4)}")
        a(f"s_and_b32 s{sT}, s84, 0xffff0000"); a("s_cmp_lt_i32 s84, 0")
        a(f"s_cselect_b32 s{sCnt}, 0, 0x7fff0000")
        a(f"s_xor_b32 s{sT}, s{sT}, s{sCnt}"); a(f"s_xor_b32 s{sT}, s{sT}, 0x80000000")
        a(f"v_mov_b32 v5, s{sT}")
        g.sigmoid(5, 5); g.bf16r(5)
        a("v_lshlrev_b32 v1, 4, v0")
        a(f"s_lshl_b32 s{sT}, s{sF}, 8"); a(f"s_add_u32 s{sT}, s{sT}, {WS_Y2}")
        a(f"s_cmp_eq_u32 s{sW}, 4")
        a("s_waitcnt lgkmcnt(0)")
        a("s_barrier")
        a("s_cbranch_scc0 L_aux_end")
        for e in range(7): a(f"ds_read_b128 {V(Y+4*e,4)}, v1 offset:{1024*e}")
        for e in range(1, 7):
            a(f"s_waitcnt lgkmcnt({6-e})")
            for k in (0, 2): a(f"v_pk_add_f32 {V(Y+k,2)}, {V(Y+k,2)}, {V(Y+4*e+k,2)}")
        for pl in ("16", "32"):
            for k in range(4): a(f"v_mov_b32 v{Y+4+k}, v{Y+k}")
            for k in range(4): a(f"v_permlane{pl}_swap_b32 v{Y+k}, v{Y+4+k}")
            for k in range(4): a(f"v_add_f32 v{Y+k}, v{Y+k}, v{Y+4+k}")
        for k in range(4):
            g.bf16r(Y+k); a(f"v_mul_f32 v{Y+k}, v{Y+k}, v5"); g.bf16r(Y+k)
        a("s_mov_b64 exec, 0xffff")
        a(f"buffer_store_dwordx4 {V(Y,4)}, v1, {R(rWS)}, s{sT} offen sc1")
        a("s_mov_b64 exec, -1")
        g.stamp(7)
        a.lab("L_aux_end")
        g.dump_stamps(8)

    def flush_tail(g):
        for t in g.tail: t()
        g.tail = []

    def build(g):
        g.prologue(); g.lwave(); g.flush_tail(); g.cwave(); g.softmax(); g.stage2(); g.cfin(); g.flush_tail(); g.aux()
        g.a.lab("L_end")
        g.a("s_endpgm")
        body = g.a.finish()
        if g.opt.get('align', 1): body, g.npro, g.nnop = align8(body, KN + '_kernel')
        hdr = open(f"cdna_kernels/{KN}.s.ref").read().split("; Override launch")[0]
        k = KN + "_kernel"
        return hdr + f"""; @launch grid=(256,1,1) block=(512,1,1) lds={LDS_BYTES}
.amdgcn_target "amdgcn-amd-amdhsa--gfx950"
.text
.globl {k}
.p2align 8
.type {k},@function
{k}:
{body}
.section .rodata,"a"
.p2align 6
.amdhsa_kernel {k}
  .amdhsa_next_free_vgpr 256
  .amdhsa_next_free_sgpr 102
  .amdhsa_accum_offset 256
  .amdhsa_group_segment_fixed_size 0
  .amdhsa_kernarg_size 96
  .amdhsa_user_sgpr_count 2
  .amdhsa_user_sgpr_kernarg_segment_ptr 1
  .amdhsa_system_sgpr_workgroup_id_x 1
  .amdhsa_float_denorm_mode_32 3
.end_amdhsa_kernel
"""

if __name__ == "__main__":
    out = sys.argv[1] if len(sys.argv) > 1 else "k2.s"
    kw = {}
    for x in sys.argv[2:]:
        k, v = x.split("="); kw[k] = eval(v)
    g = Gen(**kw)
    open(out, "w").write(g.build())
    print("wrote", out, "pads", g.a.npad, "promoted/nops", getattr(g, "npro", 0), getattr(g, "nnop", 0))
```

```python
import re

def regs_of(tok):
    tok = tok.strip()
    neg = tok.lstrip('-')
    m = re.fullmatch(r'(?:abs\()?([vs])(\d+)\)?', neg)
    if m: return [(m.group(1), int(m.group(2)))]
    m = re.fullmatch(r'([vs])\[(\d+):(\d+)\]', neg)
    if m: return [(m.group(1), i) for i in range(int(m.group(2)), int(m.group(3))+1)]
    if neg in ('vcc', 'vcc_lo', 'vcc_hi'): return [('s', 'vcc')]
    if neg in ('exec', 'exec_lo', 'exec_hi'): return [('s', 'exec')]
    if neg == 'm0': return [('s', 'm0')]
    return []

TRANS = ('v_exp_', 'v_log_', 'v_rcp_', 'v_rsq_', 'v_sqrt_', 'v_sin_', 'v_cos_')

class Ins:
    def __init__(s, text):
        s.text = text
        t = text.split(';')[0].strip()
        s.op = t.split()[0] if t else ''
        rest = t[len(s.op):].strip()
        rest = re.sub(r'\b(op_sel|op_sel_hi|neg_lo|neg_hi|quad_perm):\[[^\]]*\]', lambda m: m.group(1), rest)
        parts = [p.strip() for p in rest.split(',')] if rest else []
        s.mods = ''
        if parts:
            last = parts[-1].split()
            parts[-1] = last[0] if last else ''
            s.mods = ' '.join(last[1:])
        s.parts = parts
        op = s.op
        s.mfma = op.startswith('v_mfma')
        s.valu = op.startswith('v_') and not s.mfma
        s.trans = op.startswith(TRANS)
        s.dot = op.startswith('v_dot')
        s.ds = op.startswith('ds_')
        s.vmem = op.startswith(('buffer_', 'global_'))
        s.salu = op.startswith('s_')
        s.perm = op.startswith('v_permlane')
        s.dpp = '_dpp' in op or 'quad_perm' in s.mods or 'row_' in s.mods
        s.rdlane = op.startswith(('v_readlane', 'v_readfirstlane'))
        R = [regs_of(p) for p in parts]
        flat = lambda l: [x for y in l for x in y]
        s.w, s.r = [], []
        s.srcC = []
        if s.mfma:
            s.w = R[0]; s.r = flat(R[1:]); s.srcC = R[3]; s.srcAB = R[1] + R[2]
        elif s.valu:
            s.w = list(R[0]); s.r = flat(R[1:])
            if s.perm or op.startswith('v_swap'): s.w = flat(R); s.r = flat(R)
            if op.startswith(('v_fmac', 'v_dot2c', 'v_writelane')) or s.dpp: s.r += R[0]
            if op.startswith(('v_add_co', 'v_sub_co', 'v_addc_co')): s.w += R[1]
            if op.startswith('v_cmpx'): s.w += [('s', 'exec')]
        elif s.ds:
            if op.startswith(('ds_read', 'ds_bpermute', 'ds_permute', 'ds_swizzle')) or '_rtn' in op:
                s.w = R[0]; s.r = flat(R[1:])
            else: s.r = flat(R)
        elif s.vmem:
            lds = ' lds' in (' ' + s.mods)
            if 'load' in op and not lds: s.w = R[0]; s.r = flat(R[1:])
            else: s.r = flat(R)
            if lds: s.r += [('s', 'm0')]
            s.lds = lds
            s.widestore = ('store' in op and ('x3' in op or 'x4' in op))
            s.sdata = R[0] if 'store' in op and op.startswith('buffer_') else (R[1] if 'store' in op else [])
        elif s.salu:
            if op.startswith(('s_cmp', 's_cbranch', 's_branch', 's_waitcnt', 's_barrier', 's_nop', 's_sleep', 's_setprio', 's_endpgm', 's_bitcmp', 's_setpc')):
                s.r = flat(R)
            else:
                s.w = R[0] if R else []; s.r = flat(R[1:])
                if 'saveexec' in op: s.w = s.w + [('s', 'exec')]
        s.states = 1
        if op == 's_nop': s.states = int(parts[0], 0) + 1

def need(p, c):
    W = set(p.w); n = 0
    def ov(a, b): return bool(set(a) & set(b))
    vW = [x for x in p.w if x[0] == 'v']; sW = [x for x in p.w if x[0] == 's']
    if p.mfma:
        passes = 8 if '32x32' in p.op else 4
        big = {4: 8, 8: 12}[passes]; part = {4: 6, 8: 10}[passes]; war = {4: 3, 8: 7}[passes]
        if c.mfma:
            if ov(vW, c.srcAB): n = max(n, big)
            if ov(vW, c.srcC) and c.srcC != p.w: n = max(n, part)
            if ov(vW, c.srcC) and c.op != p.op: n = max(n, big)
            if ov(vW, c.w) and not (c.srcC == p.w and c.w == p.w): n = max(n, part if not ov(vW, c.srcC) else 0)
        elif c.valu or c.ds or c.vmem:
            if ov(vW, c.r) or ov(vW, c.w): n = max(n, big)
        if c.valu and ov([x for x in p.srcC if x[0]=='v'], c.w): n = max(n, war)
    if p.valu:
        if c.mfma and ov(vW, c.r): n = max(n, 2)
        if c.mfma and ('s','exec') in W: n = max(n, 4)
        if c.perm and ov(vW, c.r): n = max(n, 2)
        if c.dpp and ov(vW, c.r): n = max(n, 2)
        if c.rdlane and ov(vW, c.r): n = max(n, 1)
        if p.trans and c.valu and not c.trans and ov(vW, c.r): n = max(n, 1)
        if p.trans and (c.ds or c.vmem or c.trans) and ov(vW, c.r): n = max(n, 1)
        if p.dot and (c.valu or c.ds or c.vmem) and (ov(vW, c.r) or ov(vW, c.w)):
            same = c.op == p.op
            if not (same and (c.op.startswith('v_dot2c') or (len(c.parts) > 3 and regs_of(c.parts[3]) == p.w)) and not ov(vW, regs_of(c.parts[1]) + regs_of(c.parts[2]))): n = max(n, 3)
        if sW:
            if c.vmem and ov(sW, c.r): n = max(n, 5)
            if c.valu and ov(sW, c.r): n = max(n, 4 if c.op.startswith(('v_readlane','v_writelane')) else 2)
            if c.salu and ov(sW, c.r): n = max(n, 1)
            if ('s','exec') in W:
                if c.dpp: n = max(n, 5)
                if c.rdlane or c.perm: n = max(n, 4)
    if p.salu and ('s','m0') in W and ((c.vmem and c.lds) or c.op.startswith('v_writelane') or c.op.startswith('v_readlane')): n = max(n, 1)
    if p.vmem and p.widestore and (c.valu or c.mfma or c.ds or c.vmem) and ov(p.sdata, c.w): n = max(n, 2)
    return n

class Asm:
    def __init__(s):
        s.L = []
    def __call__(s, x):
        for ln in x.split('\n'):
            if ln.strip(): s.L.append(ln.strip())
    def lab(s, x): s.L.append(x + ':')
    def finish(s):
        out = []; hist = []
        npad = 0
        for ln in s.L:
            if ln.endswith(':') or ln.startswith(('.', ';')):
                out.append(ln); continue
            c = Ins(ln)
            d = 0; req = 0
            for p in reversed(hist):
                if d >= 12: break
                r = need(p, c) - d
                if r > req: req = r
                d += p.states
            if req > 0:
                nop = Ins(f's_nop {req-1}')
                out.append('    ' + nop.text); hist.append(nop); npad += 1
            out.append('    ' + ln); hist.append(c)
            if c.op in ('s_branch', 's_endpgm', 's_setpc_b64'): hist = []
            hist = hist[-16:]
        s.npad = npad
        return '\n'.join(out)

import subprocess, tempfile, os
def _sizes(lines, kname):
    src = '.amdgcn_target "amdgcn-amd-amdhsa--gfx950"\n.text\n' + kname + ':\n' + '\n'.join(lines) + '\n'
    d = tempfile.mkdtemp()
    open(d + '/a.s', 'w').write(src)
    r = subprocess.run(['clang', '-x', 'assembler', '-target', 'amdgcn-amd-amdhsa', '-mcpu=gfx950', '-c', d + '/a.s', '-o', d + '/a.o'], capture_output=True, text=True)
    if r.returncode: raise SystemExit(r.stderr[:2000])
    o = subprocess.run(['llvm-objdump', '-d', '--mcpu=gfx950', d + '/a.o'], capture_output=True, text=True).stdout
    out = []
    for ln in o.split('\n'):
        m = re.search(r'//\s*([0-9A-F]{12}):((?: [0-9A-F]{8})+)', ln)
        if m: out.append(4*len(m.group(2).split()))
    return out

NOPROMO = ('v_readfirstlane', 'v_permlane', 'v_dot2c', 'v_swap', 'v_nop', 'v_fmamk', 'v_fmaak')
def align8(text, kname, nstub=0):
    lines = text.split('\n')
    idx = [i for i, l in enumerate(lines) if l.strip() and not l.strip().endswith(':') and not l.strip().startswith(('.', ';'))]
    sz = _sizes([l for l in lines if not l.strip().startswith('.p2align')] + ['L_pg%d:' % j for j in range(1, nstub+1)], kname)
    origin = [i for i, l in enumerate(lines) if l.strip().startswith('.p2align 12')]
    nxt = 1; started = False
    assert len(sz) == len(idx), (len(sz), len(idx))
    addr = 0; npro = nnop = 0
    pre = {}
    k = 0
    while k < len(idx):
        if origin and idx[k] > origin[0]:
            addr = -(-addr // 4096)*4096 if started else 0
            started = True; origin.pop(0)
        if started and nxt <= nstub and addr >= 4096*nxt:
            for b in range(k-1, -1, -1):
                t = lines[idx[b]].split('\n')[-1].split()
                if len(t) > 1 and t[1].startswith('exec'):
                    assert t[0].startswith('s_mov') and re.fullmatch(r'-1|0x[0-9a-f]+|[1-9]\d*|exec_lo', t[2]) , lines[idx[b]]
                    break
            lines[idx[k]] = 'L_pg%d:\n    s_cbranch_execz L_hopret\n' % nxt + lines[idx[k]]; addr += 4; nxt += 1
            addr += sz[k]; k += 1
            continue
        if sz[k] == 8 and addr % 8 == 4:
            run = 0; dense = 0
            while k + run < len(idx) and sz[k+run] == 8:
                if not lines[idx[k+run]].strip().startswith('v_mfma'): dense += 1
                else: dense -= 2
                run += 1
            j = k - 1; done = False
            while j >= 0 and sz[j] == 4 and not lines[idx[j]].startswith('L_pg'):
                op = lines[idx[j]].split()[0]
                if op.startswith('v_') and not op.startswith(NOPROMO) and not op.endswith(('_e64', '_dpp')):
                    lines[idx[j]] = lines[idx[j]].replace(op, op + '_e64', 1); sz[j] = 8; addr += 4; done = True; npro += 1
                    break
                j -= 1
            if not done:
                prev = lines[idx[k-1]].split()[0] if k else ''
                if prev in ('s_branch', 's_endpgm', 's_setpc_b64'):
                    lines[idx[k-1]] += '\n    s_nop 0'; addr += 4; nnop += 1
                elif dense >= 6:
                    lines[idx[k]] = '    s_nop 0\n' + lines[idx[k]]; addr += 4; nnop += 1
            for _ in range(run):
                if started and nxt <= nstub and addr >= 4096*nxt: break
                addr += 8; k += 1
            continue
        addr += sz[k]; k += 1
    return '\n'.join(lines), npro, nnop
```

```python
import sys, struct, math, re
sys.path.insert(0, "work")
from asmlib import Asm, align8

KN = "gated_mix__sliding_local_dilated__moe_arch_mod__prompt"
def f32(x): return "0x%08x" % struct.unpack("<I", struct.pack("<f", x))[0]

import os
BLK = int(os.environ.get('BLK', 290816))
WS_OG = 143360
WS_FL = 2*143360
WS_Y = 20*BLK
WS_X = WS_Y + 54*2560
WS_G = WS_Y + 147456
WS_Y2 = WS_G + 8192
WS_F = WS_G + 16384
WS_K = WS_F + 8192
WS_AR = WS_K + 14*128
WS_T = 16 << 20
WS_SIZE = 20 << 20
SLOT = 38912
WOFF = 14336
L_WO = 81920
L_QK = 38912
L_WO2 = 0
L_P = L_WO + 12*4096
L_EP = L_P
L_CNT = L_P + 28672
L_GF = L_CNT + 16
L_OWN = 38912
L_YD = 77824
L_BB = 38912
LDS_BYTES = 163840
POISON = -1
SPIN = 30000
CSC = f32(20**-0.5 * math.log2(math.e))

rX, rW, rWO, rWS, rDBG, rOUT = 28, 32, 36, 40, 44, 48
sW, sX, sJ, sP, sM0, sJB, sCG, sTB, sI0, sCnt, sSlot, sT = 52, 53, 54, 55, 56, 57, 58, 59, 60, 61, 62, 63
def S(n, k=1): return f"s{n}" if k == 1 else f"s[{n}:{n+k-1}]"
def V(n, k=1): return f"v{n}" if k == 1 else f"v[{n}:{n+k-1}]"
def R(n): return S(n, 4)

class Gen:
    def __init__(g, stamps=False, look=8, rot=2, depth=5, **kw):
        g.a = Asm(); g.stamps = stamps; g.look = look; g.rot = rot; g.depth = depth
        g.opt = kw
        g.nlab = 0
        g.tail = []
    def lab(g, base): g.nlab += 1; return f"L_{base}_{g.nlab}"
    def sreg(g, k): return 86 + 2*k if k < 8 else 4 + 2*(k-8)
    def stamp(g, k):
        if g.stamps and (g.stamps is True or k in g.stamps or k == 0): g.a(f"{'s_memrealtime' if g.opt.get('rt') else 's_memtime'} {S(g.sreg(k),2)}")
    def dump_stamps(g, nst):
        if not g.stamps or g.opt.get("fixed"): return
        a = g.a
        a("s_memrealtime s[62:63]")
        a("s_waitcnt lgkmcnt(0)")
        a("v_mov_b32 v1, v253")
        for k in range(nst): a(f"v_writelane_b32 v1, s{g.sreg(k)}, {k}")
        a("v_writelane_b32 v1, s3, 30")
        a("v_writelane_b32 v1, s62, 31")
        a(f"s_lshl_b32 s62, s2, 3"); a(f"s_add_u32 s62, s62, s{sW}"); a("s_lshl_b32 s62, s62, 8"); a(f"s_add_u32 s62, s62, {WS_T}")
        a("v_lshlrev_b32 v2, 2, v0")
        a(f"buffer_store_dword v1, v2, {R(rWS)}, s62 offen")
    def srd_consts(g, r, size):
        g.a(f"s_mov_b32 s{r+2}, {size}"); g.a(f"s_mov_b32 s{r+3}, 0x20000")

    def prologue(g):
        a = g.a
        a("s_load_dwordx16 s[4:19], s[0:1], 0")
        a("s_load_dwordx8 s[20:27], s[0:1], 64")
        if g.stamps:
            a("s_memrealtime s[100:101]")
            g.stamp(0)
        if g.opt.get("cpf0", 1):
            a("s_getpc_b64 s[52:53]")
            a.lab("L_pc0")
            if g.stamps: a("s_lshr_b32 s61, s2, 3"); a("s_mul_i32 s61, s61, 9")
            else: a("s_and_b32 s61, s2, 0xf8")
            a(f"v_min_u32 v1, {8 if g.stamps else 7}, v0"); a("v_add_lshl_u32 v1, v1, s61, 7")
            a(f"v_min_u32 v1, L_end-L_pc0, v1")
            a("v_cmp_gt_u32 vcc, 64, v0"); a("s_cbranch_vccz L_nocpf0")
            a("global_load_dword v140, v1, s[52:53]")
            a.lab("L_nocpf0")
        a("v_lshrrev_b32 v1, 6, v0")
        a("s_cmp_ge_u32 s2, 256")
        a("s_cbranch_scc1 L_end")
        a(f"v_readfirstlane_b32 s{sW}, v1")
        a("v_and_b32 v0, 63, v0")
        a(f"s_and_b32 s{sX}, s2, 7")
        a(f"s_lshr_b32 s{sJ}, s2, 3")
        g.srd_consts(rX, 2048*1280); g.srd_consts(rW, 640*3840)
        a(f"s_bfe_u32 s{sP}, s2, 0x10001")
        a(f"s_cmp_ge_u32 s{sJ}, 25")
        a("s_cbranch_scc1 L_aux")
        a(f"s_mul_i32 s{sM0}, s{sJ}, 52"); a(f"s_lshr_b32 s{sM0}, s{sM0}, 8")
        a(f"s_mul_i32 s{sJB}, s{sM0}, 5"); a(f"s_sub_u32 s{sJB}, s{sJ}, s{sJB}")
        a(f"s_and_b32 s{sCG}, s2, 1"); a(f"s_mul_i32 s{sCG}, s{sCG}, 5"); a(f"s_add_u32 s{sCG}, s{sCG}, s{sM0}")
        a(f"s_lshr_b32 s{sTB}, s{sX}, 1"); a(f"s_mul_i32 s{sTB}, s{sTB}, 5"); a(f"s_add_u32 s{sTB}, s{sTB}, s{sJB}")
        a(f"s_and_b32 s{sI0}, s{sX}, 4"); a(f"s_lshl_b32 s{sI0}, s{sI0}, 7")
        a(f"s_mul_i32 s{sCnt}, s{sJB}, 104"); a(f"s_add_u32 s{sI0}, s{sI0}, s{sCnt}"); a(f"s_sub_u32 s{sI0}, s{sI0}, 8")
        a(f"s_cmp_lt_u32 s{sW}, 4")
        a("s_cbranch_scc1 L_cwave")

    def ptrs(g):
        a = g.a
        a("s_waitcnt lgkmcnt(0)")
        a(f"s_mov_b64 {S(rX,2)}, s[4:5]"); a(f"s_mov_b64 {S(rW,2)}, s[6:7]")
        if g.stamps: a("s_mov_b32 s3, s100")
    def ptrs2(g):
        a = g.a
        a(f"s_mov_b64 {S(rWO,2)}, s[8:9]"); a(f"s_mov_b64 {S(rWS,2)}, s[26:27]")
        a(f"s_mov_b64 {S(rDBG,2)}, s[24:25]"); a(f"s_mov_b64 {S(rOUT,2)}, s[22:23]")
        g.srd_consts(rWO, 640*1280); g.srd_consts(rWS, WS_SIZE); g.srd_consts(rDBG, 256); g.srd_consts(rOUT, 2048*1280)

    XR = 224
    vXR = 3
    vSP = 254
    vL16 = 255
    sFL, sCur, sAr, sLoc = 20, 21, 0, 53

    def xres_addr(g):
        a = g.a
        a("v_bfe_u32 v8, v0, 1, 3"); a("v_lshrrev_b32 v9, 5, v0"); a("v_xor_b32 v9, v9, v8"); a("v_lshlrev_b32 v9, 4, v9")
        a("v_bfe_u32 v10, v0, 4, 1"); a("v_lshl_add_u32 v9, v10, 3, v9"); a("v_and_b32 v10, 15, v0"); a("v_lshl_add_u32 v9, v10, 7, v9")
        a(f"s_mul_i32 s{sCnt}, s{sCG}, 86"); a(f"s_lshr_b32 s{sCnt}, s{sCnt}, 8"); a(f"s_mul_i32 s{sCnt}, s{sCnt}, 3"); a(f"s_sub_u32 s{sCnt}, s{sCG}, s{sCnt}")
        a(f"s_sub_u32 s{sSlot}, 3, s{sCnt}"); a(f"s_cmp_eq_u32 s{sCnt}, 0"); a(f"s_cselect_b32 s{sSlot}, 0, s{sSlot}"); a(f"s_mul_i32 s{sSlot}, s{sSlot}, {SLOT}")
        a(f"s_lshl_b32 s{sT}, s{sW}, 12"); a(f"s_add_u32 s{sT}, s{sT}, s{sSlot}")
        a(f"v_add_u32 v{g.vXR}, s{sT}, v9")
    def xres_read(g):
        a = g.a
        for tau, x in ((0, 0), (1, 32), (3, 64), (2, 32)):
            if tau: a(f"v_xor_b32 v{g.vXR}, {x}, v{g.vXR}")
            for q in range(2): a(f"ds_read_b64 {V(g.XR+8*q+2*tau,2)}, v{g.vXR} offset:{2048*q}")
    BI, BI0 = 240, 244
    B1, B2 = 200, 216
    vQ1, vQ2 = 251, 252
    def unit_setup(g, sA):
        a = g.a
        a(f"s_and_b32 s{sCnt}, s{sW}, 1"); a(f"s_mul_i32 s{sCnt}, s{sCnt}, 1536")
        a(f"s_mul_i32 s{sT}, s{sA}, 7168"); a(f"s_lshl1_add_u32 s{sT}, s{sCnt}, s{sT}"); a(f"s_add_u32 s{sT}, s{sT}, {L_P+8}")
        a(f"v_lshlrev_b32 v{g.vL16}, 4, v0")
        a("v_lshrrev_b32 v8, 2, v0"); a("v_bfi_b32 v8, v0, 0, v8"); a("v_and_b32 v8, 8, v8")
        a(f"v_sub_u32 v8, v{g.vL16}, v8"); a(f"v_add_u32 v{g.vSP}, s{sT}, v8")
        a(f"s_mul_i32 s{sT}, s{sA}, 5"); a(f"s_sub_u32 s{sT}, s{sT}, s{sM0}"); a(f"s_add_u32 s{sT}, s{sT}, 4")
        a(f"s_add_u32 s{sCnt}, s{sCnt}, {L_QK}")
        a("v_and_b32 v9, 15, v0"); a(f"v_lshl_add_u32 v10, v9, 3, s{sCnt}")
        a("v_lshrrev_b32 v11, 4, v0"); a(f"v_add_u32 v8, s{sT}, v11")
        a(f"v_lshl_add_u32 v{g.vQ1}, v8, 7, v10"); a("v_lshrrev_b32 v8, 2, v8"); a(f"v_mul_u32_u24 v8, {7168-512}, v8"); a(f"v_add_u32 v{g.vQ1}, v{g.vQ1}, v8")
        a(f"s_add_u32 s{sT}, s{sT}, 4"); a(f"s_lshr_b32 s{sSlot}, s{sT}, 2"); a(f"s_mul_i32 s{sSlot}, s{sSlot}, {7168-512}"); a(f"s_lshl_b32 s{sT}, s{sT}, 7"); a(f"s_add_u32 s{sT}, s{sT}, s{sSlot}")
        a(f"v_add_u32 v{g.vQ2}, s{sT}, v10")
        a(";cut")
        a("v_lshlrev_b32 v8, 2, v11"); a("v_sub_u32 v9, v9, v8")
        a(f"v_mov_b32 v11, {f32(-1e30)}")
        for r in range(4):
            a(f"v_subrev_u32 v10, {r}, v9"); a("v_and_b32 v10, 8, v10")
            a("v_cmp_eq_u32 vcc, 0, v10")
            a(f"v_cndmask_b32_e64 v{g.BI+r}, v11, v10, vcc")
        a(f"s_cmp_lt_i32 s{sI0}, 0"); a(f"s_cselect_b32 s{sT}, 32, 0"); a(f"s_bitcmp1_b32 s{sW}, 0"); a(f"s_cselect_b32 s{sT}, 0, s{sT}")
        a(f"v_cmp_gt_u32 vcc, s{sT}, v0")
        for r in range(4): a(f"v_cndmask_b32_e64 v{g.BI0+r}, v{g.BI+r}, v11, vcc")
    vK = 120
    def unit_late(g):
        v = g.vK
        return [f"v_and_b32 v{v}, 8, v0", f"v_lshlrev_b32 v{v}, 6, v{v}",
                f"v_lshlrev_b32 v{v+2}, 5, v0", f"v_bfi_b32 v{v+2}, v{v+2}, 0, v{v}",
                f"s_bitcmp1_b32 s{sW}, 0", f"s_cselect_b32 s{sT}, -1, 0",
                f"v_and_b32 v{v+1}, s{sT}, v{v}", f"v_and_b32 v{v+3}, s{sT}, v{v+2}",
                f"v_sub_u32 v{v}, v{g.vQ1}, v{v}", f"v_sub_u32 v{v+1}, v{g.vQ1}, v{v+1}",
                f"v_sub_u32 v{v+2}, v{g.vQ2}, v{v+2}", f"v_sub_u32 v{v+3}, v{g.vQ2}, v{v+3}",
                f"v_mov_b32 v{v+4}, {L_CNT}", f"v_mov_b32 v{v+6}, 1",
                f"s_mov_b32 s{sSlot}, {CSC}", f"s_mov_b32 s{sT}, {CSC}"]
    def fl_addr(g):
        a = g.a
        a(f"s_mul_i32 s{g.sFL}, s{sTB}, {BLK//256}"); a(f"s_add_u32 s{g.sFL}, s{g.sFL}, s{sCG}"); a(f"s_lshl_b32 s{g.sFL}, s{g.sFL}, 8"); a(f"s_add_u32 s{g.sFL}, s{g.sFL}, {WS_FL}")
    def arr_load(g): return [f"s_lshl_b32 s{g.sLoc}, s{sTB}, 8", f"s_add_u32 s{g.sLoc}, s{g.sLoc}, {WS_AR}", f"s_load_dword s{g.sAr}, {S(rWS,2)}, s{g.sLoc}",
                             f"s_add_u32 s{g.sCur}, s{g.sLoc}, 128", f"s_load_dword s{g.sAr+1}, {S(rWS,2)}, s{g.sCur}"]
    def arr_check(g, nm, t0, t1, va, vd):
        a = g.a
        ops = [[f"L_ac_{nm}:", f"s_add_u32 s{t0}, s{g.sAr}, s{g.sAr+1}", f"s_lshr_b32 s{t1}, s{t0}, 4", f"s_and_b32 s{t1}, s{t1}, 0x0f0f0f0f"],
               [f"s_and_b32 s{t0}, s{t0}, 0x0f0f0f0f", f"s_add_u32 s{t0}, s{t0}, s{t1}", f"s_mul_i32 s{t0}, s{t0}, 0x01010101"],
               [f"s_lshr_b32 s{t0}, s{t0}, 24", f"s_cmp_ge_u32 s{t0}, 10", f"s_cbranch_scc0 L_ar_{nm}", f"L_ao_{nm}:"],
               ["s_bitcmp1_b32 s2, 0", f"s_cselect_b32 s{t0}, s{g.sAr+1}, s{g.sAr}", f"s_getreg_b32 s{t1}, hwreg(HW_REG_XCC_ID, 0, 3)"],
               [f"s_lshl_b32 s{t1}, s{t1}, 2", f"s_lshr_b32 s{t0}, s{t0}, s{t1}"],
               [f"s_cmp_eq_u32 s{t0}, 5", f"s_cselect_b32 s{g.sLoc}, {0 if g.opt.get('nolocal') else 1}, 0"]]
        if g.opt.get("noarr"): return [[f"s_mov_b32 s{g.sLoc}, 1"]]
        def t():
            a.lab(f"L_ar_{nm}")
            a(f"s_mov_b32 s{g.sCur}, 0"); a(f"v_mov_b32 v{va}, s{g.sLoc}")
            a.lab(f"L_ar2_{nm}")
            a("s_sleep 4")
            a(f"buffer_load_dword v{vd}, v{va}, {R(rWS)}, 0 offen sc1"); a(f"buffer_load_dword v{vd+1}, v{va}, {R(rWS)}, 0 offen offset:128 sc1")
            a(f"s_add_u32 s{g.sCur}, s{g.sCur}, 1")
            a("s_waitcnt vmcnt(0)")
            a(f"v_readfirstlane_b32 s{g.sAr}, v{vd}"); a(f"v_readfirstlane_b32 s{g.sAr+1}, v{vd+1}")
            a(f"v_mov_b64 {V(vd,2)}, 0")
            a(f"s_cmp_lt_u32 s{g.sCur}, {SPIN}"); a(f"s_cbranch_scc0 L_ao_{nm}")
            for x in ops[0][1:] + ops[1] + ops[2][:2]: a(x)
            a(f"s_cbranch_scc0 L_ar2_{nm}")
            a(f"s_branch L_ao_{nm}")
        g.tail.append(t)
        return ops
    def emit(g, ops):
        for grp in ops:
            for x in (grp if isinstance(grp, list) else [grp]):
                if x.endswith(":"): g.a.lab(x[:-1])
                else: g.a(x)

    def lwave(g):
        a = g.a
        vX, vW, vWO = 12, 16, 43
        sLW, sXo, sWo, sMb, sTmp, sS0, sS1 = 64, 65, 66, 67, 68, 69, 70
        sNeed = 71
        a(f"s_sub_u32 s{sLW}, s{sW}, 4")
        a("v_lshrrev_b32 v1, 3, v0")
        a("v_and_b32 v2, 7, v0")
        a("v_lshrrev_b32 v3, 4, v0")
        a(f"s_and_b32 s{sTmp}, s{sLW}, 1"); a(f"s_lshl_b32 s{sWo}, s{sTmp}, 2")
        a(f"v_xor_b32 v4, v3, v2"); a(f"v_xor_b32 v4, s{sWo}, v4")
        a(f"s_lshl3_add_u32 s{sMb}, s{sLW}, s{sI0}")
        a(f"s_lshl1_add_u32 s{sMb}, s{sMb}, s{sP}"); a(f"s_mul_i32 s{sMb}, s{sMb}, 1280")
        a("v_mul_u32_u24 v5, 2560, v1")
        a(f"v_lshl_add_u32 v5, v4, 4, v5")
        a(f"v_add_u32 v{vX}, s{sMb}, v5")
        a("v_and_b32 v3, 6, v1"); a("v_xor_b32 v4, v3, v2")
        a(f"s_lshl_b32 s{sXo}, s{sCG}, 7")
        a(f"v_lshl_add_u32 v4, v4, 4, s{sXo}")
        a(f"s_lshl_b32 s{sTmp}, s{sTmp}, 4"); a(f"s_and_b32 s{sXo}, s{sLW}, 2"); a(f"s_lshl1_add_u32 s{sTmp}, s{sXo}, s{sTmp}")
        a("v_and_b32 v5, 4, v1"); a(f"v_add3_u32 v5, v5, v1, s{sTmp}")
        a("v_mul_u32_u24 v5, 3840, v5")
        a(f"v_add_u32 v{vW}, v5, v4")
        for m in range(1, 4): a(f"v_add_u32 v{vX+m}, {32*2560*m}, v{vX}")
        a(f"s_lshl_b32 s{sMb}, s{sLW}, 10")
        a(f"s_cmp_ge_u32 s{sLW}, 2"); a("s_cselect_b64 vcc, -1, 0")
        g.ptrs()
        g.stamp(3)
        order9 = [('x',0),('w',1),('x',1),('x',3),('w',0),('x',2),('w',4),('w',3),('w',2),('w',5)]
        order = [('x',0),('w',0),('w',1),('x',1),('w',2),('w',3),('x',2),('w',4),('w',5),('x',3)]
        slot = lambda c: (0, 2*SLOT, SLOT)[c % 3]
        def issue(c, j):
            split = c == 9 and g.opt.get("split", 0)
            kind, m = (order9 if split else order)[j]
            if kind == 'x':
                skip = None
                if m == 3:
                    skip = g.lab("skipx")
                    a(f"s_cbranch_vccnz {skip}")
                a(f"s_add_u32 m0, s{sMb}, {slot(c) + m*4096}")
                if m == 0: a(f"s_movk_i32 s{sXo}, {c*128}")
                a(f"buffer_load_dwordx4 v{vX+m}, {R(rX)}, s{sXo} offen {g.opt.get('xfl','')} lds")
                if skip: a.lab(skip)
            else:
                ks, sec = divmod(m, 3)
                a(f"s_add_u32 m0, s{sMb}, {slot(c) + WOFF + m*4096 - sec*1280}")
                if sec == 0 or split: a(f"s_mov_b32 s{g.sLd}, {c*245760 + ks*122880}")
                a(f"buffer_load_dwordx4 v{vW}, {R(rW)}, s{g.sLd} offen offset:{sec*1280} {g.opt.get('wfl','')} lds")
        look = g.look
        def pre():
            g.ptrs2()
            a(f"s_lshl_b32 s{sTmp}, s{sLW}, 3"); a(f"v_add_u32 v5, s{sTmp}, v1"); a("v_mul_u32_u24 v5, 1280, v5"); a(f"v_add_u32 v{vWO}, v5, v4")
            a(f"s_getreg_b32 s84, hwreg(HW_REG_XCC_ID, 0, 3)"); a(f"s_lshl_b32 s84, s84, 2"); a(f"s_lshl_b32 s84, 1, s84")
            a(f"s_and_b32 s83, s2, 1"); a(f"s_lshl1_add_u32 s83, s{sTB}, s83"); a(f"s_lshl_b32 s83, s83, 7"); a(f"s_add_u32 s83, s83, {WS_AR}")
            g.emit([x for x in g.arr_load() if not x.startswith("s_load")])
        for c in range(10):
            for j in range(look): issue(c, j)
            if c == g.opt.get("lpre", 0): pre()
            arrc = g.opt.get("arrc", 6)
            if c == arrc - 1: a(f"s_load_dword s85, {S(rDBG,2)}, {63*4}")
            if c == arrc:
                a("s_waitcnt lgkmcnt(0)")
                a("s_cmp_eq_u32 s85, 0"); a("s_cbranch_scc1 L_ll_init")
                a.lab("L_ll_initok")
                a(f"s_cmp_eq_u32 s{sLW}, 3"); a("s_cbranch_scc0 L_ll_na")
                if not g.opt.get("noarr"): a(f"s_atomic_add s84, {S(rWS,2)}, s83")
                a.lab("L_ll_na")
                def t():
                    a.lab("L_ll_init")
                    a(f"v_mov_b32 v6, {63*4}"); a(f"s_mov_b32 s{sCnt}, 0")
                    a.lab("L_ll_init2")
                    a(f"buffer_load_dword v7, v6, {R(rDBG)}, 0 offen sc1")
                    a(f"s_add_u32 s{sCnt}, s{sCnt}, 1")
                    a("s_waitcnt vmcnt(0)")
                    a("v_readfirstlane_b32 s85, v7")
                    a(f"s_cmp_lt_u32 s{sCnt}, {SPIN}"); a("s_cbranch_scc0 L_ll_initok")
                    a("s_cmp_eq_u32 s85, 0"); a("s_cbranch_scc0 L_ll_initok")
                    a("s_sleep 4"); a("s_branch L_ll_init2")
                g.tail.append(t)
            if c == 9: g.emit([x for x in g.arr_load() if x.startswith("s_load")])
            if c == 8 and g.opt.get("warm", 0):
                a("s_mov_b64 exec, 0")
                for j in range(3): a(f"s_cmp_eq_u32 s{sLW}, {j}"); a(f"s_cbranch_scc1 L_hop{j}")
                a("s_branch L_hop3"); a.lab("L_hopret"); a("s_mov_b64 exec, -1")
            if c > 0:
                a(f"s_waitcnt vmcnt({look - (1 if c == 9 and g.opt.get('split', 0) else 0)})")
                a("s_barrier")
            for j in range(look, 10): issue(c, j)
        g.stamp(1)
        a(f"s_add_u32 s{sMb}, s{sMb}, {L_WO}")
        a(f"s_sub_u32 s{sXo}, s{sCG}, s{sM0}"); a(f"s_mul_i32 s{sXo}, s{sXo}, 81920")
        n1 = g.opt.get("wo1", 7)
        for e in range(g.opt.get("woA", 12)):
            if e == g.opt.get("wo0", 3) and g.opt.get("split", 0):
                a(f"s_waitcnt vmcnt({e + 4})")
                a("s_barrier")
            if e == n1:
                a(f"s_waitcnt vmcnt({n1})")
                a("s_barrier")
            if e == 10: a(f"s_sub_u32 s{sXo}, 409600, s{sXo}")
            if e % 2 == 0: g.gidx(e//2, sWo, sTmp); a(f"s_mul_i32 s{sWo}, s{sWo}, 81920")
            a(f"s_add_u32 m0, s{sMb}, {e*4096}")
            a(f"s_add_u32 s{sWo}, s{sWo}, {'s%d' % sXo if e % 2 == 0 else 40960}")
            a(f"buffer_load_dwordx4 v{vWO}, {R(rWO)}, s{sWo} offen lds")
        if g.opt.get("woA", 12) <= 10: a(f"s_sub_u32 s{sXo}, 409600, s{sXo}")
        a("s_branch L_lpost")
        def lpost():
            a.lab("L_lpost")
            g.stamp(2)
            g.l_setup()
            a(f"s_mov_b64 s[72:73], {S(rWS,2)}")
            for j in range(1, 5 if not g.opt.get("woc", 0) else 0):
                g.gidx(5+j, sT, sTmp); a(f"s_mul_i32 s{sT}, s{sT}, 81920"); a(f"s_add_u32 s{21+j}, s{sT}, s{sXo}")
            a(f"s_mul_i32 s84, s{sS1}, {5*7168}"); a(f"s_add_u32 s84, s84, {L_QK}")
            a(f"s_and_b32 s{sT}, s{sLW}, 1"); a(f"s_mul_i32 s82, s{sT}, 1536"); a(f"s_lshl_b32 s83, s{sT}, 9"); a(f"s_add_u32 s83, s83, 3584")
            a(f"s_mov_b32 s{sSlot}, {CSC}"); a(f"s_mov_b32 s{sT}, {CSC}")
            a(f"s_mov_b32 s{sCnt}, 0")
            a(f"s_cmp_eq_u32 s{sNeed}, s{sM0}")
            g.stamp(5)
            a("s_cbranch_scc1 L_sdone")
            if g.opt.get("sp", 1):
                a("s_waitcnt vmcnt(0)")
                a(f"buffer_load_dword v44, v41, {R(rWS)}, 0 offen sc1")
                a("s_sleep 2")
                a.lab("L_spoll")
                a(f"buffer_load_dword v42, v41, {R(rWS)}, 0 offen sc1")
                a(f"s_add_u32 s{sCnt}, s{sCnt}, 1"); a(f"s_cmp_lt_u32 s{sCnt}, {SPIN}")
                a("s_waitcnt vmcnt(1)")
                a("v_cmp_eq_u32 vcc, 0, v44"); a("s_cbranch_scc0 L_sok"); a("s_cbranch_vccz L_sok")
                a(f"buffer_load_dword v44, v41, {R(rWS)}, 0 offen sc1")
                a("s_waitcnt vmcnt(1)")
                a("v_cmp_eq_u32 vcc, 0, v42"); a("s_cbranch_vccnz L_spoll")
            else:
                a.lab("L_spoll")
                a(f"buffer_load_dword v42, v41, {R(rWS)}, 0 offen sc1")
                a(f"s_add_u32 s{sCnt}, s{sCnt}, 1"); a(f"s_cmp_lt_u32 s{sCnt}, {SPIN}")
                a("s_waitcnt vmcnt(0)")
                a("v_cmp_eq_u32 vcc, 0, v42"); a("s_cbranch_scc0 L_sok"); a("s_cbranch_vccnz L_spoll")
            a.lab("L_sok")
            for so, n in ((82, 2), (83, 3)):
                a(f"s_add_u32 m0, s84, s{so}"); a(f"s_add_u32 s{sTmp}, s{sS0}, s{so}")
                for e in range(n): a(f"buffer_load_dwordx4 v45, {R(rWS)}, s{sTmp} offen offset:{1024*e} sc1 lds")
            g.stamp(4)
            a.lab("L_sdone")
            g.cntwait("l", 46, 47)
            if g.opt.get("prio", 1): a("s_setprio 1")
            a("s_waitcnt vmcnt(0)")
            g.stamp(6)
            a("s_branch L_units")
        g.lpost = lpost

    sLd = 66
    def l_setup(g):
        a = g.a
        sLW, sTmp, sS0, sS1, sNeed = 64, 68, 69, 70, 71
        a(f"s_lshl_b32 s{sT}, s{sLW}, 30"); a(f"s_and_b32 s{sT}, s{sT}, 0x80000000"); a(f"s_sub_u32 s{sTmp}, s{sM0}, 4")
        a("v_bfe_u32 v8, v0, 3, 2"); a(f"v_add_u32 v8, s{sTmp}, v8"); a("v_and_b32 v8, 0x80000000, v8"); a(f"v_xor_b32 v8, s{sT}, v8"); a("v_lshl_or_b32 v45, v0, 4, v8")
        a(f"v_mov_b32 v46, {L_CNT}")
        a(";cut")
        g.fl_addr()
        a(f"s_lshr_b32 s{sS1}, s{sLW}, 1")
        a(f"s_mul_i32 s{sTmp}, s{sS1}, 3")
        g.unit_setup(sTmp)
        a(";cut")
        for r in range(g.B1, g.B1+24, 2): a(f"v_mov_b64 {V(r,2)}, 0")
        a(";cut")
        a(f"s_lshl1_add_u32 s{sS0}, s{sCG}, s{sS1}"); a(f"s_mul_i32 s{sS0}, s{sS0}, 7168"); a(f"s_mul_i32 s{sT}, s{sTB}, {BLK}"); a(f"s_add_u32 s{sS0}, s{sS0}, s{sT}")
        a(f"s_lshl2_add_u32 s{sT}, s{sS1}, s{g.sFL}"); a(f"v_mov_b32 v41, s{sT}")
        a(f"s_lshl_b32 s{sNeed}, s{sS1}, 2")
        a(";cut")
        g.emit(g.unit_late()[:-2])
        a(f"s_lshl_b32 s{sT}, s{sS1}, 3"); a(f"s_lshl_b32 s{sT}, 0x100, s{sT}"); a(f"v_mov_b32 v{g.vK+6}, s{sT}")

    AQ, AK, AV = 4, 32, 60
    XA = (88, 128); WB = (116, 156)
    VL, VR = 168, 184
    vXA0, vXA1, vWB, vO = 248, 249, 250, 125
    mSend, mCL = 64, 66
    sXg, sXf, sPL, sPR, sKey, sD = 80, 81, 82, 83, 75, 79

    def cwave(g):
        a = g.a
        a(".p2align 12")
        for _ in range(g.opt.get("pad", 0) // 4): a("s_nop 0")
        a.lab("L_cwave")
        sM, sAL, sAR, sU = 74, 75, 78, 79
        a("v_and_b32 v1, 15, v0")
        a("v_lshrrev_b32 v2, 4, v0")
        for r in range(4): a(f"v_mov_b32 v{88+r}, 0")
        a("v_lshlrev_b32 v12, 7, v0")
        g.ptrs(); g.ptrs2(); g.fl_addr()
        a(f"s_mul_i32 s{sJ}, s{sCG}, 14336"); a(f"s_mul_i32 s{sT}, s{sTB}, {BLK}"); a(f"s_add_u32 s{sJ}, s{sJ}, s{sT}")
        a(f"s_cmp_eq_u32 s{sW}, 0"); a("s_cbranch_scc0 L_ch1")
        a("s_mov_b64 exec, 3")
        a(f"buffer_store_dwordx4 v[88:91], v12, {R(rWS)}, s{g.sFL} offen sc1")
        a("s_branch L_ch3")
        a.lab("L_ch1")
        if g.opt.get("tlb", 1):
            a(f"s_cmp_eq_u32 s{sW}, 3"); a("s_cbranch_scc0 L_ch2" if g.opt.get("mb", 0) else "s_cbranch_scc0 L_ch3")
            a(f"s_max_i32 s{sT}, s{sI0}, 0"); a(f"s_mul_i32 s{sT}, s{sT}, 2560"); a(f"v_mul_u32_u24 v13, {100*2560}, v0")
            a("s_mov_b64 exec, 3")
            a(f"buffer_load_dword v{g.XA[1]}, v13, {R(rOUT)}, s{sT} offen sc1")
            if g.opt.get("tlb2", 0):
                a("s_mov_b64 exec, 1"); a(f"s_lshl_b32 s{sT}, s2, 7"); a(f"s_add_u32 s{sCnt}, s{sT}, {640*3840 - 200*128}")
                a(f"buffer_load_dword v{g.XA[1]}, v13, {R(rW)}, s{sCnt} offen"); a(f"buffer_load_dword v{g.XA[1]}, v13, {R(rWO)}, s{sT} offen")
        mb = g.opt.get("mb", 0)
        if mb:
            a("s_branch L_ch3")
            a.lab("L_ch2")
            if mb == 1: a(f"s_cmp_eq_u32 s{sW}, 1"); a("s_cbranch_scc0 L_ch3")
            g.wtouch_addr(12, 13, 14)
            a(f"s_lshr_b32 s{sT}, s2, 3"); a(f"s_mul_i32 s{sCnt}, s{sW}, 25"); a(f"s_add_u32 s{sT}, s{sT}, s{sCnt}"); a(f"s_add_u32 s{sT}, s{sT}, {g.opt.get('mb0', 3)-25}")
            a(f"s_mul_i32 s{sT}, s{sT}, {16*3840}"); a(f"v_add_u32 v14, s{sT}, v14")
            a("s_mov_b32 exec_hi, 0x0fffffff")
            a(f"buffer_load_dword v{g.XA[1]}, v14, {R(rW)}, 0 offen")
        a.lab("L_ch3")
        a("s_mov_b64 exec, -1")
        a(f"s_add_u32 s{sM}, s{sW}, 5"); a(f"s_sub_u32 s{sM}, s{sM}, s{sM0}")
        a(f"s_cmp_ge_u32 s{sM}, 5"); a(f"s_cselect_b32 s{sT}, 5, 0"); a(f"s_sub_u32 s{sM}, s{sM}, s{sT}")
        a(f"s_cmp_gt_u32 s{sW}, s{sM0}"); a(f"s_subb_u32 s{g.sPL}, s{sW}, 0")
        a(f"s_cmp_lt_u32 s{sW}, s{sM0}"); a(f"s_addc_u32 s{g.sPR}, s{sW}, 0")
        a(f"s_cmp_eq_u32 s{sM}, 0"); a(f"s_cselect_b32 s{g.sPL}, s{g.sPR}, s{g.sPL}")
        a(f"s_cmp_eq_u32 s{sM}, 4"); a(f"s_cselect_b32 s{g.sPR}, s{g.sPL}, s{g.sPR}")
        a(f"s_cmp_eq_u32 s{g.sPL}, 0"); a("s_cselect_b32 s84, 0x204, 4")
        a(f"s_cmp_eq_u32 s{g.sPR}, 3"); a("s_cselect_b32 s84, 0x20004, s84")
        if g.opt.get("allp"): a("s_mov_b32 s84, 0x20204")
        a(f"s_mul_i32 s{g.sPL}, s{g.sPL}, 7168"); a(f"s_mul_i32 s{g.sPR}, s{g.sPR}, 7168")
        a(f"s_add_u32 s{g.sPL}, s{g.sPL}, {L_P}"); a(f"s_add_u32 s{g.sPR}, s{g.sPR}, {L_P}")
        a(f"v_cmp_gt_u32 vcc, s{sM}, v2")
        a("v_lshrrev_b32 v12, 2, v1")
        a(f"v_cmp_gt_u32 {S(g.mCL,2)}, s{sM}, v12")
        a(f"s_cmp_eq_u32 s{sW}, 3"); a(f"s_cselect_b64 {S(g.mSend,2)}, -1, 0"); a(f"s_cselect_b32 s{sT}, 2, -1"); a(f"s_cselect_b32 s{sU}, 508, 0")
        a(f"s_xor_b64 {S(g.mSend,2)}, {S(g.mSend,2)}, vcc")
        a(f"s_mul_i32 s{g.sXg}, s{sT}, 7168"); a(f"s_add_u32 s{g.sXg}, s{g.sXg}, s{sJ}")
        a(f"s_add_u32 s{g.sXf}, s{g.sFL}, s{sU}"); a(f"s_sub_u32 s{g.sXf}, s{g.sXf}, 252")
        a(f"s_add_u32 s{sCnt}, s{sW}, 1"); a(f"s_and_b32 s{sCnt}, s{sCnt}, 2"); a(f"s_cselect_b32 s{g.sXf}, 0, s{g.sXf}")
        a(f"s_cmp_eq_u64 {S(g.mSend,2)}, 0"); a(f"s_cselect_b32 s{g.sXf}, 0, s{g.sXf}")
        a(f"s_lshr_b32 s{sU}, s{sW}, 1"); a(f"s_mul_i32 s{sT}, s{sU}, 7168"); a(f"s_add_u32 s{sJ}, s{sJ}, s{sT}")
        a(f"s_and_b32 s{sT}, s{sW}, 1"); a(f"s_lshl_b32 s{sT}, s{sT}, 9"); a(f"s_add_u32 s{sJ}, s{sJ}, s{sT}")
        a(f"s_add_u32 s{sAL}, s{sU}, 1")
        g.unit_setup(sAL)
        if not g.opt.get("zl", 0):
            a(f"s_lshl_b32 s{sT}, s{sW}, 13"); a(f"s_add_u32 s{sT}, s{sT}, {L_P}"); a(f"v_add_u32 v8, s{sT}, v{g.vL16}")
            for j in range(8): a(f"ds_write_b128 v8, v[88:91] offset:{1024*j}")
        a(f"s_and_b32 s{sT}, s2, 1"); a(f"s_xor_b32 s{sT}, s{sT}, 1"); a(f"s_mul_i32 s{sT}, s{sT}, 1280"); a(f"s_mul_i32 s72, s{sTB}, {BLK}"); a(f"s_add_u32 s72, s72, s{sT}")
        a(f"s_add_u32 s72, s72, s{rWS}"); a(f"s_addc_u32 s73, s{rWS+1}, 0"); a("s_mov_b32 s78, 1")
        a("v_lshrrev_b32 v8, 1, v1"); a("v_xor_b32 v9, v8, v2"); a("v_lshlrev_b32 v9, 4, v9")
        a(f"v_lshl_add_u32 v{g.vXA0}, v1, 7, v9"); a(f"v_xor_b32 v{g.vXA1}, 64, v{g.vXA0}")
        g.tr_addr(g.vWB, f"s{sW}", WOFF)
        g.xres_addr()
        for r in range(g.VL, g.VL+64, 4):
            a(f"v_mfma_f32_16x16x32_bf16 {V(r,4)}, v[88:91], v[88:91], 0")

        def reads(buf, ks):
            out = []
            for sec in range(3):
                for ab in range(2):
                    out.append(f"ds_read_b64_tr_b16 {V(g.WB[buf]+4*sec+2*ab,2)}, v{g.vWB} offset:{(ks*3+sec)*4096+ab*2048}")
            for t in range(7):
                out.append(f"ds_read_b128 {V(g.XA[buf]+4*t,4)}, v{g.vXA0 if ks == 0 else g.vXA1} offset:{t*2048}")
            return out
        first = [True]
        def mf(buf, t, sec):
            acc = V((g.AQ, g.AK, g.AV)[sec]+4*t, 4); x = V(g.XA[buf]+4*t, 4); w = V(g.WB[buf]+4*sec, 4)
            return f"v_mfma_f32_16x16x32_bf16 {acc}, {x if sec == 2 else w}, {w if sec == 2 else x}, {0 if first[0] else acc}"
        def phase(buf, fill):
            mo = g.opt.get("mo", 0)
            if mo == 0: ms = [mf(buf, t, sec) for t in range(7) for sec in range(3)]
            if mo == 1: ms = [mf(buf, t, sec) for sec in range(3) for t in range(7)]
            if mo == 2: ms = [mf(buf, t, sec) for t in range(7) for sec in range(2)] + [mf(buf, t, 2) for t in range(7)]
            if mo == 3: ms = [mf(buf, t, sec if t % 2 == 0 else 1-sec) for t in range(7) for sec in range(2)] + [mf(buf, t, 2) for t in range(7)]
            if g.opt.get("nomf"): ms = [m if i % g.opt["nomf"] else "s_nop 3" for i, m in enumerate(ms)]
            fill = list(fill)
            if g.opt.get("nord"): fill = [[] if isinstance(f, str) and f.startswith("ds_read") else f for f in fill]
            for m in ms:
                a(m)
                if fill:
                    f = fill.pop(0)
                    for x in (f if isinstance(f, list) else [f]):
                        if x.endswith(":"): a.lab(x[:-1])
                        else: a(x)
            assert not fill
            first[0] = False
        if g.opt.get("hop", 1):
            a("s_mov_b64 exec, 0")
            for j in range(3): a(f"s_cmp_eq_u32 s{sW}, {j}"); a(f"s_cbranch_scc1 L_pg{j+1}")
            a("s_branch L_pg4"); a.lab("L_hopret"); a("s_mov_b64 exec, -1")
        a(f"s_cmp_eq_u32 s{sW}, 0"); a("s_cbranch_scc0 L_ch4")
        a(f"v_mov_b32 v1, s{g.sFL}")
        a("s_waitcnt vmcnt(0)")
        a(f"buffer_load_dword v2, v1, {R(rWS)}, 0 offen sc1")
        a("s_branch L_ch5")
        a.lab("L_ch4")
        a("s_waitcnt vmcnt(0)")
        a.lab("L_ch5")
        a(f"s_lshl_b32 s{sT}, s{sW}, 13"); a(f"s_add_u32 s{sT}, s{sT}, {L_P}"); a(f"v_add_u32 v1, s{sT}, v{g.vL16}")
        g.stamp(1)
        a("s_barrier")
        g.stamp(2)
        for r in reads(0, 0): a(r)
        slot = lambda c: (0, 2*SLOT, SLOT)[c % 3]
        zj = list(range(8)); zb = g.opt.get("zb", (2, 2, 2, 2)); za = g.opt.get("za", ())
        assert sum(zb) + sum(za) == 8
        for c in range(10):
            if c > 0:
                st = [[("s_memrealtime" if g.opt.get("rt") else "s_memtime") + " s[98:99]"]] if g.stamps is True or g.opt.get("bars") else []
                bp = g.opt.get("bp9", 0) if c == 9 else g.opt.get("bp", 0)
                pre = [x for x in g.arr_load() if not x.startswith("s_load")] if c == 8 else []
                ex = [pre] if pre else (g.arr_check("c", sT, sCnt, 1, g.VL) if c == 9 else [])
                if g.opt.get("zl", 0) and c < len(za) and za[c]: ex = [[x] for x in zw(za[c])]
                rd = reads(0, 0)
                if c == 9 and g.opt.get("split", 0): rd = rd[2:4] + rd[6:] + rd[0:2]
                head = ex[:bp] + [[]] * (bp - len(ex)); ex = ex[bp:]
                room = 21 - bp - 1 - len(ex) - g.opt.get("bgap", 3 if bp else 0)
                grp = [rd[n*len(rd)//min(room, len(rd)):(n+1)*len(rd)//min(room, len(rd))] for n in range(min(room, len(rd)))]
                phase(1, head + [["s_barrier"] + (st[0] if st else [])] + grp + ex)
            a("s_waitcnt lgkmcnt(0)")
            book = [[f"s_cmp_eq_u32 s{sCG}, {c}", f"s_cbranch_scc1 L_xres_{c}", f"L_xret_{c}:"]]
            if c < 9:
                d = (slot(c+1) - slot(c)) & 0xffffffff
                book += [f"v_add_u32 v{r}, {d}, v{r}" for r in (g.vXA0, g.vXA1, g.vWB)]
            zw = lambda n: [f"ds_write_b128 v1, {V(g.VL,4)} offset:{1024*zj.pop(0)}" for _ in range(n)]
            if g.opt.get("zl", 0) and c < len(zb) and zb[c]:
                w_ = zw(zb[c]); book += [w_[:len(w_)//2], w_[len(w_)//2:]]
            if c == 4: book.append("s_waitcnt vmcnt(0)")
            if (g.stamps is True or g.opt.get("bars")) and 0 < c < 9: book.append(f"v_writelane_b32 v253, s98, {32+c}")
            if c == 9: break
            book += [[]] * (7 - len(book)) + ["s_waitcnt lgkmcnt(0)"]
            rd = reads(1, 1)
            if c == 8:
                for n, x in enumerate([x for x in g.arr_load() if x.startswith("s_load")]): rd[n] = [rd[n], x]
            phase(0, rd + book)
        rd = reads(1, 1)
        rd = rd[2:4] + rd[6:] + rd[0:2] + rd[4:6]
        cv = lambda s_, t: [f"v_cvt_pk_bf16_f32 v{s_+4*t+h}, v{s_+4*t+2*h}, v{s_+4*t+2*h+1}" for h in range(2)]
        stK = lambda t, fl=g.opt.get("sfl", ""): f"buffer_store_dwordx2 {V(g.AK+4*t,2)}, v1, {R(rWS)}, s{sCnt} offen offset:{t*512} {fl}"
        stQ = lambda t, fl=g.opt.get("sfl", ""): f"buffer_store_dwordx2 {V(g.AQ+4*t,2)}, v1, {R(rWS)}, s{g.sXg} offen offset:{t*512} {fl}"
        wK = lambda t: f"ds_write_b64 v2, {V(g.AK+4*t,2)} offset:{3584+t*512}"
        wQ = lambda t: f"ds_write_b64 v2, {V(g.AQ+4*t,2)} offset:{t*512}"
        nq = g.opt.get("nq", 3)
        ms = [mf(0, t, 1) for t in range(7)] + [mf(0, t, 0) for t in range(nq)] + [mf(1, t, 1) for t in range(7)]
        fill = [rd[0:2], rd[2:4], rd[4:5], rd[5:7], rd[7:8], rd[8:10], rd[10:11], rd[11:13]] + book
        if g.opt.get("split", 0):
            nq = g.opt.get("nq", 6)
            ms = [mf(0, t, 1) for t in range(7)] + [mf(0, t, 0) for t in range(nq)] + [mf(1, t, 1) for t in range(7)]
            b9 = g.opt.get("b9", 5)
            fill = [rd[2:4], rd[4:6], rd[6:8], rd[8:9]] + book
            fill += [[]] * (b9 - len(fill)) + [["s_barrier"] + rd[0:2], rd[9:11], reads(0, 0)[4:6], rd[11:13]]
        fill += [[]] * (6 + nq - len(fill)) + [[f"s_waitcnt lgkmcnt({6 if g.opt.get('split', 0) else 4})"]]
        assert len(fill) == 7 + nq
        fill += [[f"s_mul_i32 s{sCnt}, s{sW}, 7168", f"s_add_u32 s{sCnt}, s{sCnt}, {L_QK+7168}", "v_lshlrev_b32 v1, 3, v0"],
                 [f"v_add_u32 v2, s{sCnt}, v1", f"s_cmp_eq_u32 s{g.sLoc}, 0", f"s_cselect_b32 s70, 0, s{g.sXf}"],
                 ["s_cmp_eq_u32 s70, 0", f"s_cselect_b64 vcc, 0, {S(g.mSend,2)}", "v_bfrev_b32 v3, 1"],
                 ["v_cndmask_b32_e64 v1, v3, v1, vcc", f"s_add_u32 s{sCnt}, s{g.sXg}, 3584"], [], [],
                 ["s_waitcnt lgkmcnt(0)", f"s_load_dword s{g.sKey}, {S(rDBG,2)}, {0*4}"]]
        for m in ms:
            a(m); g.emit([fill.pop(0)])
        g.stamp(3)
        nst = [0]
        def stub():
            if not g.opt.get("warm", 0): return
            a.lab(f"L_hop{nst[0]}"); nst[0] += 1
            a("s_cbranch_execz L_hopret")
        def dump(send):
            il = g.opt.get("il", 0) or not send
            ms = [mf(0, t, 0) for t in range(nq, 7)] + [mf(1, t, 0) for t in range(7)]
            ops = []
            late_k = send and g.opt.get("lk", 1)
            for t in range(7): ops += cv(g.AK, t) + ([stK(t)] if send else []) + ([] if late_k else [wK(t)])
            for n, m in enumerate(ms):
                a(m)
                k1 = (n + 1) * len(ops) // len(ms); k0 = n * len(ops) // len(ms)
                g.emit(ops[k0:k1])
                if not send and n in (5, len(ms)-1): stub()
            def count():
                a(f"v_mov_b32 v{g.AQ+2}, {L_CNT}"); a(f"v_mov_b32 v{g.AQ+3}, 1")
                a("s_mov_b64 exec, 1")
                a(f"ds_add_u32 v{g.AQ+2}, v{g.AQ+3}")
                a("s_mov_b64 exec, -1")
            for t in range(7):
                g.emit(cv(g.AQ, t) + ([stQ(t)] if send else []))
                if il: a(wQ(t)); a(mf(0, t, 2))
                if not send and t == 3: stub()
            if not il:
                for t in range(7):
                    if late_k and t == g.opt.get("fk", 6):
                        a("v_mov_b32 v1, 0"); a("v_mov_b32 v3, 1"); a("s_mov_b64 exec, 1"); a("s_waitcnt vmcnt(0)")
                        a(f"buffer_store_dword v3, v1, {R(rWS)}, s70 offen")
                        if g.opt.get("chain"): g.stamp(13)
                        a("s_mov_b64 exec, -1")
                    if late_k: a(wK(t))
                    a(wQ(t)); a(mf(0, t, 2))
            count()
        a("s_cbranch_vccz L_nosend")
        if g.opt.get("adj", 1):
            dump(True); a("s_branch L_dumped")
            a.lab("L_nosend"); stub(); dump(False)
            a.lab("L_dumped")
        else:
            dump(True)
            a.lab("L_dumped")
            def t():
                a.lab("L_nosend"); stub(); dump(False); a("s_branch L_dumped")
            g.tail.append(t)
        late = g.unit_late()
        for t in range(7):
            if t == g.opt.get("fpos", 3) and not g.opt.get("lk", 1):
                a("v_mov_b32 v1, 0"); a("v_mov_b32 v2, 1")
                a("s_cmp_eq_u32 s70, 0"); a("s_cbranch_scc1 L_noflag")
                a("s_mov_b64 exec, 1"); a("s_waitcnt vmcnt(0)")
                a(f"buffer_store_dword v2, v1, {R(rWS)}, s70 offen")
                if g.opt.get("chain"): g.stamp(13)
                a.lab("L_noflag")
                a("s_mov_b64 exec, -1")
            a(mf(1, t, 2))
            if t == g.opt.get("cpos", 3): a(f"ds_read_b32 v3, v{g.AQ+2}")
            for _ in range(2):
                if late: a(late.pop(0))
        g.emit(late)
        a(f"s_cmp_lg_u32 s70, s{g.sXf}"); a("s_cbranch_scc1 L_send1")
        a.lab("L_sent")
        def t():
            a.lab("L_send1")
            a("v_lshlrev_b32 v1, 3, v0")
            a(f"s_mov_b64 exec, {S(g.mSend,2)}")
            for t in range(7): a(stK(t, "sc1")); a(stQ(t, "sc1"))
            a("s_mov_b64 exec, 1"); a("v_mov_b32 v1, 0"); a("s_waitcnt vmcnt(0)")
            a(f"buffer_store_dword v{g.AQ+3}, v1, {R(rWS)}, s{g.sXf} offen sc1"); a("s_mov_b64 exec, -1")
            a("s_branch L_sent")
        g.tail.append(t)
        def t():
            for c in range(10):
                a.lab(f"L_xres_{c}"); a(f"s_call_b64 s[26:27], L_xres"); a(f"s_branch L_xret_{c}")
            a.lab("L_xres"); g.xres_read(); a("s_setpc_b64 s[26:27]")
        g.tail.append(t)
        g.stamp(4)
        if g.opt.get("vpos", 1) == 0: g.vcvt()
        a("s_waitcnt lgkmcnt(0)")
        a("v_cmp_gt_u32 vcc, 4, v3"); a("s_cbranch_vccz L_cw_ok")
        g.cntwait("c", g.AQ+2, 3)
        a.lab("L_cw_ok")
        g.stamp(6)

    def flagstore(g, nm, sOff, off=0, wait=True):
        a = g.a
        a("v_mov_b32 v1, 0"); a("v_mov_b32 v3, 1")
        a(f"s_cmp_eq_u32 s{g.sLoc}, 0")
        a("s_mov_b64 exec, 1")
        if wait: a("s_waitcnt vmcnt(0)")
        a(f"s_cbranch_scc1 L_fs_{nm}")
        a(f"buffer_store_dword v3, v1, {R(rWS)}, s{sOff} offen offset:{off}")
        a.lab(f"L_fr_{nm}")
        a("s_mov_b64 exec, -1")
        def t():
            a.lab(f"L_fs_{nm}")
            a(f"buffer_store_dword v3, v1, {R(rWS)}, s{sOff} offen offset:{off} sc1")
            a(f"s_branch L_fr_{nm}")
        g.tail.append(t)

    def wtouch_addr(g, t0, t1, d):
        a = g.a
        a(f"v_mul_u32_u24 v{t0}, 4370, v0"); a(f"v_lshrrev_b32 v{t0}, 16, v{t0}")
        a(f"v_mul_u32_u24 v{t1}, 15, v{t0}"); a(f"v_sub_u32 v{t1}, v0, v{t1}")
        a(f"v_mul_u32_u24 v{d}, 52, v{t1}"); a(f"v_lshrrev_b32 v{d}, 8, v{d}")
        a(f"v_mul_u32_u24 v{d}, 640, v{d}"); a(f"v_lshl_add_u32 v{d}, v{t1}, 7, v{d}")
        a(f"v_mul_u32_u24 v{t0}, {4*3840}, v{t0}")
        a(f"s_bfe_u32 s{sT}, s2, 0x20001"); a(f"s_mul_i32 s{sT}, s{sT}, 6"); a(f"s_and_b32 s{sCnt}, s2, 1")
        a(f"s_add_u32 s{sT}, s{sT}, s{sCnt}"); a(f"s_mul_i32 s{sT}, s{sT}, 640")
        a(f"v_add3_u32 v{d}, s{sT}, v{d}, v{t0}")

    def pwait(g, nm, mask, first=True):
        a = g.a
        a.lab(f"L_pw_{nm}")
        a(f"ds_read_b32 v{g.vK+7}, v{g.vK+4} offset:4")
        a("s_waitcnt lgkmcnt(0)")
        a(f"v_bfi_b32 v{g.vK+7}, v{g.vK+7}, 0, {mask}")
        a(f"v_cmp_ne_u32 vcc, 0, v{g.vK+7}"); a(f"s_cbranch_vccnz L_pw_{nm}")

    def vcvt(g):
        a = g.a
        for dst, ex in ((g.VL, f"s_mov_b64 exec, {S(g.mCL,2)}"), (g.VR, "s_not_b64 exec, exec")):
            a(ex)
            for t in range(7):
                for h in range(2): a(f"v_cvt_pk_bf16_f32 v{dst+2+2*t+h}, v{g.AV+4*t+2*h}, v{g.AV+4*t+2*h+1}")
        a("s_mov_b64 exec, -1")

    def cntwait(g, nm, va, vd):
        a = g.a
        a.lab(f"L_cw_{nm}")
        a(f"ds_read_b32 v{vd}, v{va}")
        a("s_waitcnt lgkmcnt(0)")
        a(f"v_cmp_gt_u32 vcc, 4, v{vd}")
        a(f"s_cbranch_vccnz L_cw_{nm}")

    def tr_addr(g, dst, win, base, t0=9, t1=10, hmul=1024):
        a = g.a
        a(f"v_bfe_u32 v{t0}, v0, 3, 2")
        if win != "0": a(f"v_xor_b32 v{t0}, {win}, v{t0}")
        a(f"v_lshlrev_b32 v{t0}, 5, v{t0}")
        a(f"v_and_b32 v{t1}, 3, v0"); a(f"v_lshl_add_u32 v{t0}, v{t1}, 3, v{t0}")
        a(f"v_lshrrev_b32 v{t1}, 2, v0"); a(f"v_lshl_add_u32 v{t0}, v{t1}, 7, v{t0}")
        if hmul == 2048:
            a(f"v_and_b32 v{t1}, 32, v0"); a(f"v_lshl_add_u32 v{t0}, v{t1}, 5, v{t0}")
        a(f"v_add_u32 v{dst}, {base}, v{t0}")

    def poison_max(g, base, n, t, cont=False):
        a = g.a
        k = 0
        if not cont:
            a(f"v_max3_u32 v{t}, v{base}, v{base+1}, v{base+2}"); k = 3
        while k + 1 < n:
            a(f"v_max3_u32 v{t}, v{t}, v{base+k}, v{base+k+1}"); k += 2
        if k < n: a(f"v_max_u32 v{t}, v{t}, v{base+k}")

    def softmax(g):
        a = g.a
        a.lab("L_units")
        A, B, M = 4, 20, 36
        A1, A2, vK = 128, 144, g.vK
        sc = S(sSlot, 2)
        for u in range(4): a(f"ds_read_b64 {V(A2+2*u,2)}, v{vK+2+(u==0)} offset:{3584+u*512}")
        a("s_mov_b32 exec_lo, 0xff0000ff"); a("s_mov_b32 exec_hi, 0")
        for u in range(4): a(f"ds_read_b64 {V(g.B2+2*u,2)}, v{g.vQ2} offset:{u*512}")
        a("s_mov_b32 exec_lo, 0x00ff00ff"); a("s_mov_b32 exec_hi, exec_lo")
        for u in range(4): a(f"ds_read_b64 {V(g.B1+4*u,2)}, v{g.vQ1} offset:{u*512}")
        a("s_not_b64 exec, exec")
        for u in range(4): a(f"ds_read_b64 {V(g.B1+4*u+2,2)}, v{g.vQ1} offset:{u*512}")
        a("s_mov_b64 exec, -1")
        for u in range(4):
            if u == 0: a("s_waitcnt lgkmcnt(8)")
            a(f"v_mfma_f32_16x16x16_bf16 {V(A+4*u,4)}, {V(A2+2*u,2)}, {V(g.B2+2*u,2)}, {V(g.BI0 if u == 0 else g.BI,4)}")
            a(f"ds_read_b64 {V(A1+4*u,2)}, v{vK+(u==0)} offset:{3584+u*512}")
            a(f"ds_read_b64 {V(A1+4*u+2,2)}, v{g.vQ1} offset:{3584+u*512}")
        for u in range(4):
            a(f"s_waitcnt lgkmcnt({6-2*u})")
            a(f"v_mfma_f32_16x16x32_bf16 {V(A+4*u,4)}, {V(A1+4*u,4)}, {V(g.B1+4*u,4)}, {V(A+4*u,4)}")
        g.stamp(8)
        for u in range(4): a(f"v_max3_f32 v{M+u}, v{A+4*u}, v{A+4*u+1}, v{A+4*u+2}")
        for u in range(4): a(f"v_max_f32 v{M+u}, v{M+u}, v{A+4*u+3}")
        def red(op):
            a(f"v_permlane32_swap_b32 v{M}, v{M+1}"); a(f"v_permlane32_swap_b32 v{M+2}, v{M+3}")
            a(f"{op} v{M}, v{M}, v{M+1}"); a(f"{op} v{M+2}, v{M+2}, v{M+3}")
            a(f"v_permlane16_swap_b32 v{M}, v{M+2}")
            a(f"{op} v{M}, v{M}, v{M+2}")
        def bc():
            a(f"v_permlane16_swap_b32 v{M}, v{M+2}")
            a(f"v_mov_b32 v{M+1}, v{M}"); a(f"v_mov_b32 v{M+3}, v{M+2}")
            a(f"v_permlane32_swap_b32 v{M}, v{M+1}"); a(f"v_permlane32_swap_b32 v{M+2}, v{M+3}")
        red("v_max_f32")
        a(f"v_mul_f32 v{M+2}, s{sSlot}, v{M}"); a(f"v_mul_f32 v{M}, s{sSlot}, v{M}")
        bc()
        for k in range(0, 16, 2):
            u = k//4; sel = "op_sel_hi:[1,1,0]" if u % 2 == 0 else "op_sel:[0,0,1] op_sel_hi:[1,1,1]"
            a(f"v_pk_fma_f32 {V(A+k,2)}, {V(A+k,2)}, {sc}, {V(M+(u&2),2)} {sel} neg_lo:[0,0,1] neg_hi:[0,0,1]")
        norm = g.opt.get("norm", 1)
        if norm:
            for k in range(16): a(f"v_exp_f32 v{A+k}, v{A+k}")
            for u in range(4): a(f"v_pk_add_f32 {V(B+2*u,2)}, {V(A+4*u,2)}, {V(A+4*u+2,2)}")
            for u in range(4): a(f"v_add_f32 v{M+u}, v{B+2*u}, v{B+2*u+1}")
            red("v_add_f32")
            a(f"v_rcp_f32 v{M+2}, v{M}"); a(f"v_rcp_f32 v{M}, v{M}")
            bc()
            for u in range(4):
                sel = "op_sel_hi:[1,0]" if u % 2 == 0 else "op_sel:[0,1] op_sel_hi:[1,1]"
                for k in (0, 2): a(f"v_pk_mul_f32 {V(A+4*u+k,2)}, {V(A+4*u+k,2)}, {V(M+(u&2),2)} {sel}")
                for h in range(2): a(f"v_cvt_pk_bf16_f32 v{B+2*u+h}, v{A+4*u+2*h}, v{A+4*u+2*h+1}")
                a(f"ds_write_b64 v{g.vSP}, {V(B+2*u,2)} offset:{u*1024}")
        for u in range(0 if norm else 5):
            if u < 4:
                for k in range(4): a(f"v_exp_f32 v{A+4*u+k}, v{A+4*u+k}")
            if u > 0:
                for h in range(2): a(f"v_cvt_pk_bf16_f32 v{B+2*u-2+h}, v{A+4*u-4+2*h}, v{A+4*u-4+2*h+1}")
                a(f"ds_write_b64 v{g.vSP}, {V(B+2*u-2,2)} offset:{(u-1)*1024}")
        a("s_mov_b64 exec, 1")
        a(f"ds_add_u32 v{vK+4}, v{vK+6} offset:4")
        a("s_mov_b64 exec, -1")
        a(f"s_cmp_ge_u32 s{sW}, 4"); a("s_cbranch_scc0 L_cbeta")
        if g.opt.get("chain"): g.stamp(14)
        a("s_setprio 0")
        for e in range(g.opt.get("woA", 12), 12):
            assert e >= 10 and g.rot == 2
            a(f"s_add_u32 m0, s67, {e*4096}"); a(f"s_add_u32 s68, s65, {40960*(e&1)}")
            a(f"buffer_load_dwordx4 v43, {R(rWO)}, s68 offen lds")
        for e in range(12, 20 if not g.opt.get("woc", 0) else 0):
            a(f"s_sub_u32 m0, s67, {L_WO - L_WO2 - (e-12)*4096}")
            a(f"s_add_u32 s68, s{22 + e//2 - 6}, {40960*(e&1)}")
            a(f"buffer_load_dwordx4 v43, {R(rWO)}, s68 offen lds")
        a("s_branch L_lbeta")
        a.lab("L_cbeta")
        g.stamp(7)
        PL, PR = 88, 128
        if g.opt.get("woc", 0):
            assert g.rot == 2
            a("v_lshrrev_b32 v1, 3, v0"); a("v_and_b32 v2, 6, v1"); a("v_xor_b32 v2, v2, v0"); a("v_and_b32 v2, 7, v2")
            a("v_mul_u32_u24 v1, 1280, v1"); a("v_lshl_add_u32 v3, v2, 4, v1")
            for e in range(12, 20):
                a(f"s_add_u32 m0, s76, {L_WO2 + (e-12)*4096}")
                a(f"s_add_u32 s77, s77, 40960")
                a(f"buffer_load_dwordx4 v3, {R(rWO)}, s77 offen lds")
        if g.opt.get("vpos", 1) == 1: g.vcvt()
        if not norm:
            a("v_mov_b32 v1, 0x3f803f80")
            a(f"v_cndmask_b32_e64 v{g.BI}, 0, v1, {S(g.mCL,2)}"); a(f"v_cndmask_b32_e64 v{g.BI0}, v1, 0, {S(g.mCL,2)}")
            for r in (g.BI, g.BI0): a(f"v_mov_b32 v{r+1}, v{r}"); a(f"v_mov_b64 {V(r+2,2)}, {V(r,2)}")
        a(f"s_cmp_eq_u32 s{g.sKey}, 0"); a("s_cbranch_scc1 L_keypoll")
        a.lab("L_keyok")
        def t():
            a.lab("L_keypoll")
            a(f"v_mov_b32 v1, {0*4}"); a(f"s_mov_b32 s{sCnt}, 0")
            a.lab("L_keypoll2")
            a(f"buffer_load_dword v2, v1, {R(rDBG)}, 0 offen sc1")
            a(f"s_add_u32 s{sCnt}, s{sCnt}, 1")
            a("s_waitcnt vmcnt(0)")
            a(f"v_readfirstlane_b32 s{g.sKey}, v2")
            a(f"s_cmp_lt_u32 s{sCnt}, {SPIN}"); a("s_cbranch_scc0 L_keyok")
            a(f"s_cmp_eq_u32 s{g.sKey}, 0"); a("s_cbranch_scc0 L_keyok")
            a("s_sleep 4"); a("s_branch L_keypoll2")
        g.tail.append(t)
        a("v_and_b32 v77, 15, v0"); a("v_lshlrev_b32 v1, 2, v77")
        a(f"s_lshl_b32 s{g.sD}, s{sW}, 5"); a(f"s_add_u32 s{g.sD}, s{g.sD}, s{sI0}")
        a(f"s_lshl_b32 s67, s{sP}, 10"); a(f"s_add_u32 s67, s67, s{g.sD}"); a(f"s_lshl_b32 s67, s67, 2"); a(f"s_add_u32 s67, s67, {WS_G}")
        for q in range(2):
            a(f"v_add3_u32 v2, s{g.sD}, v77, {16*q}"); a("v_and_b32 v2, 0x400, v2"); a(f"v_lshl_or_b32 v{78+q}, v2, 21, v1")
            a(f"buffer_load_dword v{86+q}, v{78+q}, {R(rWS)}, s67 offen offset:{64*q} sc1")
        a(f"v_and_b32 v2, 32, v0"); a(f"v_lshl_add_u32 v{g.vO}, v2, 4, v{g.vL16}")
        a(f"v_add_u32 v1, s{g.sPL}, v{g.vL16}"); a(f"v_add_u32 v2, s{g.sPR}, v{g.vL16}")
        a(f"s_add_u32 s{sT}, s{sJ}, 4096"); a(f"s_add_u32 s68, s{sJ}, {WS_OG}"); a(f"s_add_u32 s69, s{sT}, {WS_OG}")
        if g.opt.get("chain"): g.stamp(14)
        g.pwait("c", "s84")
        g.stamp(9)
        for t in range(7):
            a(f"ds_read_b128 {V(PL+4*t,4)}, v1 offset:{t*1024}")
            a(f"ds_read_b128 {V(PR+4*t,4)}, v2 offset:{t*1024}")
        a(f"s_lshr_b32 s70, s{sW}, 1"); a(f"s_mul_i32 s70, s70, {7168-1024}"); a(f"s_lshl_b32 s{sCnt}, s{sW}, 9"); a(f"s_add_u32 s70, s70, s{sCnt}"); a(f"s_add_u32 s70, s70, {L_OWN}")
        a(f"v_add_u32 v83, s70, v{g.vO}")
        a(f"s_lshl_b32 s70, s{sW}, 2"); a(f"s_add_u32 s70, s70, {L_GF}"); a(f"v_mov_b32 v84, s70")
        OP = 60
        SM = 32
        def post(t):
            j, q = divmod(t, 2)
            o = [f"v_rcp_f32 v{SM+4*t}, v{SM+4*t}"]
            o += [f"v_pk_mul_f32 {V(4+4*t+k,2)}, {V(4+4*t+k,2)}, {V(SM+4*t,2)} op_sel_hi:[1,0]" for k in (0, 2)]
            o += [f"v_cvt_pk_bf16_f32 v{OP+2*t+h}, v{4+4*t+2*h}, v{4+4*t+2*h+1}" for h in range(2)]
            return o[3:] if norm else o
        def out(j):
            o = [f"v_permlane32_swap_b32 v{OP+4*j+h}, v{OP+4*j+2+h}" for h in range(2)]
            if j == 3: o.append("s_mov_b32 exec_hi, 0")
            if j == 0 and g.opt.get("halo", 1): o.append("s_mov_b32 exec_lo, 0xff00ff00")
            o.append(f"buffer_store_dwordx4 {V(OP+4*j,4)}, v{g.vO}, {R(rWS)}, s{68 if j < 2 else 69} offen offset:{(j%2)*2048} sc1")
            if j == 0 and g.opt.get("halo", 1): o.append("s_mov_b32 exec_lo, -1")
            return o
        q = []
        lag = 3 if norm else 2
        for t in range(7):
            a(f"s_waitcnt lgkmcnt({12-2*t})")
            if norm and t == 5: q += out(0)
            if t >= lag: q += post(t-lag)
            if not norm and t in (4, 6): q += out(t//2 - 2)
            ms = [f"v_mfma_f32_16x16x32_bf16 {V(SM+4*t,4)}, {V(g.BI,4)}, {V(PL+4*t,4)}, 0",
                  f"v_mfma_f32_16x16x32_bf16 {V(SM+4*t,4)}, {V(g.BI0,4)}, {V(PR+4*t,4)}, {V(SM+4*t,4)}",
                  f"v_mfma_f32_16x16x32_bf16 {V(4+4*t,4)}, {V(g.VL+2*t,4)}, {V(PL+4*t,4)}, 0",
                  f"v_mfma_f32_16x16x32_bf16 {V(4+4*t,4)}, {V(g.VR+2*t,4)}, {V(PR+4*t,4)}, {V(4+4*t,4)}"]
            for n, m in enumerate(ms[2:] if norm else ms):
                a(m)
                for _ in range(1 if n == 0 else 2):
                    if q: a(q.pop(0))
        p5, p6 = post(5), post(6)
        if norm: g.emit(q + post(4) + out(1) + p5 + p6 + out(2) + out(3))
        else: g.emit(q + p5[:1] + p6[:1] + p5[1:] + p6[1:3] + out(2) + p6[3:] + out(3))
        g.stamp(10)
        a("s_mov_b32 s84, 0x20200")
        g.pwait("c2", "s84")
        for j in (3, 0, 1, 2):
            a(f"ds_write_b128 v83, {V(OP+4*j,4)} offset:{j*2048}")
            if j == 3: a("s_mov_b32 exec_hi, -1")
        a("s_waitcnt lgkmcnt(0)")
        a("s_barrier")
        g.stamp(5)
        a("v_mov_b32 v1, 0"); a("v_mov_b32 v3, 1")
        a(f"s_lshl1_add_u32 s{sT}, s{sW}, s{g.sLoc}"); a(f"s_cmp_eq_u32 s{sT}, 1")
        a("s_mov_b64 exec, 1")
        a("s_waitcnt vmcnt(0)")
        if not g.opt.get("chain"): g.stamp(13)
        a("s_barrier")
        a("s_cbranch_scc0 L_nosig2")
        a(f"buffer_store_dword v3, v1, {R(rWS)}, s{g.sFL} offen offset:8")
        a.lab("L_nosig2")
        g.stamp(12)
        a(f"s_cmp_eq_u32 s{sW}, 1"); a("s_cbranch_scc0 L_nosig3")
        for j in range(5): a(f"s_atomic_add s78, s[72:73], {WS_FL+128+256*j}")
        a.lab("L_nosig3")
        a(f"s_cmp_eq_u32 s{sT}, 0"); a("s_cbranch_scc0 L_cfin")
        a(f"buffer_store_dword v3, v1, {R(rWS)}, s{g.sFL} offen offset:8 sc1")
        a("s_branch L_cfin")
        a.lab("L_lbeta")
        g.s2_setup(); g.s2_setup2()
        a("s_mov_b32 s84, 0x20200")
        g.pwait("l", "s84")
        g.stamp(9)

    vA, vB, vE = 224, 232, 236
    sO = 72
    sOut = 82
    def s2_setup2(g):
        a = g.a
        sB5, sR = 82, 83
        a(f"s_sub_u32 s{sB5}, s{sCG}, s{sM0}"); a(f"s_mul_i32 s{sB5}, s{sB5}, 14336")
        a(f"s_add_u32 s{sT}, s{sB5}, {WS_OG}")
        a(f"s_sub_u32 s{sCnt}, {WS_OG+5*14336}, s{sB5}")
        for j in range(10):
            g.gidx(j, sR, g.sCur)
            a(f"s_mul_i32 s{sR}, s{sR}, 14336"); a(f"s_add_u32 s{g.sO+j}, s{sT if j < 5 else sCnt}, s{sR}")
    def gidx(g, j, d, t):
        a = g.a
        if g.rot == 1 or j == 0 or (g.rot == 3 and j >= 5):
            a(f"s_add_u32 s{d}, s{sM0}, {j % 5}"); a(f"s_cmp_ge_u32 s{d}, 5"); a(f"s_cselect_b32 s{t}, 5, 0"); a(f"s_sub_u32 s{d}, s{d}, s{t}")
        elif j < 5: a(f"s_cmp_lt_u32 s{sM0}, {j}"); a(f"s_cselect_b32 s{d}, {j}, {j-1}")
        else: a(f"s_mov_b32 s{d}, {j-5}")
    def s2_setup(g):
        a = g.a
        sLW, sGi = 64, 84
        a(f"s_mul_i32 s{sT}, s{sTB}, {BLK}"); a(f"s_lshl_b32 s{sCnt}, s{sLW}, 11"); a(f"s_add_u32 s{sT}, s{sT}, s{sCnt}")
        a(f"v_add_u32 v{g.vA}, s{sT}, v{g.vL16}")
        a(f"s_cmp_eq_u32 s{sLW}, 3"); a(f"s_cselect_b32 s{sT}, 0x80000000, 0"); a(f"s_add_u32 s{sT}, s{sT}, 1024")
        a(f"v_add_u32 v{g.vA+1}, s{sT}, v{g.vA}")
        if g.opt.get("halo", 1):
            a(f"s_cmp_eq_u32 s{sLW}, 0"); a(f"s_cselect_b32 s{sT}, 8, 0"); a(f"v_bfi_b32 v8, v0, 0, s{sT}"); a(f"v_lshl_or_b32 v{g.vA}, v8, 28, v{g.vA}")
        for q in range(2): a(f"v_add_u32 v{g.vA+2+q}, 7168, v{g.vA+q}")
        g.tr_addr(g.vB, "0", L_WO, 8, 9, hmul=2048)
        for tau in range(1, 4): a(f"v_xor_b32 v{g.vB+tau}, {32*tau}, v{g.vB}")
        a(f"s_lshl_b32 s{sT}, s{sM0}, 8"); a(f"s_sub_u32 s{sT}, s{g.sFL}, s{sT}")
        a("v_and_b32 v8, 3, v0"); a(f"v_cmp_le_u32 vcc, s{sM0}, v8"); a("v_addc_co_u32 v8, vcc, 0, v8, vcc"); a(f"v_lshl_add_u32 v{g.vA+4}, v8, 8, s{sT}")
        a(";cut")
        a(f"s_mul_i32 s{sT}, s{sLW}, 4608"); a(f"s_add_u32 s{sT}, s{sT}, {L_EP}")
        a("v_and_b32 v8, 15, v0"); a("v_mul_u32_u24 v8, 144, v8"); a("v_lshrrev_b32 v9, 4, v0"); a("v_lshl_add_u32 v8, v9, 3, v8"); a(f"v_add_u32 v{g.vE}, s{sT}, v8")
        a("v_mul_u32_u24 v8, 144, v1"); a("v_lshl_add_u32 v8, v2, 4, v8"); a(f"v_add_u32 v{g.vE+1}, s{sT}, v8")
        a(f"s_mul_i32 s{sT}, s{sLW}, 9216"); a(f"s_add_u32 s{sT}, s{sT}, {L_BB}"); a(f"v_add_u32 v{g.vE+2}, s{sT}, v{g.vL16}")
        a("v_mul_u32_u24 v8, 2560, v1"); a(f"v_lshl_add_u32 v{g.vE+3}, v2, 4, v8")
        a(";cut")
        a(f"s_lshl_b32 s{sGi}, s{sLW}, 5"); a(f"s_add_u32 s{sT}, s{sGi}, s{sI0}")
        a(f"s_lshl1_add_u32 s{sT}, s{sT}, s{sP}"); a(f"s_mul_i32 s{sT}, s{sT}, 1280"); a(f"s_lshl_b32 s{sCnt}, s{sCG}, 7"); a(f"s_add_u32 s{sT}, s{sT}, s{sCnt}")
        a(f"s_cmp_eq_u32 s{sJB}, 4"); a(f"s_cselect_b32 s{sCnt}, 0, 8"); a(f"s_add_u32 s{sCnt}, s{sCnt}, 96")
        a(f"s_sub_u32 s{sGi}, s{sGi}, 8")
        for e in range(4):
            a(f"s_cmp_lt_u32 s{sGi}, s{sCnt}"); a(f"s_cselect_b32 s{g.sOut}, s{sT}, 0x80000000")
            a(f"v_add_u32 v{(229,230,231,250)[e]}, s{g.sOut}, v{g.vE+3}")
            if e < 3: a(f"s_add_u32 s{sGi}, s{sGi}, 8"); a(f"s_add_u32 s{sT}, s{sT}, {8*2560}")

    def stage2(g):
        if g.opt.get("w7", 1):
            g.stage2x(2, "")
            n0 = len(g.a.L)
            g.stage2x(1, "b")
            del g.a.L[n0:g.a.L.index("L_ookb:")]
        else: g.stage2x(2, "")
    def stage2x(g, NQ, sx):
        a0 = g.a
        class A:
            def __call__(_, x): a0(re.sub(r"(L_(?:ook|opoll|mb_ret|mb0|mb|gf_ret|gf|amp|ydret|yd1|yd2|yd3|yd))\b", lambda m: m.group(1) + sx, x))
            def lab(_, x): a0.lab(x + sx)
        a = A()
        a.lab("L_s2")
        D = g.depth
        NA = D + 2; NB = g.opt.get("nb", 8)
        AC, AF = 4, 36
        BF = AF + 8*NA
        assert BF + 16*NB <= 224, (BF, NB)
        vA, vB, vE, sO = g.vA, g.vB, g.vE, g.sO
        af = lambda k, q: AF + 8*(k % NA) + 4*q
        bf = lambda k: BF + 16*(k % NB)
        def aload(k): return [f"buffer_load_dwordx4 {V(af(k,q),4)}, v{vA+2*(k%2)+q}, {R(rWS)}, s{sO+k//2} offen sc1" for q in range(NQ)]
        def breads(k):
            return [[f"ds_read_b64_tr_b16 {V(bf(k)+4*tau+2*ab,2)}, v{(vB if k < 12 else 242)+tau} offset:{(k % 12)*4096+ab*1024}"] for tau in range(4) for ab in range(2)]
        p0 = g.opt.get("p0", 2); p1 = g.opt.get("p1", 3)
        for k in range(p0): g.emit(breads(k))
        a(f"s_mov_b32 s{sCnt}, 0"); a(f"s_add_u32 s{g.sFL}, s{g.sFL}, 128")
        a(f"s_lshl_b32 s{sT}, s{sW}, 11"); a(f"s_add_u32 s{sT}, s{sT}, {L_OWN-8192}"); a(f"v_add_u32 v3, s{sT}, v{g.vL16}")
        g.stamp(10)
        a("s_barrier")
        for k in range(2):
            for q in range(NQ): a(f"ds_read_b128 {V(af(k,q),4)}, v3 offset:{k*7168+q*1024}")
        a(f"s_lshl_b32 s{sT}, s{sW}, 2"); a(f"s_add_u32 s{sT}, s{sT}, {L_GF-16}"); a(f"v_mov_b32 v3, s{sT}"); a(f"s_mov_b32 s{g.sCur}, 0")
        a("s_waitcnt lgkmcnt(0)")
        kp = 10 - D - 1
        BBk = 20 - NB
        BBr = bf(BBk)
        assert bf(BBk+1) == BBr + 16
        GG = 240
        pend = []
        for k in range(20):
            tailf = []
            if k == 2:
                for kk in range(p0, p1): g.emit(breads(kk))
                a("s_waitcnt vmcnt(0)")
                a("s_barrier")
                if g.opt.get("prio2", 1): a("s_setprio 1")
                g.stamp(11)
                p2 = g.opt.get("p2", 5)
                for kk in range(p1, p2): g.emit(breads(kk))
                a(f"buffer_load_dword v2, v{vA+4}, {R(rWS)}, 0 offen offset:8 sc1")
                for kk in range(p2, NB): g.emit(breads(kk))
                for tau in range(4): a(f"v_subrev_u32 v{242+tau}, {L_WO-L_WO2}, v{vB+tau}")
                if g.opt.get("pp", 1):
                    a(f"buffer_load_dword v1, v{vA+4}, {R(rWS)}, 0 offen offset:8 sc1")
                    a("s_waitcnt vmcnt(1)")
                    a("v_cmp_eq_u32 vcc, 0, v2"); a("s_cbranch_vccz L_ook")
                    a(f"buffer_load_dword v2, v{vA+4}, {R(rWS)}, 0 offen offset:8 sc1")
                    a("s_waitcnt vmcnt(1)")
                    a("v_cmp_eq_u32 vcc, 0, v1"); a("s_cbranch_vccz L_ook")
                a("s_waitcnt vmcnt(0)")
                a("v_cmp_eq_u32 vcc, 0, v2"); a("s_cbranch_vccz L_ook")
                a.lab("L_opoll")
                a(f"buffer_load_dword v2, v{vA+4}, {R(rWS)}, 0 offen offset:8 sc1")
                a(f"s_add_u32 s{sCnt}, s{sCnt}, 1"); a(f"s_cmp_lt_u32 s{sCnt}, {SPIN}")
                a("s_waitcnt vmcnt(0)")
                a("v_cmp_eq_u32 vcc, 0, v2"); a("s_cbranch_scc0 L_ook"); a("s_cbranch_vccnz L_opoll")
                a.lab("L_ook")
                if NQ == 2 and g.opt.get("w7", 1): a0(f"s_cmp_eq_u32 s{sW}, 7"); a0("s_cbranch_scc1 L_ookb")
                g.stamp(12)
                if g.opt.get("smp0", 0): a(f"s_load_dword s{g.sCur}, {S(rWS,2)}, s{g.sFL} glc")
                for j in range(2, 2+D+1):
                    for x in aload(j): a(x)
                    if j == g.opt.get("gap", 3): g.emit(pend + breads(1+NB)); pend = []
                a("s_waitcnt lgkmcnt(15)")
                a(f"s_load_dword s{g.sCur}, {S(rWS,2)}, s{g.sFL} glc")
                a(f"s_waitcnt vmcnt({NQ*D})")
                g.stamp(7)
            if k == 2 and kp >= 4: tailf += [[f"s_load_dword s{g.sCur}, {S(rWS,2)}, s{g.sFL} glc"]]
            if k == kp:
                tailf += [[f"s_cmp_ge_u32 s{g.sCur}, 5", "s_cbranch_scc0 L_mb0", "L_mb_ret:"]]
                def t():
                    a.lab("L_mb0")
                    a("s_waitcnt lgkmcnt(0)")
                    a(f"s_cmp_ge_u32 s{g.sCur}, 5"); a("s_cbranch_scc1 L_mb_ret")
                    a.lab("L_mb")
                    a(f"s_load_dword s{g.sCur}, {S(rWS,2)}, s{g.sFL} glc")
                    a(f"s_add_u32 s{sCnt}, s{sCnt}, 1"); a(f"s_cmp_lt_u32 s{sCnt}, {SPIN}")
                    a("s_waitcnt lgkmcnt(0)")
                    a("s_cbranch_scc0 L_mb_ret")
                    a(f"s_cmp_ge_u32 s{g.sCur}, 5"); a("s_cbranch_scc0 L_mb")
                    a("s_branch L_mb_ret")
                g.tail.append(t)
            if k >= 2 and k + D + 1 < 20: tailf += [[x] for x in aload(k+D+1)]
            if 1 <= k and k != 2 and k-1+NB < 20: pend += breads(k-1+NB)
            kb = g.opt.get("kb", 17)
            if k == kb - 2: tailf = [["ds_read_b32 v2, v3"]] + tailf
            if k == kb:
                assert not pend
                a("v_cmp_eq_u32 vcc, 0, v2")
                pend += [[], ["s_cbranch_vccnz L_gf", "L_gf_ret:"]] + [[f"ds_read_b128 {V(BBr+4*j,4)}, v{vE+2} offset:{1024*j}"] for j in range(4*NQ)] + [[f"ds_read_b64 v[{GG}:{GG+1}], v{vE+2} offset:8192"]]
                def t():
                    a.lab("L_gf")
                    a("ds_read_b32 v2, v3"); a("s_waitcnt lgkmcnt(0)")
                    a("v_cmp_eq_u32 vcc, 0, v2"); a("s_cbranch_vccz L_gf_ret")
                    a("s_sleep 1"); a("s_branch L_gf")
                g.tail.append(t)
            nrd = g.opt.get("nrd", 6)
            if k < 2: nrd = 0
            rd = pend[:nrd]; pend = pend[nrd:]
            slots = [[] for _ in range(8)]
            for j, grp in enumerate(rd): slots[j] += grp
            for j, grp in enumerate(tailf): slots[8-len(tailf)+j] += grp
            if k == 18: slots[6] += [f"v_cmp_gt_u32 vcc, {NQ+1}, v2"]
            if k == 19:
                a("s_cbranch_vccnz L_yd")
                def t(k=k):
                    a.lab("L_yd")
                    if g.opt.get("yhop", 1): a("s_cbranch_execz L_yd2")
                    yd = bf(BBk+2)
                    a(f"v_add_u32 v1, {L_YD}, v{g.vL16}")
                    rdy = ["ds_read_b32 v246, v3 offset:16"] + [f"ds_read_b128 {V(yd+4*j,4)}, v1 offset:{1024*j}" for j in range(4)]
                    g.emit(rdy)
                    for q in range(NQ):
                        for tau in range(4): a(f"v_mfma_f32_16x16x32_bf16 {V(AC+16*q+4*tau,4)}, {V(bf(k)+4*tau,4)}, {V(af(k,q),4)}, {V(AC+16*q+4*tau,4)}")
                    a.lab("L_yd1")
                    a("s_waitcnt lgkmcnt(0)")
                    a("v_cmp_eq_u32 vcc, 0, v246"); a("s_cbranch_vccz L_yd2")
                    a("s_sleep 1"); g.emit(rdy); a("s_branch L_yd1")
                    a.lab("L_yd2")
                    if g.opt.get("yhop", 1): a0("s_cbranch_execz L_yhopret")
                    a("v_cmp_eq_u32 vcc, 1, v2"); a("s_cbranch_vccz L_yd3")
                    for q in range(2):
                        if q: a.lab("L_yd3")
                        for j in range(0, 16, 2): a(f"v_pk_add_f32 {V(BBr+16*q+j,2)}, {V(BBr+16*q+j,2)}, {V(yd+j,2)}")
                        a("s_branch L_ydret")
                g.tail.append(t)
            n = 0
            if NQ == 1: slots = [slots[2*j] + slots[2*j+1] for j in range(4)]
            for q in range(NQ):
                for tau in range(4):
                    acc = V(AC+16*q+4*tau, 4)
                    a(f"v_mfma_f32_16x16x32_bf16 {acc}, {V(bf(k)+4*tau,4)}, {V(af(k,q),4)}, {'0' if k == 0 else acc}")
                    for x in slots[n]:
                        if x.endswith(":"): a.lab(x[:-1])
                        else: a(x)
                    n += 1
            if g.opt.get("kst"):
                if k > 0: a(f"v_writelane_b32 v253, s{(26, 0)[(k-1) % 2]}, {32 + k - 1}")
                a(f"s_memtime {('s[26:27]', 's[0:1]')[k % 2]}")
            if 2 <= k < 19:
                a(f"s_waitcnt vmcnt({NQ*min(D, 18-k)})" + (f" lgkmcnt({len([x for x in rd if x and x[0].startswith('ds_')])})" if k + 1 >= NB else ""))
        assert not pend
        def epi(q):
            sel = "op_sel_hi:[1,0,1]" if q == 0 else "op_sel:[0,1,0] op_sel_hi:[1,1,1]"
            o = []
            for tau in range(4):
                b = BBr + 16*q + 4*tau
                o += [f"v_pk_fma_f32 {V(b+k,2)}, {V(AC+16*q+4*tau+k,2)}, {V(GG,2)}, {V(b+k,2)} {sel}" for k in (0, 2)]
                o += [f"v_cvt_pk_bf16_f32 v{b+h}, v{b+2*h}, v{b+2*h+1}" for h in range(2)]
                o += [f"ds_write_b64 v{vE}, {V(b,2)} offset:{q*2304+32*tau}"]
            o += [f"ds_read_b128 {V(af(16,0)+8*q+4*e,4)}, v{vE+1} offset:{q*2304+e*8*144}" for e in range(2)]
            return o
        a("s_waitcnt lgkmcnt(0)")
        a.lab("L_ydret")
        g.stamp(13)
        for q in range(NQ): g.emit(epi(q))
        assert af(17, 0) == af(16, 0) + 8
        for e in range(2*NQ):
            a(f"s_waitcnt lgkmcnt({(7,6,1,0)[e + 4 - 2*NQ]})")
            a(f"buffer_store_dwordx4 {V(af(16,0)+4*e,4)}, v{(229,230,231,250)[e]}, {R(rOUT)}, 0 offen {g.opt.get('outfl','')}")
        if not g.opt.get("chain"): g.stamp(14)
        if g.stamps:
            a("s_waitcnt vmcnt(0)"); g.stamp(15)
            a(f"v_writelane_b32 v253, s{sCnt}, 29")
        if g.opt.get("amp"):
            r = g.sreg(g.opt.get("ampk", 15))
            a("s_waitcnt lgkmcnt(0)")
            a(f"s_sub_u32 s60, s{r}, s86"); a(f"s_mul_i32 s60, s60, {g.opt['amp']}")
            if g.opt.get("fixed"): a(f"s_mov_b32 s60, {g.opt['fixed']}")
            a.lab("L_amp")
            a("s_sleep 2"); a(("s_memrealtime" if g.opt.get("rt") else "s_memtime") + " s[62:63]"); a("s_waitcnt lgkmcnt(0)")
            a("s_sub_u32 s61, s62, s86"); a("s_cmp_lt_u32 s61, s60"); a("s_cbranch_scc1 L_amp")
        g.dump_stamps(16)
        a("s_endpgm")

    def argmax(g, v, sKey, sTmp):
        a = g.a
        a("v_cmp_gt_u32 vcc, 56, v0")
        a(f"v_cndmask_b32_e64 v{v}, 0, v{v}, vcc")
        for d in ("quad_perm:[1,0,3,2]", "quad_perm:[2,3,0,1]", "row_half_mirror", "row_mirror"):
            a(f"v_max_u32_dpp v{v}, v{v}, v{v} {d} row_mask:0xf bank_mask:0xf")
        a(f"v_readlane_b32 s{sKey}, v{v}, 0"); a(f"v_readlane_b32 s{sTmp}, v{v}, 16")
        a(f"s_max_u32 s{sKey}, s{sKey}, s{sTmp}")
        a(f"v_readlane_b32 s{sTmp}, v{v}, 32"); a(f"s_max_u32 s{sKey}, s{sKey}, s{sTmp}")
        a(f"v_readlane_b32 s{sTmp}, v{v}, 48"); a(f"s_max_u32 s{sKey}, s{sKey}, s{sTmp}")
    def keyidx(g, sKey, sIdx):
        g.a(f"s_andn2_b32 s{sIdx}, 0x7ff, s{sKey}")

    def bf16r(g, r):
        g.a(f"v_cvt_pk_bf16_f32 v{r}, v{r}, v{r}"); g.a(f"v_and_b32 v{r}, 0xffff0000, v{r}")
    def sigmoid(g, d, s):
        a = g.a
        a(f"v_mul_f32 v{d}, {f32(-math.log2(math.e))}, v{s}")
        a(f"v_exp_f32 v{d}, v{d}")
        a(f"v_add_f32 v{d}, 1.0, v{d}")
        a(f"v_rcp_f32 v{d}, v{d}")

    def cfin(g):
        a = g.a
        a.lab("L_cfin")
        a("s_mov_b64 exec, -1")
        sKey, sD = g.sKey, g.sD
        Y, BB = 128, 88
        g.keyidx(g.sKey, 65)
        a(f"s_lshr_b32 s{sT}, s65, 1"); a(f"s_sub_u32 s{g.sD}, s{sT}, s{g.sD}")
        a(f"s_and_b32 s{sT}, s65, 1"); a(f"s_cmp_eq_u32 s{sT}, s{sP}"); a(f"s_cselect_b32 s{g.sD}, s{g.sD}, 64")
        for k in range(16):
            a(f"v_lshlrev_b32 v{BB+2*k}, 16, v{g.XR+k}")
            a(f"v_and_b32 v{BB+2*k+1}, 0xffff0000, v{g.XR+k}")
        a(f"s_mov_b32 s{sCnt}, 0")
        a.lab("L_gchk")
        a("v_max_u32 v2, v86, v87"); a(f"v_cmp_eq_u32 vcc, {POISON}, v2"); a("s_cbranch_vccnz L_gpoll")
        a.lab("L_gok")
        a(f"s_mul_i32 s{sT}, s{sW}, 9216"); a(f"s_add_u32 s{sT}, s{sT}, {L_BB}"); a(f"v_add_u32 v85, s{sT}, v{g.vL16}")
        a("v_sub_f32 v2, 1.0, v86"); a("v_sub_f32 v3, 1.0, v87")
        a("ds_write_b64 v85, v[86:87] offset:8192")
        for k in range(32): a(f"v_mul_f32 v{BB+k}, v{2+k//16}, v{BB+k}")
        if g.opt.get("pert1"):
            a(f"s_lshl3_add_u32 s{sT}, s2, s{sW}"); a(f"s_cmp_eq_u32 s{sT}, {40*8+1}"); a("s_cselect_b64 exec, 1, 0")
            a(f"v_add_f32 v{BB}, {f32(g.opt['pert1'])}, v{BB}"); a("s_mov_b64 exec, -1")
        if g.opt.get("pertall"):
            for k in range(32): a(f"v_add_f32 v{BB+k}, {f32(g.opt['pertall'])}, v{BB+k}")
        for j in range(8): a(f"ds_write_b128 v85, {V(BB+4*j,4)} offset:{1024*j}")
        a(f"s_lshr_b32 s{sT}, s{sD}, 4"); a(f"s_min_u32 s{sT}, s{sT}, 2"); a(f"s_add_u32 s{sT}, s{sT}, 1"); a(f"v_mov_b32 v1, s{sT}")
        a("ds_write_b32 v84, v1")
        a(f"s_cmp_lt_u32 s{sD}, 32"); a("s_cbranch_scc1 L_y")
        a.lab("L_yret")
        g.stamp(11)
        a("s_waitcnt lgkmcnt(0)")
        g.dump_stamps(15)
        a("s_endpgm")
        a.lab("L_gpoll")
        for q in range(2): a(f"buffer_load_dword v{86+q}, v{78+q}, {R(rWS)}, s67 offen offset:{64*q} sc1")
        a(f"s_add_u32 s{sCnt}, s{sCnt}, 1"); a(f"s_cmp_lt_u32 s{sCnt}, {SPIN}")
        a("s_waitcnt vmcnt(0)")
        a("s_cbranch_scc1 L_gchk")
        a("s_branch L_gok")
        a.lab("L_y")
        a(f"s_and_b32 s{sT}, s{sD}, 15"); a(f"v_cmp_eq_u32 s[70:71], s{sT}, v77")
        a(f"s_cmp_lt_u32 s{sD}, 16"); a("s_cselect_b64 s[68:69], -1, 0")
        a("v_cndmask_b32_e64 v4, v3, v2, s[68:69]")
        for k in range(0, 16, 2): a(f"v_mov_b64 {V(8+k,2)}, 0")
        a(f"v_add_u32 v7, {L_YD}, v{g.vL16}")
        if g.opt.get("yhop", 1):
            a("s_mov_b64 exec, 0")
            a(f"s_cmp_eq_u32 s{sW}, 3"); a("s_cbranch_scc1 L_ydb"); a("s_branch L_yd")
            a.lab("L_yhopret"); a("s_mov_b64 exec, -1")
        a("v_and_b32 v1, 48, v0"); a(f"s_lshl_b32 s{sT}, s{sCG}, 8"); a(f"s_add_u32 s{sT}, s{sT}, {WS_Y2}")
        a(f"s_mov_b32 s{sCnt}, 0")
        a.lab("L_ypoll")
        for tau in range(4): a(f"buffer_load_dwordx4 {V(Y+8+4*tau,4)}, v1, {R(rWS)}, s{sT} offen offset:{64*tau} sc1")
        a(f"s_add_u32 s{sCnt}, s{sCnt}, 1"); a(f"s_cmp_lt_u32 s{sCnt}, {SPIN}")
        a("s_waitcnt vmcnt(0)")
        g.poison_max(Y+8, 16, 6)
        a(f"v_cmp_eq_u32 vcc, {POISON}, v6")
        a("s_cbranch_scc0 L_yok"); a("s_cbranch_vccz L_yok"); a("s_sleep 3"); a("s_branch L_ypoll")
        a.lab("L_yok")
        a("s_mov_b64 exec, s[70:71]")
        for k in range(0, 16, 2): a(f"v_pk_mul_f32 {V(8+k,2)}, {V(Y+8+k,2)}, v[4:5] op_sel_hi:[1,0]")
        a("s_mov_b64 exec, -1")
        for j in range(4): a(f"ds_write_b128 v7, {V(8+4*j,4)} offset:{1024*j}")
        a("ds_write_b32 v84, v84 offset:16")
        a("s_branch L_yret")

    def aux(g):
        a = g.a
        if g.opt.get("auxal", 1): a(".p2align 12")
        a.lab("L_aux")
        if g.opt.get("noaux"): a("s_endpgm")
        sA, sF, sHalf, sTmp, sU0 = 56, 57, 58, 59, 60
        r1, r2, rD = 64, 68, 72
        rWR, rGW = 76, 80
        rC = 64
        A_D = 81920
        A_WR, A_GW = 122880, 124928
        A_XS = 126976
        A_PRE = 129024
        A_MAX = 129536
        NCLR = 1
        a(f"s_sub_u32 s{sA}, s{sJ}, 25")
        a(f"s_lshr_b32 s{sF}, s{sA}, 1"); a(f"s_lshl3_add_u32 s{sF}, s{sF}, s{sX}")
        a(f"s_and_b32 s{sT}, s{sA}, 1"); a(f"s_lshl1_add_u32 s{sF}, s{sF}, s{sT}")
        a(f"s_add_u32 s{sT}, s{sX}, 48"); a(f"s_cmp_eq_u32 s{sA}, 6"); a(f"s_cselect_b32 s{sF}, s{sT}, s{sF}")
        a("v_lshrrev_b32 v1, 3, v0"); a("v_and_b32 v2, 7, v0")
        a(f"s_cmp_ge_u32 s{sW}, 5"); a("s_cbranch_scc1 L_aux_hi")
        a(f"s_lshr_b32 s{sU0}, s{sX}, 2"); a(f"s_and_b32 s{sT}, s{sX}, 1"); a(f"s_lshl1_add_u32 s{sU0}, s{sU0}, s{sT}")
        a(f"s_mul_i32 s{sTmp}, s{sA}, 5"); a(f"s_add_u32 s{sTmp}, s{sTmp}, s{sW}")
        a(f"s_lshl_b32 s{sU0}, s{sU0}, 8"); a(f"s_lshl3_add_u32 s{sU0}, s{sTmp}, s{sU0}")
        a(f"v_add_u32 v3, s{sU0}, v1")
        a(f"v_lshl_add_u32 v4, v3, 1, s{sP}")
        a("v_mul_u32_u24 v5, 1280, v4"); a("v_lshl_add_u32 v5, v2, 4, v5")
        a(f"s_cmp_lt_u32 s{sTmp}, 32"); a(f"s_cselect_b32 s{sT}, 0, 0x80000000")
        a(f"v_or_b32 v5, s{sT}, v5")
        g.ptrs()
        XD, WD = 8, 48
        for n in range(10):
            c = (n + g.opt.get("ax0", 0)) % 10
            a(f"buffer_load_dwordx4 {V(XD+4*c,4)}, v5, {R(rX)}, 0 offen offset:{128*c}")
            if n % 2 == 1 and n < 9: a("s_barrier")
        g.ptrs2()
        a(f"v_mov_b32 v136, {63*4}")
        a("v_lshlrev_b32 v6, 4, v2")
        a(f"v_add_u32 v6, {A_WR}, v6")
        a("s_barrier")
        a(f"v_mov_b32 v7, {A_MAX}")
        a(f"s_cmp_lt_u32 s{sTmp}, 32"); a("s_cbranch_scc1 L_aux_rg")
        a(f"s_mov_b64 {S(rC,2)}, {S(rWS,2)}"); g.srd_consts(rC, WS_X + 54*128)
        for k in range(4): a(f"v_mov_b32 v{132+k}, {POISON}")
        a(f"s_mul_i32 s{sT}, s{sX}, 3"); a(f"s_add_u32 s{sT}, s{sT}, s{sW}"); a(f"s_mul_i32 s{sT}, s{sT}, {6*1024}"); a(f"s_add_u32 s{sT}, s{sT}, {WS_Y-2*6*1024}")
        a(f"v_lshl_add_u32 v5, v0, 4, s{sT}"); a("v_add_u32 v6, 3072, v5")
        for k in range(6): a(f"buffer_store_dwordx4 v[132:135], v{5+k//3}, {R(rC)}, 0 offen offset:{1024*(k%3)} sc1")
        a("s_waitcnt vmcnt(0)")
        a(f"s_load_dword s85, {S(rDBG,2)}, {63*4}")
        a("s_branch L_aux_rgdone")
        a.lab("L_aux_rg")
        g.stamp(6)
        for c in range(10):
            a(f"ds_read_b128 {V(WD+8*c,4)}, v6 offset:{128*c}")
            a(f"ds_read_b128 {V(WD+8*c+4,4)}, v6 offset:{2048+128*c}")
        for k in range(4): a(f"v_mov_b32 v{128+k}, 0")
        a(f"s_waitcnt vmcnt(0) lgkmcnt(0)")
        a(f"s_load_dword s85, {S(rDBG,2)}, {63*4}")
        for c in range(10):
            for k in range(4):
                a(f"v_dot2c_f32_bf16 v{128+(k&1)}, v{XD+4*c+k}, v{WD+8*c+k}")
                a(f"v_dot2c_f32_bf16 v{130+(k&1)}, v{XD+4*c+k}, v{WD+8*c+4+k}")
        a("v_add_f32 v128, v128, v129"); a("v_add_f32 v130, v130, v131")
        for d in ("quad_perm:[1,0,3,2]", "quad_perm:[2,3,0,1]", "row_half_mirror"):
            a(f"v_add_f32_dpp v128, v128, v128 {d} row_mask:0xf bank_mask:0xf")
            a(f"v_add_f32_dpp v130, v130, v130 {d} row_mask:0xf bank_mask:0xf")
        g.bf16r(130); g.sigmoid(130, 130); g.bf16r(130)
        g.bf16r(128)
        a("v_ashrrev_i32 v129, 31, v128"); a("v_or_b32 v129, 0x80000000, v129"); a("v_xor_b32 v128, v128, v129")
        a("v_and_b32 v128, 0xffff0000, v128"); a("v_sub_u32 v129, 0xffff, v4"); a("v_or_b32 v128, v128, v129")
        a.lab("L_aux_rgdone")
        a(f"s_lshl_b32 s{sT}, s{sP}, 12"); a(f"s_add_u32 s{sT}, s{sT}, {WS_G}")
        a("v_lshlrev_b32 v3, 2, v3")
        a(f"s_mov_b32 s{sCnt}, 0")
        a("s_waitcnt lgkmcnt(0)")
        a("v_mov_b32 v137, s85")
        a.lab("L_aux_init")
        a("v_cmp_eq_u32 vcc, 0, v137"); a("s_cbranch_vccz L_aux_initok")
        a(f"buffer_load_dword v137, v136, {R(rDBG)}, 0 offen sc1")
        a(f"s_add_u32 s{sCnt}, s{sCnt}, 1"); a(f"s_cmp_lt_u32 s{sCnt}, {SPIN}")
        a("s_waitcnt vmcnt(0)")
        a("s_cbranch_scc1 L_aux_init")
        a.lab("L_aux_initok")
        a(f"s_cmp_lt_u32 s{sTmp}, 32"); a("s_cbranch_scc0 L_aux_norg")
        a("s_mov_b32 exec_lo, 0x01010101"); a("s_mov_b32 exec_hi, 0x01010101")
        a("ds_max_u32 v7, v128")
        a(f"buffer_store_dword v130, v3, {R(rWS)}, s{sT} offen sc1")
        a.lab("L_aux_norg")
        a.lab("L_aux_arr")
        a("s_mov_b64 exec, 1")
        a("v_mov_b32 v129, 1")
        a("s_waitcnt lgkmcnt(0)")
        a("ds_add_rtn_u32 v131, v7, v129 offset:4")
        a("ds_read_b32 v128, v7")
        a(f"s_lshl4_add_u32 s{sT}, s{sA}, s{sX}"); a(f"s_lshl_b32 s{sT}, s{sT}, 2"); a(f"s_add_u32 s{sT}, s{sT}, {WS_F}")
        a("s_waitcnt lgkmcnt(0)")
        a("v_cmp_eq_u32 vcc, 4, v131"); a(f"v_readfirstlane_b32 s{sCnt}, v128"); a("s_cbranch_vccz L_aux_nopub")
        a(f"s_atomic_add s{sCnt}, {S(rWS,2)}, s{sT}")
        a("s_waitcnt lgkmcnt(0)")
        a.lab("L_aux_nopub")
        a("s_mov_b64 exec, -1")
        g.stamp(1)
        a(f"s_cmp_ge_u32 s{sF}, 54"); a("s_cbranch_scc0 L_aux_ffn")
        a(f"s_lshl3_add_u32 s{sT}, s2, s{sW}"); a(f"s_cmp_eq_u32 s{sT}, {255*8+4}"); a("s_cbranch_scc0 L_aux_end")
        a(f"s_add_u32 s54, s{rWS}, {WS_F}"); a(f"s_addc_u32 s55, s{rWS+1}, 0")
        a(f"s_mov_b32 s{sT}, 0")
        dst = (4, 12, 20, 28, 64, 72, 80) if not g.stamps else (4, 12, 20, 28, 64, 72, 56)
        if g.stamps: a("s_mov_b32 s53, 0")
        cnt = sT if not g.stamps else 53
        a.lab("L_aux_col")
        for j, d in enumerate(dst): a(f"s_load_dwordx8 {S(d,8)}, s[54:55], {64*j} glc")
        a(f"s_add_u32 s{cnt}, s{cnt}, 1")
        a("s_waitcnt lgkmcnt(0)")
        pairs = [d + k for d in dst for k in (0, 2, 4, 6)]
        a(f"s_and_b64 s[36:37], {S(pairs[0],2)}, {S(pairs[1],2)}")
        for p in pairs[2:]: a(f"s_and_b64 s[36:37], s[36:37], {S(p,2)}")
        a(f"s_cmp_lt_u32 s{cnt}, {SPIN}"); a("s_cbranch_scc0 L_aux_colok")
        a("s_and_b32 s36, s36, s37"); a("s_cbranch_scc0 L_aux_col")
        a.lab("L_aux_colok")
        words = [d + k for d in dst for k in range(8)]
        a(f"s_max_u32 s36, s{words[0]}, s{words[1]}")
        for w_ in words[2:]: a(f"s_max_u32 s36, s36, s{w_}")
        a(f"s_mov_b32 s{sCnt}, s36")
        for j in range(14): a(f"s_atomic_add s{sCnt}, s[54:55], {WS_K-WS_F+128*j}")
        a(f"s_atomic_add s{sCnt}, {S(rDBG,2)}, {0*4}")
        a("s_waitcnt lgkmcnt(0)")
        a("s_branch L_aux_end")
        a.lab("L_aux_ffn")
        a(f"s_cmp_eq_u32 s{sW}, 4"); a("s_cbranch_scc0 L_aux_f1")
        a(f"s_lshr_b32 s{sT}, s{sF}, 2"); a(f"s_lshl_b32 s{sT}, s{sT}, 7"); a(f"s_add_u32 s{sT}, s{sT}, {WS_K}")
        a(f"s_mov_b32 s{sCnt}, 0")
        a.lab("L_aux_key")
        a(f"s_load_dword s84, {S(rWS,2)}, s{sT} glc")
        a(f"s_add_u32 s{sCnt}, s{sCnt}, 1")
        a("s_waitcnt lgkmcnt(0)")
        a(f"s_cmp_lt_u32 s{sCnt}, {SPIN}"); a("s_cselect_b32 s84, s84, 1")
        a("s_cmp_eq_u32 s84, 0"); a("s_cbranch_scc1 L_aux_key")
        g.keyidx(84, 85)
        a("s_mul_i32 s85, s85, 1280")
        a("v_lshl_add_u32 v1, v0, 4, s85")
        a(f"s_mov_b32 m0, {A_XS}")
        a(f"buffer_load_dwordx4 v1, {R(rX)}, 0 offen lds")
        a(f"buffer_load_dwordx4 v1, {R(rX)}, 0 offen offset:1024 lds")
        g.stamp(2)
        a("v_mov_b32 v2, s84")
        a("s_waitcnt vmcnt(0)")
        a("ds_write_b32 v7, v2 offset:8")
        a("s_waitcnt lgkmcnt(0)")
        a("v_and_b32 v1, 31, v0"); a("v_lshlrev_b32 v1, 2, v1")
        a(f"s_and_b32 s{sT}, s{sF}, 1"); a(f"s_lshl_b32 s{sT}, s{sT}, 7"); a(f"s_sub_u32 s{sT}, {A_PRE+128}, s{sT}"); a(f"v_add_u32 v3, s{sT}, v1")
        a(f"s_lshl_b32 s{sT}, s{sF}, 7"); a(f"s_add_u32 s{sT}, s{sT}, {WS_X}")
        a(f"s_mov_b32 s{sCnt}, 0")
        if g.opt.get("k0", 14): a("s_barrier")
        a("s_barrier")
        a(f"s_add_u32 s85, s{sT}, 64"); a("v_mov_b32 v2, 0")
        a.lab("L_aux_x")
        a(f"s_load_dwordx16 s[4:19], {S(rWS,2)}, s{sT} glc"); a(f"s_load_dwordx16 s[64:79], {S(rWS,2)}, s85 glc")
        a(f"s_add_u32 s{sCnt}, s{sCnt}, 1")
        a("s_waitcnt lgkmcnt(0)")
        a("s_max_u32 s20, s4, s64"); a(f"s_cmp_lt_u32 s{sCnt}, {SPIN}"); a("s_cselect_b32 s20, s20, 0")
        a(f"s_cmp_eq_u32 s20, {POISON}"); a("s_cbranch_scc1 L_aux_x")
        for k in range(32): a(f"v_writelane_b32 v2, s{4+k if k < 16 else 48+k}, {k}")
        a(f"s_cmp_lt_u32 s{sCnt}, {SPIN}")
        a(f"v_cmp_eq_u32 vcc, {POISON}, v2"); a("s_cbranch_scc0 L_aux_xok"); a("s_cbranch_vccnz L_aux_x")
        a.lab("L_aux_xok")
        a("s_mov_b32 exec_hi, 0")
        a("ds_write_b32 v3, v2")
        a("s_mov_b32 exec_hi, -1")
        a("s_waitcnt lgkmcnt(0)")
        a("s_barrier")
        a("s_barrier")
        a("s_branch L_aux_d2")
        a.lab("L_aux_hi")
        sV = 84
        a(f"s_sub_u32 s{sV}, s{sW}, 5")
        a(f"s_cmp_eq_u32 s{sV}, 0"); a("s_cbranch_scc0 L_aux_w67")
        a("v_mul_u32_u24 v3, 4370, v0"); a("v_lshrrev_b32 v3, 16, v3")
        a("v_mul_u32_u24 v4, 15, v3"); a("v_sub_u32 v4, v0, v4")
        a("v_mul_u32_u24 v5, 52, v4"); a("v_lshrrev_b32 v5, 8, v5")
        a("v_mul_u32_u24 v5, 640, v5"); a("v_lshl_add_u32 v5, v4, 7, v5")
        a(f"v_mul_u32_u24 v3, {4*3840}, v3")
        a(f"s_lshr_b32 s{sT}, s{sX}, 1"); a(f"s_lshl4_add_u32 s{sT}, s{sA}, s{sT}"); a(f"s_mul_i32 s{sT}, s{sT}, 6"); a(f"s_and_b32 s{sTmp}, s{sX}, 1")
        a(f"s_add_u32 s{sT}, s{sT}, s{sTmp}"); a(f"s_mul_i32 s{sT}, s{sT}, 640")
        a(f"v_add3_u32 v5, s{sT}, v5, v3")
        a("v_cmp_gt_u32 vcc, 60, v0"); a("v_bfrev_b32 v6, 1"); a("v_cndmask_b32_e64 v5, v6, v5, vcc")
        g.ptrs()
        mb = g.opt.get("mb", 0)
        m0_ = g.opt.get("aw0", 0)
        for n in range(6):
            nn = n - g.opt.get("awd", 0)
            if nn >= 0 and m0_ + 7*nn < 40:
                a(f"s_mov_b32 s{sT}, {(m0_ + 7*nn)*16*3840}")
                a(f"buffer_load_dword v{10+n}, v5, {R(rW)}, s{sT} offen")
            if n >= 1: a("s_barrier")
        g.ptrs2()
        a("s_branch L_aux_hi2")
        a.lab("L_aux_w67")
        a("v_lshlrev_b32 v6, 4, v0")
        a(f"v_mov_b32 v7, {A_MAX}"); a("v_mov_b32 v8, 0"); a("v_mov_b32 v9, 0")
        a("ds_write_b64 v7, v[8:9]"); a("ds_write_b64 v7, v[8:9] offset:8")
        for r in (rWR, rGW): g.srd_consts(r, 1280)
        if g.opt.get("codepf", 0):
            a(f"s_sub_u32 s{sTmp}, s{sA}, 2"); a(f"s_cmp_ge_u32 s{sTmp}, 4"); a("s_cbranch_scc1 L_aux_nocpf"); a(f"s_cmp_eq_u32 s{sV}, 2"); a("s_cbranch_scc0 L_aux_nocpf")
            a("s_getpc_b64 s[88:89]" if not g.stamps else "s_getpc_b64 s[98:99]")
            pc = 88 if not g.stamps else 98
            a.lab("L_pc")
            a(f"s_sub_u32 s{pc}, s{pc}, L_pc-{KN}_kernel"); a(f"s_subb_u32 s{pc+1}, s{pc+1}, 0")
            a(f"s_lshl_b32 s{sT}, s{sTmp}, 13")
            a(f"v_lshl_add_u32 v3, v0, 7, s{sT}")
            a(f"v_min_u32 v3, L_end-{KN}_kernel, v3")
            a(f"global_load_dword v10, v3, s[{pc}:{pc+1}]")
            a.lab("L_aux_nocpf")
        g.ptrs(); g.ptrs2()
        a(f"s_mov_b64 {S(rWR,2)}, s[12:13]"); a(f"s_mov_b64 {S(rGW,2)}, s[20:21]")
        a(f"s_cmp_eq_u32 s{sV}, 1"); a("s_cbranch_scc0 L_aux_w7")
        a(f"s_mov_b32 m0, {A_WR}")
        a(f"buffer_load_dwordx4 v6, {R(rWR)}, 0 offen lds"); a(f"buffer_load_dwordx4 v6, {R(rWR)}, 0 offen offset:1024 lds")
        a(f"s_mov_b32 m0, {A_GW}")
        a(f"buffer_load_dwordx4 v6, {R(rGW)}, 0 offen lds"); a(f"buffer_load_dwordx4 v6, {R(rGW)}, 0 offen offset:1024 lds")
        a.lab("L_aux_w7")
        a("v_lshlrev_b32 v3, 7, v0")
        a(f"s_lshl3_add_u32 s{sTmp}, s2, s{sW}"); a(f"s_cmp_eq_u32 s{sTmp}, {255*8+7}"); a("s_cbranch_scc0 L_aux_nn0")
        for k in range(4): a(f"v_mov_b32 v{12+k}, {POISON}")
        a("v_lshlrev_b32 v10, 3, v0"); a(f"s_mov_b32 s{sT}, {WS_F}"); a(f"buffer_store_dwordx2 v[8:9], v10, {R(rWS)}, s{sT} offen sc1")
        a(f"s_mov_b32 s{sT}, {WS_K}"); a("s_mov_b32 exec_hi, 0x3fffff")
        a(f"buffer_store_dword v8, v3, {R(rWS)}, s{sT} offen sc1"); a("s_mov_b32 exec_hi, -1")
        for k in range(11):
            if k % 4 == 0: a(f"s_mov_b32 s{sT}, {WS_G+1024*k}")
            a(f"buffer_store_dwordx4 v[12:15], v6, {R(rWS)}, s{sT} offen offset:{1024*(k%4)} sc1")
        a.lab("L_aux_nn0")
        a("s_barrier")
        a(f"s_cmp_eq_u32 s{sTmp}, {255*8+7}"); a("s_cbranch_scc0 L_aux_nn1")
        a("s_waitcnt vmcnt(0)")
        a(f"s_mov_b32 s85, 1"); a(f"s_atomic_add s85, {S(rDBG,2)}, {63*4}")
        g.stamp(1)
        a.lab("L_aux_nn1")
        for c in range(3): a("s_barrier")
        a("s_waitcnt vmcnt(0)")
        a("s_barrier")
        a.lab("L_aux_hi2")
        l2 = g.opt.get("l2", 5)
        if l2 and g.opt.get("l2k", 1):
            g.wtouch_addr(12, 13, 14)
            a(f"s_bfe_u32 s82, s2, 0x20001"); a(f"s_mul_i32 s{sT}, s82, 3840"); a(f"v_subrev_u32 v14, s{sT}, v14")
            a("v_cmp_gt_u32 vcc, 60, v0"); a("v_bfrev_b32 v12, 1"); a("v_cndmask_b32_e64 v14, v12, v14, vcc")
            a(f"s_and_b32 s{sT}, s{sX}, 5"); a(f"s_xor_b32 s{sT}, s{sT}, 1"); a(f"s_lshr_b32 s{sCnt}, s{sT}, 2"); a(f"s_and_b32 s{sT}, s{sT}, 1"); a(f"s_lshl1_add_u32 s{sT}, s{sCnt}, s{sT}")
            a(f"s_lshl_b32 s{sT}, s{sT}, 9"); a(f"s_add_u32 s{sT}, s{sT}, s{sP}"); a(f"s_mul_i32 s{sT}, s{sT}, 1280")
            a("v_mul_u32_u24 v15, 2560, v0"); a(f"v_add_u32 v15, s{sT}, v15")
            a(f"s_mul_i32 s{sCnt}, s{sV}, 7"); a(f"s_add_u32 s{sCnt}, s{sCnt}, s{sA}"); a(f"s_add_u32 s{sCnt}, s{sCnt}, {int(16*l2)}")
            a.lab("L_l2")
            a(f"s_waitcnt vmcnt({g.opt.get('l2t', 1)})")
            a(f"s_and_b32 s{sT}, s{sCnt}, 15"); a(f"s_lshr_b32 s{sTmp}, s{sCnt}, 4")
            a(f"s_cmp_lt_u32 s{sT}, 12"); a("s_cbranch_scc1 L_l2w")
            a(f"s_sub_u32 s{sT}, s{sT}, 12"); a(f"s_mul_i32 s{sT}, s{sT}, {64*2560}"); a(f"s_lshl_b32 s{sTmp}, s{sTmp}, 7"); a(f"s_add_u32 s{sT}, s{sT}, s{sTmp}")
            a(f"buffer_load_dword v10, v15, {R(rX)}, s{sT} offen")
            a("s_branch L_l2n")
            a.lab("L_l2w")
            a(f"s_lshr_b32 s83, s{sT}, 2"); a("s_add_u32 s83, s83, s82"); a("s_add_u32 s83, s83, 1"); a("s_and_b32 s83, s83, 3")
            a(f"s_and_b32 s{sT}, s{sT}, 3"); a(f"s_lshl2_add_u32 s{sT}, s{sTmp}, s{sT}"); a(f"s_lshl4_add_u32 s{sT}, s{sT}, s83"); a(f"s_mul_i32 s{sT}, s{sT}, 3840")
            a(f"buffer_load_dword v10, v14, {R(rW)}, s{sT} offen")
            a.lab("L_l2n")
            a(f"s_add_u32 s{sCnt}, s{sCnt}, 21"); a(f"s_cmp_lt_u32 s{sCnt}, 160"); a("s_cbranch_scc1 L_l2")
            if g.opt.get("l2s", 0):
                a(f"v_mov_b32 v12, {A_MAX}"); a("v_mov_b32 v13, 1")
                a("s_mov_b64 exec, 1"); a("ds_add_u32 v12, v13 offset:12"); a("s_mov_b64 exec, -1")
                a.lab("L_l2s")
                a("ds_read_b32 v13, v12 offset:12"); a("s_waitcnt lgkmcnt(0)")
                a("v_cmp_gt_u32 vcc, 3, v13"); a("s_cbranch_vccnz L_l2s")
        elif l2:
            g.wtouch_addr(12, 13, 14)
            a(f"s_bfe_u32 s{sT}, s2, 0x20001"); a(f"s_add_u32 s{sCnt}, s{sT}, s{sV}"); a(f"s_add_u32 s{sCnt}, s{sCnt}, 1"); a(f"s_and_b32 s{sCnt}, s{sCnt}, 3")
            a(f"s_sub_u32 s{sT}, s{sCnt}, s{sT}"); a(f"s_lshl4_add_u32 s{sT}, s{sA}, s{sT}"); a(f"s_add_u32 s{sT}, s{sT}, {64*l2}"); a(f"s_mul_i32 s{sT}, s{sT}, 3840")
            a(f"v_add_u32 v14, s{sT}, v14"); a("v_cmp_gt_u32 vcc, 60, v0"); a("v_bfrev_b32 v12, 1"); a("v_cndmask_b32_e64 v14, v12, v14, vcc")
            a(f"s_and_b32 s{sT}, s{sX}, 5"); a(f"s_xor_b32 s{sT}, s{sT}, 1"); a(f"s_lshr_b32 s{sCnt}, s{sT}, 2"); a(f"s_and_b32 s{sT}, s{sT}, 1"); a(f"s_lshl1_add_u32 s{sT}, s{sCnt}, s{sT}")
            a(f"s_lshl_b32 s{sT}, s{sT}, 9"); a(f"s_add_u32 s{sT}, s{sT}, s{sP}"); a(f"s_mul_i32 s{sT}, s{sT}, 1280")
            a("v_mul_u32_u24 v15, 2560, v0"); a(f"v_add_u32 v15, s{sT}, v15")
            def xt(n):
                if 21*n >= 4*(10-l2): return
                sk = g.lab("xt")
                a(f"s_mul_i32 s{sCnt}, s{sA}, 3"); a(f"s_add_u32 s{sCnt}, s{sCnt}, s{sV}"); a(f"s_add_u32 s{sCnt}, s{sCnt}, {21*n + 4*l2}")
                a(f"s_cmp_lt_u32 s{sCnt}, 40"); a(f"s_cbranch_scc0 {sk}")
                a(f"s_and_b32 s{sT}, s{sCnt}, 3"); a(f"s_mul_i32 s{sT}, s{sT}, {64*2560}"); a(f"s_lshr_b32 s{sCnt}, s{sCnt}, 2"); a(f"s_lshl_b32 s{sCnt}, s{sCnt}, 7"); a(f"s_add_u32 s{sT}, s{sT}, s{sCnt}")
                a(f"buffer_load_dword v10, v15, {R(rX)}, s{sT} offen")
                a.lab(sk)
                a("s_waitcnt vmcnt(1)")
            for n in range(-(-(40 - 4*l2) // 7)):
                a(f"buffer_load_dword v10, v14, {R(rW)}, 0 offen")
                a(f"v_add_u32 v14, {7*16*3840}, v14")
                a("s_waitcnt vmcnt(1)")
                if n in (0, 2): xt(n // 2)
        def inbox():
            a("v_lshlrev_b32 v6, 7, v0")
            a(f"s_mul_i32 s{sCnt}, s{sA}, 3"); a(f"s_sub_u32 s{sCnt}, s{sV}, s{sCnt}"); a(f"s_add_u32 s{sCnt}, s{sCnt}, 18")
            lp = g.lab("ib"); a.lab(lp)
            a(f"s_mul_i32 s{sT}, s{sCnt}, 57"); a(f"s_lshr_b32 s{sT}, s{sT}, 9")
            a(f"s_mul_i32 s{sTmp}, s{sT}, {BLK-9*8192}"); a(f"s_lshl_b32 s{sT}, s{sCnt}, 13"); a(f"s_add_u32 s{sTmp}, s{sTmp}, s{sT}")
            a(f"s_lshr_b32 s{sT}, s{sX}, 1"); a(f"s_mul_i32 s{sT}, s{sT}, {5*BLK}"); a(f"s_add_u32 s{sTmp}, s{sTmp}, s{sT}")
            a(f"s_and_b32 s{sT}, s{sX}, 1"); a(f"s_mul_i32 s{sT}, s{sT}, 71680"); a(f"s_add_u32 s{sTmp}, s{sTmp}, s{sT}")
            a(f"buffer_load_dword v10, v6, {R(rWS)}, s{sTmp} offen sc1")
            a("s_waitcnt vmcnt(1)")
            a(f"s_add_u32 s{sCnt}, s{sCnt}, 21"); a(f"s_cmp_lt_u32 s{sCnt}, 45"); a(f"s_cbranch_scc1 {lp}")
        if g.opt.get("ibm", 1):
            def inbox():
                a(f"s_mul_i32 s{sCnt}, s{sA}, 3"); a(f"s_add_u32 s{sCnt}, s{sCnt}, s{sV}")
                lp = g.lab("ib"); a.lab(lp)
                a(f"s_and_b32 s{sT}, s{sCnt}, 7"); a(f"s_add_u32 s{sT}, s{sT}, 1")
                a(f"s_lshr_b32 s{sTmp}, s{sT}, 1"); a(f"s_sub_u32 s{sTmp}, s{sTmp}, 4")
                a("v_and_b32 v6, 3, v0"); a(f"v_add_u32 v6, s{sTmp}, v6"); a(f"s_lshl_b32 s{sTmp}, s{sT}, 31"); a(f"v_xor_b32 v6, s{sTmp}, v6"); a("v_and_b32 v6, 0x80000000, v6")
                a("v_min_u32 v7, 55, v0"); a("v_lshl_or_b32 v6, v7, 7, v6")
                a(f"s_mul_i32 s{sTmp}, s{sT}, 7168"); a(f"s_lshr_b32 s{sT}, s{sCnt}, 3"); a(f"s_mul_i32 s{sT}, s{sT}, {BLK}"); a(f"s_add_u32 s{sTmp}, s{sTmp}, s{sT}")
                a(f"s_lshr_b32 s{sT}, s{sX}, 1"); a(f"s_mul_i32 s{sT}, s{sT}, {5*BLK}"); a(f"s_add_u32 s{sTmp}, s{sTmp}, s{sT}")
                a(f"s_and_b32 s{sT}, s{sX}, 1"); a(f"s_mul_i32 s{sT}, s{sT}, 71680"); a(f"s_add_u32 s{sTmp}, s{sTmp}, s{sT}")
                a(f"buffer_load_dword v10, v6, {R(rWS)}, s{sTmp} offen sc1")
                a(f"s_add_u32 s{sCnt}, s{sCnt}, 21"); a(f"s_cmp_lt_u32 s{sCnt}, 40"); a(f"s_cbranch_scc1 {lp}")
        ib = g.opt.get("ib", 1)
        if ib == 1: inbox()
        nh = g.opt.get("nh", 2)
        a(f"s_mul_i32 s{sCnt}, s{sV}, {nh}"); a(f"s_add_u32 s{sTmp}, s{sCnt}, {nh}")
        a(f"s_mul_i32 s{sT}, s{sV}, 6"); a(f"s_sub_u32 s{sT}, s{sT}, s{sA}"); a(f"s_add_u32 s{sT}, s{sT}, {3*nh+5}")
        a(f"s_add_u32 s82, s{sT}, 1")
        a(f"s_cmp_eq_u32 s{sA}, 6"); a(f"s_cselect_b32 s{sCnt}, s{sCnt}, s{sT}"); a(f"s_cselect_b32 s{sTmp}, s{sTmp}, s82")
        a(f"s_cmp_lt_u32 s{sCnt}, 14"); a("s_cbranch_scc0 L_aux_nwo")
        a("v_min_u32 v4, 59, v0"); a("v_mul_u32_u24 v5, 52, v4"); a("v_lshrrev_b32 v5, 8, v5"); a(f"v_mul_u32_u24 v5, {4*1280-640}, v5"); a("v_lshl_add_u32 v4, v4, 7, v5")
        a.lab("L_aux_wo")
        a(f"s_mul_i32 s{sT}, s{sCnt}, 96"); a(f"s_add_u32 s{sT}, s{sT}, s{sX}"); a(f"s_mul_i32 s{sT}, s{sT}, 640"); a(f"v_add_u32 v5, s{sT}, v4")
        a(f"buffer_load_dword v10, v5, {R(rWO)}, 0 offen")
        a(f"s_add_u32 s{sCnt}, s{sCnt}, 1"); a(f"s_cmp_lt_u32 s{sCnt}, s{sTmp}"); a("s_cbranch_scc1 L_aux_wo")
        a.lab("L_aux_nwo")
        a(f"s_cmp_ge_u32 s{sF}, 54"); a("s_cbranch_scc1 L_aux_end")
        if g.opt.get("fdelay"): a(f"s_sleep {g.opt['fdelay']}")
        for r in (r1, rD): g.srd_consts(r, 640*3456)
        a(f"s_bitcmp1_b32 s{sF}, 0"); a(f"s_cselect_b64 {S(r1,2)}, s[16:17], s[14:15]")
        a(f"s_mov_b64 {S(rD,2)}, s[18:19]")
        a("v_and_b32 v4, 6, v1"); a("v_xor_b32 v4, v4, v2"); a("v_lshlrev_b32 v4, 4, v4")
        a("v_and_b32 v5, 4, v1"); a("v_add_u32 v5, v5, v1"); a("v_mul_u32_u24 v5, 3456, v5")
        a(f"s_lshr_b32 s{sT}, s{sF}, 1"); a(f"s_lshl_b32 s{sT}, s{sT}, 7"); a(f"v_add3_u32 v3, s{sT}, v4, v5")
        a("v_mul_u32_u24 v5, 1280, v1")
        a(f"s_mul_i32 s{sT}, s{sF}, {32*1280}"); a(f"v_add3_u32 v4, s{sT}, v4, v5")
        a(f"s_mov_b32 s{sCnt}, s{sV}")
        a.lab("L_aux_fm")
        a(f"s_lshl_b32 m0, s{sCnt}, 10")
        a(f"s_and_b32 s{sT}, s{sCnt}, 1"); a(f"s_and_b32 s{sTmp}, s{sCnt}, 2"); a(f"s_lshl3_add_u32 s{sT}, s{sT}, s{sTmp}")
        a(f"s_andn2_b32 s{sTmp}, s{sCnt}, 3"); a(f"s_lshl2_add_u32 s{sT}, s{sTmp}, s{sT}"); a(f"s_mul_i32 s{sT}, s{sT}, {2*3456}")
        a(f"buffer_load_dwordx4 v3, {R(r1)}, s{sT} offen {g.opt.get('ffl','nt')} lds")
        a(f"s_waitcnt vmcnt({g.opt.get('fthr', 10)})")
        a(f"s_add_u32 s{sCnt}, s{sCnt}, 3"); a(f"s_cmp_lt_u32 s{sCnt}, 80"); a("s_cbranch_scc1 L_aux_fm")
        k0 = g.opt.get("k0", 14)
        if k0:
            dpre = g.opt.get("dpre", 2)
        a(f"s_mov_b32 s{sCnt}, s{sV}")
        def dn(lim):
            lp = g.lab("fd")
            a.lab(lp)
            a(f"s_lshl_b32 s{sT}, s{sCnt}, 10"); a(f"s_add_u32 m0, s{sT}, {A_D}")
            a(f"s_and_b32 s{sT}, s{sCnt}, 3"); a(f"s_mul_i32 s{sT}, s{sT}, {8*1280}"); a(f"s_lshr_b32 s{sTmp}, s{sCnt}, 2"); a(f"s_lshl_b32 s{sTmp}, s{sTmp}, 7"); a(f"s_add_u32 s{sT}, s{sT}, s{sTmp}")
            a(f"buffer_load_dwordx4 v4, {R(rD)}, s{sT} offen {g.opt.get('ffl3','nt')} lds")
            a(f"s_add_u32 s{sCnt}, s{sCnt}, 3"); a(f"s_cmp_lt_u32 s{sCnt}, {lim}"); a(f"s_cbranch_scc1 {lp}")
        d1 = g.opt.get("d1", 8)
        if k0:
            dn(3*dpre)
            a(f"s_waitcnt vmcnt({(80-4*k0)//3 + dpre})")
            a("s_barrier")
        dn(3*d1)
        a(f"s_waitcnt vmcnt({d1})")
        g.stamp(2)
        a("s_barrier")
        a(f"s_cmp_lt_u32 s{sCnt}, 40"); a("s_cbranch_scc0 L_aux_dnd")
        dn(40)
        a.lab("L_aux_dnd")
        a("s_barrier")
        a("s_waitcnt vmcnt(0)")
        a("s_barrier")
        a("s_branch L_aux_d2")
        a.lab("L_aux_f1")
        g.tr_addr(1, f"s{sW}", 0, 9, 10)
        a("v_add_u32 v170, 40960, v1")
        a(f"s_lshl_b32 s{sT}, s{sW}, 12"); a(f"s_add_u32 s{sT}, s{sT}, {A_D}")
        g.tr_addr(172, "0", f"s{sT}", 9, 10)
        for tau in range(1, 4): a(f"v_xor_b32 v{172+tau}, {32*tau}, v172")
        a("v_and_b32 v3, 48, v0"); a(f"v_add_u32 v176, {A_PRE}, v3"); a("v_lshlrev_b32 v177, 2, v0")
        for k in range(0, 16, 2): a(f"v_mov_b64 {V(180+k,2)}, 0")
        a(f"s_and_b32 s{sHalf}, s{sF}, 1"); a(f"s_and_b32 s{sT}, s{sW}, 1"); a(f"s_lshl1_add_u32 s{sTmp}, s{sHalf}, s{sT}"); a(f"s_lshl_b32 s{sTmp}, s{sTmp}, 6"); a(f"s_add_u32 s{sTmp}, s{sTmp}, {A_PRE}")
        a(f"v_add_u32 v178, s{sTmp}, v177")
        a(f"s_xor_b32 s{sTmp}, s{sF}, 1"); a(f"s_lshl1_add_u32 s{sTmp}, s{sTmp}, s{sT}"); a(f"s_lshl_b32 s{sTmp}, s{sTmp}, 6"); a(f"s_add_u32 s{sTmp}, s{sTmp}, {WS_X}")
        a(f"s_mul_i32 s{sCnt}, s{sF}, 2560"); a(f"s_lshl_b32 s{sT}, s{sW}, 8"); a(f"s_add_u32 s{sCnt}, s{sCnt}, s{sT}"); a(f"s_add_u32 s{sCnt}, s{sCnt}, {WS_Y}")
        a(f"v_add_u32 v2, {A_XS}, v3")
        a.lab("L_aux_xs")
        a("s_sleep 2")
        a("ds_read_b32 v6, v7 offset:8"); a("s_waitcnt lgkmcnt(0)")
        a("v_cmp_eq_u32 vcc, 0, v6"); a("s_cbranch_vccnz L_aux_xs")
        for ks in range(20): a(f"ds_read_b128 {V(12+8*ks,4)}, v2 offset:{64*ks}")
        for lo, hi in ((0, k0), (k0, 20)):
            if hi == lo: continue
            a("s_barrier")
            if hi == 20: g.stamp(3)
            for ks in range(lo, hi + 6):
                if ks < hi:
                    for ab in range(2): a(f"ds_read_b64_tr_b16 {V(8+8*ks+2*ab,2)}, v{1 if ks < 10 else 170} offset:{(ks%10)*4096+ab*2048}")
                if ks - 6 >= lo:
                    a(f"s_waitcnt lgkmcnt({2*min(6, hi+5-ks)})")
                    a(f"v_mfma_f32_16x16x32_bf16 v[4:7], {V(12+8*(ks-6),4)}, {V(8+8*(ks-6),4)}, {'0' if ks == 6 else 'v[4:7]'}")
        a("s_mov_b64 exec, 0xffff")
        a(f"s_lshr_b32 s{sT}, s{sW}, 1")
        a("s_nop 5")
        a(f"s_cmp_eq_u32 s{sHalf}, 0"); a("s_cbranch_scc0 L_aux_noact")
        g.sigmoid(5, 4); a("v_mul_f32 v4, v4, v5")
        a.lab("L_aux_noact")
        a(f"s_cmp_eq_u32 s{sT}, s{sHalf}"); a("s_cbranch_scc1 L_aux_keep")
        a(f"buffer_store_dword v4, v177, {R(rWS)}, s{sTmp} offen sc1")
        a("s_branch L_aux_kept")
        a.lab("L_aux_keep")
        a("ds_write_b32 v178, v4")
        a.lab("L_aux_kept")
        a("s_mov_b64 exec, -1")
        a("s_waitcnt lgkmcnt(0)")
        a("s_barrier")
        for k in range(4): a(f"ds_read_b128 {V(8+4*k,4)}, v176 offset:{64*k}")
        a("s_waitcnt lgkmcnt(0)")
        for k in range(0, 8, 2): a(f"v_pk_mul_f32 {V(24+k,2)}, {V(8+k,2)}, {V(16+k,2)}")
        for k in range(4): a(f"v_cvt_pk_bf16_f32 v{32+k}, v{24+2*k}, v{25+2*k}")
        for tau in range(4):
            a(f"s_mov_b32 exec_lo, {0x00010001 << (4*tau)}"); a("s_mov_b32 exec_hi, exec_lo")
            for k in (0, 2): a(f"v_mov_b64 {V(180+4*tau+k,2)}, {V(32+k,2)}")
        a("s_mov_b64 exec, -1")
        a(f"s_cmp_lt_u32 s{sW}, 2")
        a("s_barrier")
        g.stamp(4)
        for r in range(3):
            for tau in range(4):
                for ab in range(2): a(f"ds_read_b64_tr_b16 {V(80+16*r+4*tau+2*ab,2)}, v{172+tau} offset:{r*16384+ab*2048}")
        for r in range(3):
            a(f"s_waitcnt lgkmcnt({min(15, 8*(2-r))})" if r else "s_waitcnt lgkmcnt(15)")
            for tau in range(4): a(f"v_mfma_f32_16x16x32_bf16 {V(128+4*r,4)}, {V(180+4*tau,4)}, {V(80+16*r+4*tau,4)}, {0 if tau == 0 else V(128+4*r,4)}")
        for r in range(3):
            if r == 2: a("s_cbranch_scc0 L_aux_d2")
            a(f"buffer_store_dword v{128+4*r}, v177, {R(rWS)}, s{sCnt} offen offset:{1024*r} sc1")
        a.lab("L_aux_d2")
        g.stamp(5)
        a(f"s_sub_u32 s{sF}, s{sF}, 32"); a(f"s_cmp_lt_u32 s{sF}, 10"); a("s_cbranch_scc0 L_aux_end")
        Y = 72
        a("v_and_b32 v4, 15, v0")
        a("v_lshrrev_b32 v1, 4, v0"); a(f"s_lshl_b32 s{sT}, s{sW}, 3"); a(f"v_add_u32 v1, s{sT}, v1")
        a("v_mul_u32_u24 v2, 2560, v1"); a("v_lshl_add_u32 v2, v4, 4, v2")
        a(f"s_lshl_b32 s{sT}, s{sF}, 8"); a(f"s_add_u32 s{sT}, s{sT}, {WS_Y}"); a(f"v_add_u32 v2, s{sT}, v2"); a(f"v_add_u32 v3, {4*2560}, v2")
        a(f"s_mov_b64 {S(rC,2)}, {S(rWS,2)}"); g.srd_consts(rC, WS_Y + 54*2560)
        a(f"s_lshl_b32 s{sT}, s{sW}, 10"); a(f"v_lshl_add_u32 v7, v0, 4, s{sT}")
        a(f"s_mov_b32 s{sCnt}, 0")
        a.lab("L_yr")
        a(f"s_sleep {g.opt.get('ysl', 2)}")
        for e in range(2): a(f"buffer_load_dwordx4 {V(Y+4*e,4)}, v{2+e}, {R(rC)}, 0 offen sc1")
        a(f"s_add_u32 s{sCnt}, s{sCnt}, 1"); a(f"s_cmp_lt_u32 s{sCnt}, {SPIN}")
        a("s_waitcnt vmcnt(0)")
        g.poison_max(Y, 8, 6)
        a(f"v_cmp_eq_u32 vcc, {POISON}, v6")
        a("s_cbranch_scc0 L_yrok"); a("s_cbranch_vccnz L_yr")
        a.lab("L_yrok")
        for k in (0, 2): a(f"v_pk_add_f32 {V(Y+k,2)}, {V(Y+k,2)}, {V(Y+4+k,2)}")
        a(f"ds_write_b128 v7, {V(Y,4)}")
        a(f"s_and_b32 s{sT}, s84, 0xffff0000"); a("s_cmp_lt_i32 s84, 0")
        a(f"s_cselect_b32 s{sCnt}, 0, 0x7fff0000")
        a(f"s_xor_b32 s{sT}, s{sT}, s{sCnt}"); a(f"s_xor_b32 s{sT}, s{sT}, 0x80000000")
        a(f"v_mov_b32 v5, s{sT}")
        g.sigmoid(5, 5); g.bf16r(5)
        a("v_lshlrev_b32 v1, 4, v0")
        a(f"s_lshl_b32 s{sT}, s{sF}, 8"); a(f"s_add_u32 s{sT}, s{sT}, {WS_Y2}")
        a(f"s_cmp_eq_u32 s{sW}, 4")
        a("s_waitcnt lgkmcnt(0)")
        a("s_barrier")
        a("s_cbranch_scc0 L_aux_end")
        for e in range(7): a(f"ds_read_b128 {V(Y+4*e,4)}, v1 offset:{1024*e}")
        for e in range(1, 7):
            a(f"s_waitcnt lgkmcnt({6-e})")
            for k in (0, 2): a(f"v_pk_add_f32 {V(Y+k,2)}, {V(Y+k,2)}, {V(Y+4*e+k,2)}")
        for pl in ("16", "32"):
            for k in range(4): a(f"v_mov_b32 v{Y+4+k}, v{Y+k}")
            for k in range(4): a(f"v_permlane{pl}_swap_b32 v{Y+k}, v{Y+4+k}")
            for k in range(4): a(f"v_add_f32 v{Y+k}, v{Y+k}, v{Y+4+k}")
        for k in range(4):
            g.bf16r(Y+k); a(f"v_mul_f32 v{Y+k}, v{Y+k}, v5"); g.bf16r(Y+k)
        a("s_mov_b64 exec, 0xffff")
        a(f"buffer_store_dwordx4 {V(Y,4)}, v1, {R(rWS)}, s{sT} offen sc1")
        a("s_mov_b64 exec, -1")
        g.stamp(7)
        a.lab("L_aux_end")
        g.dump_stamps(8)

    def flush_tail(g):
        for t in g.tail: t()
        g.tail = []

    def build(g):
        g.prologue(); g.lwave(); g.flush_tail(); g.cwave(); g.softmax(); g.stage2(); g.lpost(); g.cfin(); g.flush_tail(); g.aux()
        g.a.lab("L_end")
        g.a("s_endpgm")
        body = g.a.finish()
        if g.opt.get('align', 1): body, g.npro, g.nnop = align8(body, KN + '_kernel', 4 if g.opt.get('hop', 1) else 0)
        hdr = open(f"cdna_kernels/{KN}.s.ref").read().split("; Override launch")[0]
        k = KN + "_kernel"
        return hdr + f"""; @launch grid=(256,1,1) block=(512,1,1) lds={LDS_BYTES}
.amdgcn_target "amdgcn-amd-amdhsa--gfx950"
.text
.globl {k}
.p2align 12
.p2align 8
.type {k},@function
{k}:
{body}
.section .rodata,"a"
.p2align 6
.amdhsa_kernel {k}
  .amdhsa_next_free_vgpr 256
  .amdhsa_next_free_sgpr 102
  .amdhsa_accum_offset 256
  .amdhsa_group_segment_fixed_size 0
  .amdhsa_kernarg_size 96
  .amdhsa_user_sgpr_count 2
  .amdhsa_user_sgpr_kernarg_segment_ptr 1
  .amdhsa_system_sgpr_workgroup_id_x 1
  .amdhsa_float_denorm_mode_32 3
.end_amdhsa_kernel
"""

if __name__ == "__main__":
    out = sys.argv[1] if len(sys.argv) > 1 else "k2.s"
    kw = {}
    for x in sys.argv[2:]:
        k, v = x.split("="); kw[k] = eval(v)
    g = Gen(**kw)
    open(out, "w").write(g.build())
    print("wrote", out, "pads", g.a.npad, "promoted/nops", getattr(g, "npro", 0), getattr(g, "nnop", 0))
```

```python
import sys
sys.path.insert(0, "work")
from hx import *
def gen(clean, stride):
    L = []; a = L.append
    a("s_memrealtime s[40:41]")
    a("s_load_dwordx2 s[4:5], s[0:1], 0")
    a("s_load_dwordx2 s[16:17], s[0:1], 8")
    a("s_waitcnt lgkmcnt(0)")
    a("s_mov_b32 s8, s4"); a("s_and_b32 s9, s5, 0xffff"); a(f"s_mov_b32 s10, {128<<20}"); a("s_mov_b32 s11, 0x20000")
    a("s_mov_b32 s20, s16"); a("s_and_b32 s21, s17, 0xffff"); a("s_mov_b32 s22, 0x100000"); a("s_mov_b32 s23, 0x20000")
    a("s_lshl_b32 s12, s2, 14"); a(f"s_xor_b32 s13, s12, {1<<14}")
    a("v_lshl_add_u32 v1, v0, 4, s12"); a("v_lshl_add_u32 v2, v0, 4, s13"); a(f"v_lshl_add_u32 v3, v0, {stride}, s12")
    for i in range(4): a(f"v_mov_b32 v{4+i}, 77")
    a("v_mov_b32 v40, 0")
    for i in range(4): a(f"buffer_load_dwordx4 v[{8+4*i}:{11+4*i}], v1, s[8:11], 0 offen offset:{1024*i} sc1")
    a("s_waitcnt vmcnt(0)")
    for i in range(4): a(f"buffer_store_dwordx4 v[4:7], v1, s[8:11], 0 offen offset:{1024*i}")
    a("s_waitcnt vmcnt(0)")
    a("s_memtime s[36:37]"); a("s_waitcnt lgkmcnt(0)")
    if stride == 7: a("s_mov_b32 exec_hi, 0")
    if clean == "st": a("buffer_store_dword v4, v3, s[8:11], 0 offen sc1")
    if clean == "at": a("buffer_atomic_add v40, v3, s[8:11], 0 offen")
    if clean == "ld": a("buffer_load_dword v41, v3, s[8:11], 0 offen sc0 sc1")
    if clean == "ldnt": a("buffer_load_dword v41, v3, s[8:11], 0 offen nt")
    a("s_mov_b64 exec, -1")
    a("s_waitcnt vmcnt(0)")
    a("s_memtime s[38:39]"); a("s_waitcnt lgkmcnt(0)")
    a("L_w:")
    a("s_memrealtime s[44:45]"); a("s_waitcnt lgkmcnt(0)")
    a("s_sub_u32 s46, s44, s40"); a("s_cmp_lt_u32 s46, 800"); a("s_cbranch_scc1 L_w")
    for i in range(4): a(f"buffer_load_dwordx4 v[{8+4*i}:{11+4*i}], v2, s[8:11], 0 offen offset:{1024*i} sc1")
    a("s_waitcnt vmcnt(0)")
    a("s_mov_b32 s60, 0")
    for i in range(16): a(f"v_cmp_ne_u32 vcc, 77, v{8+i}"); a("s_nop 1"); a("s_bcnt1_i32_b64 s61, vcc"); a("s_add_u32 s60, s60, s61")
    a("L_w2:")
    a("s_memrealtime s[44:45]"); a("s_waitcnt lgkmcnt(0)")
    a("s_sub_u32 s46, s44, s40"); a("s_cmp_lt_u32 s46, 1400"); a("s_cbranch_scc1 L_w2")
    a("s_sub_u32 s38, s38, s36")
    a("v_mov_b32 v4, s60"); a("v_mov_b32 v5, s38")
    a("s_lshl_b32 s3, s2, 3"); a("v_mov_b32 v1, s3")
    a("buffer_store_dwordx2 v[4:5], v1, s[20:23], 0 offen")
    a("s_waitcnt vmcnt(0)")
    return "\n".join(L)
onlybuild = len(sys.argv) > 1
if not onlybuild: data = DeviceBuffer(128<<20); out = DeviceBuffer(1<<20)
def run(clean, stride, nwg=200):
    asm = wrap("mb_kernel", gen(clean, stride), grid=(nwg,1,1), block=(64,1,1), lds=100*1024, vgpr=128)
    co = build(asm, "mb_kernel", 2, "mb18_tmp")
    if onlybuild: print(cl.address_register_problem(co, "mb_kernel")); return
    k = AsmKernel(co, "mb_kernel")
    for it in range(3):
        memset(data, 1, 32<<20); sync()
        k.launch((nwg,1,1), (64,1,1), kargs([data.ptr, out.ptr]), 100*1024); sync()
        o = out.to_numpy(np.uint32, (nwg, 2)).astype(np.int64)
    fin = data.to_numpy(np.uint32, (nwg, 4096))[:, :1024]
    print(f"clean={clean} stride={1<<stride}: stale dwords per WG (of 1024) mean={o[:,0].mean():.1f} ack={np.median(o[:,1]):.0f} final ok={(fin==77).all()}", flush=True)
    k.unload()
for c in ("none", "st", "at", "ld", "ldnt"):
    for st in (7, 6): run(c, st)
```
